```python
import torch

def _softmax(x, axis=-1):
    return torch.softmax(x, dim=axis)
def _gelu(x):
    return torch.nn.functional.gelu(x, approximate="tanh")
def _silu(x):
    return torch.nn.functional.silu(x)
def _sigmoid(x):
    return torch.sigmoid(x)
def _layernorm(x, axis=-1, eps=1e-5):
    m = x.mean(dim=axis, keepdim=True)
    v = x.var(dim=axis, keepdim=True, unbiased=False)
    return (x - m) / torch.sqrt(v + eps)
def _scatter_add(tgt, idx, src, axis=0):
    return tgt.clone().index_add_(axis, idx, src)
def _segment_sum(src, seg, n):
    out = torch.zeros((n,) + src.shape[1:], dtype=src.dtype)
    return out.index_add_(0, seg, src)
def _pad(x, pw):
    flat = tuple(v for pair in reversed(pw) for v in pair)
    return torch.nn.functional.pad(x, flat)

kernel_name = 'parallel_sum__sliding_local_dilated__glu_gated_bilinear__prompt'

def setup_inputs():

    _w = (lambda a: (lambda t: t.to(torch.bfloat16) if t.is_floating_point() else t)(torch.as_tensor(a)))
    def _A_setup():
        B, S, D = 1, 2048, 512
        return {
            "x": _w((lambda *s: torch.randn(*s, dtype=torch.bfloat16) * 0.05)(B, S, D)),
            "wqkv": _w((lambda *s: torch.randn(*s, dtype=torch.bfloat16) * 0.05)(D, 3 * D)),
            "wo": _w((lambda *s: torch.randn(*s, dtype=torch.bfloat16) * 0.05)(D, D)),
        }
    _A_in = _A_setup()

    def _B_setup():
        B, S, D, F = 1, 2048, 512, 1792
        return {
            "x": _w((lambda *s: torch.randn(*s, dtype=torch.bfloat16) * 0.05)(B, S, D)),
            "w_gate": _w((lambda *s: torch.randn(*s, dtype=torch.bfloat16) * 0.8)(D, F) * (D ** -0.5)),
            "w_up": _w((lambda *s: torch.randn(*s, dtype=torch.bfloat16) * 0.8)(D, F) * (D ** -0.5)),
            "w_down": _w((lambda *s: torch.randn(*s, dtype=torch.bfloat16) * 0.8)(F, D) * (F ** -0.5)),
        }
    _B_in = _B_setup()

    return {
        "A_x": _A_in["x"],
        "A_wqkv": _A_in["wqkv"],
        "A_wo": _A_in["wo"],
        "B_x": _B_in["x"],
        "B_w_gate": _B_in["w_gate"],
        "B_w_up": _B_in["w_up"],
        "B_w_down": _B_in["w_down"],
    }

def reference(A_x, A_wqkv, A_wo, B_x, B_w_gate, B_w_up, B_w_down):
    def _A_ref(x, wqkv, wo):
        B, S, D = x.shape
        H = 32; Dh = D // H
        W, dil = 8, 2
        qkv = (lambda x, *d: x.permute(*d))((x @ wqkv).reshape(B, S, 3, H, Dh), 2, 0, 3, 1, 4)
        q, k, v = qkv[0], qkv[1], qkv[2]
        scale = Dh ** -0.5
        pos = torch.arange(S)
        off = torch.arange(W) * dil
        idx = pos[:, None] - off[None, :]
        mask = idx >= 0
        idx_c = torch.where(mask, idx, 0).reshape(-1)
        kg = k[:, :, idx_c, :].reshape(B, H, S, W, Dh)
        vg = v[:, :, idx_c, :].reshape(B, H, S, W, Dh)
        logits = torch.einsum("bhsd,bhswd->bhsw", q, kg) * scale
        logits = torch.where(mask[None, None, :, :], logits, -1e9)
        attn = _softmax(logits, axis=-1)
        o = torch.einsum("bhsw,bhswd->bhsd", attn, vg)
        return (lambda x, *d: x.permute(*d))(o, 0, 2, 1, 3).reshape(B, S, D) @ wo

    def _B_ref(x, w_gate, w_up, w_down):
        g = torch.einsum("bsd,df->bsf", x, w_gate)
        u = torch.einsum("bsd,df->bsf", x, w_up)
        h = g * u
        return torch.einsum("bsf,fd->bsd", h, w_down)

    x = A_x
    xn = _layernorm(x, axis=-1)
    return x + _A_ref(xn, A_wqkv, A_wo) + _B_ref(xn, B_w_gate, B_w_up, B_w_down)
```

```python
NAME = "parallel_sum__sliding_local_dilated__glu_gated_bilinear__prompt"
HEADER_COMMENT = """; Kernarg layout (80 bytes, ptrs only, base s[0:1]):
"""
class Prog:
    def __init__(self):
        self.launch = []
        self.text = []
        self.desc = []
    def add_launch(self, k, grid, block, lds=0):
        self.launch.append((k, grid, block, lds))
    def kernel(self, name, body, vgpr, sgpr=102, accum=None, ids="x"):
        if accum is None: accum = (vgpr + 3) // 4 * 4
        self.text.append(f".globl {name}\n.p2align 8\n.type {name},@function\n{name}:\n" + body + "\n")
        d = f".p2align 6\n.amdhsa_kernel {name}\n  .amdhsa_next_free_vgpr {vgpr}\n  .amdhsa_next_free_sgpr {sgpr}\n  .amdhsa_accum_offset {accum}\n"
        d += "  .amdhsa_group_segment_fixed_size 0\n  .amdhsa_kernarg_size 80\n  .amdhsa_user_sgpr_count 2\n  .amdhsa_user_sgpr_kernarg_segment_ptr 1\n  .amdhsa_system_sgpr_workgroup_id_x 1\n"
        if "y" in ids: d += "  .amdhsa_system_sgpr_workgroup_id_y 1\n"
        if "z" in ids: d += "  .amdhsa_system_sgpr_workgroup_id_z 1\n"
        d += ".end_amdhsa_kernel\n"
        self.desc.append(d)
    def render(self, single=False):
        s = HEADER_COMMENT
        if single:
            k, g, b, l = self.launch[0]
            s += f"; @launch grid=({g[0]},{g[1]},{g[2]}) block=({b[0]},{b[1]},{b[2]}) lds={l}\n"
        else:
            for k, g, b, l in self.launch:
                s += f"; @launch kernel={k} grid=({g[0]},{g[1]},{g[2]}) block=({b[0]},{b[1]},{b[2]}) lds={l}\n"
        s += '.amdgcn_target "amdgcn-amd-amdhsa--gfx950"\n.text\n'
        s += "".join(self.text)
        s += '.section .rodata,"a"\n' + "".join(self.desc)
        return s

class A:
    def __init__(self): self.l = []
    def __call__(self, s):
        for ln in s.strip("\n").split("\n"):
            self.l.append("    " + ln.strip() if not ln.strip().endswith(":") else ln.strip())
    def srd(self, d, karg_off, nbytes, tmp=None):
        self(f"s_load_dwordx2 s[{d}:{d+1}], s[0:1], {karg_off}")
        self(f"s_mov_b32 s{d+2}, {nbytes}\ns_mov_b32 s{d+3}, 0x00020000")
    def text(self): return "\n".join(self.l)
```

```python
import sys; sys.path.insert(0, "work")
from asmlib import *
XN = 0
W1T = 2 << 20
W2T = W1T + 5120 * 1024
C1 = W2T + 512 * 4608
OH = C1 + 2048 * 10240
WSB = OH + 2048 * 4608
P = Prog()

a = A()
a(f"""s_cmp_ge_u32 s2, 512
s_cbranch_scc1 ln_done""")
a.srd(4, 0, 2048 * 1024); a.srd(8, 72, 2048 * 1024)
a("""v_lshrrev_b32 v1, 6, v0
v_and_b32 v2, 63, v0
s_lshl_b32 s3, s2, 2
v_add_u32 v1, s3, v1
v_lshlrev_b32 v1, 10, v1
v_lshlrev_b32 v3, 4, v2
v_add_u32 v1, v1, v3
v_lshlrev_b32 v3, 2, v2
s_waitcnt lgkmcnt(0)
buffer_load_dwordx4 v[4:7], v1, s[4:7], 0 offen
s_waitcnt vmcnt(0)""")
for i in range(4):
    a(f"v_lshlrev_b32 v{8+2*i}, 16, v{4+i}\nv_and_b32 v{9+2*i}, 0xffff0000, v{4+i}")
a("v_add_f32 v16, v8, v9")
for i in range(10, 16): a(f"v_add_f32 v16, v16, v{i}")
def bfly(a, r):
    for m in (1, 2, 4, 8, 16, 32):
        a(f"v_xor_b32 v20, {m*4}, v3\nds_bpermute_b32 v21, v20, v{r}\ns_waitcnt lgkmcnt(0)\nv_add_f32 v{r}, v{r}, v21")
bfly(a, 16)
a("v_mul_f32 v16, 0x3b000000, v16")
a("v_mov_b32 v17, 0")
for i in range(8, 16): a(f"v_sub_f32 v22, v{i}, v16\nv_fma_f32 v17, v22, v22, v17")
bfly(a, 17)
a("""v_mul_f32 v17, 0x3b000000, v17
v_cvt_pk_bf16_f32 v16, v16, v16
v_cvt_pk_bf16_f32 v17, v17, v17
v_and_b32 v16, 0xffff0000, v16
v_and_b32 v17, 0xffff0000, v17
v_add_f32 v17, 0x3727c5ac, v17
v_cvt_pk_bf16_f32 v17, v17, v17
v_and_b32 v17, 0xffff0000, v17
v_sqrt_f32 v17, v17
s_nop 0
v_cvt_pk_bf16_f32 v17, v17, v17
v_and_b32 v17, 0xffff0000, v17
v_rcp_f32 v17, v17
s_nop 0""")
for i in range(8, 16, 2):
    a(f"""v_sub_f32 v{i}, v{i}, v16
v_sub_f32 v{i+1}, v{i+1}, v16
v_cvt_pk_bf16_f32 v22, v{i}, v{i+1}
v_lshlrev_b32 v{i}, 16, v22
v_and_b32 v{i+1}, 0xffff0000, v22
v_mul_f32 v{i}, v{i}, v17
v_mul_f32 v{i+1}, v{i+1}, v17
v_cvt_pk_bf16_f32 v{4+(i-8)//2}, v{i}, v{i+1}""")
a("buffer_store_dwordx4 v[4:7], v1, s[8:11], 0 offen\nln_done:\ns_endpgm")
P.kernel("ln_kernel", a.text(), 32); P.add_launch("ln_kernel", (512, 1, 1), (256, 1, 1))

a = A()
a("""s_load_dwordx2 s[20:21], s[0:1], 8
s_load_dwordx2 s[22:23], s[0:1], 32
s_load_dwordx2 s[24:25], s[0:1], 40
s_load_dwordx2 s[26:27], s[0:1], 16
s_load_dwordx2 s[28:29], s[0:1], 48
s_load_dwordx2 s[8:9], s[0:1], 72""")
a(f"s_mov_b32 s10, {WSB}\ns_mov_b32 s11, 0x00020000\ns_mov_b32 s7, 0x00020000\ns_waitcnt lgkmcnt(0)")
jobs = [(20, 3072, 1536, W1T, 1024, 0, 512 * 3072), (22, 3584, 1792, W1T + 1536 * 1024, 1024, 0, 512 * 3584),
        (24, 3584, 1792, W1T + 3328 * 1024, 1024, 0, 512 * 3584), (26, 1024, 512, W2T, 4608, 0, 512 * 1024)]
for c in range(4): jobs.append((28, 1024, 512, W2T + 1024 + 1024 * c, 4608, 512 * c, 1792 * 1024))
for j, (sp, rs, N, db, ds, k0, nb) in enumerate(jobs):
    a(f"""s_cmp_lg_u32 s3, {j}
s_cbranch_scc1 tr_n{j}
s_mov_b32 s4, s{sp}
s_mov_b32 s5, s{sp+1}
s_mov_b32 s6, {nb}
s_mov_b32 s12, {rs}
s_mov_b32 s13, {N}
s_mov_b32 s14, {db}
s_mov_b32 s15, {ds}
s_mov_b32 s16, {k0}
s_branch tr_go
tr_n{j}:""")
a("""s_endpgm
tr_go:
s_cmp_ge_u32 s2, s13
s_cbranch_scc1 tr_done
v_lshlrev_b32 v1, 1, v0
v_add_u32 v1, s16, v1
v_mul_lo_u32 v2, v1, s12
s_lshl_b32 s17, s2, 1
v_add_u32 v2, s17, v2
v_add_u32 v3, s12, v2
buffer_load_ushort v4, v2, s[4:7], 0 offen
buffer_load_ushort v5, v3, s[4:7], 0 offen
s_mul_i32 s18, s2, s15
s_add_u32 s18, s18, s14
v_lshlrev_b32 v6, 2, v0
v_add_u32 v6, s18, v6
v_cmp_gt_u32 vcc, 1792, v1
s_and_saveexec_b64 s[30:31], vcc
s_waitcnt vmcnt(0)
v_lshlrev_b32 v5, 16, v5
v_or_b32 v4, v4, v5
buffer_store_dword v4, v6, s[8:11], 0 offen
tr_done:
s_endpgm""")
P.kernel("tr_kernel", a.text(), 16, ids="xy"); P.add_launch("tr_kernel", (1792, 8, 1), (256, 1, 1))

def gemm(name, M, N, K, xoff, woff, epi):
    a = A()
    nx = N // 128
    a(f"s_cmp_ge_u32 s2, {nx}\ns_cbranch_scc1 {name}_done")
    a.srd(4, 72, WSB); a.srd(8, 0, 2048 * 1024); a.srd(12, 56, 2048 * 1024)
    rs = K * 2
    a(f"""v_and_b32 v1, 15, v0
v_bfe_u32 v2, v0, 4, 2
v_lshrrev_b32 v3, 6, v0
s_lshl_b32 s16, s3, 5
s_lshl_b32 s17, s2, 7
v_lshlrev_b32 v3, 5, v3
v_add_u32 v3, s17, v3
v_add_u32 v4, s16, v1
v_add_u32 v5, v3, v1
s_mov_b32 s18, {rs}
v_mul_lo_u32 v6, v4, s18
v_mul_lo_u32 v7, v5, s18
v_lshlrev_b32 v8, 4, v2
v_add_u32 v6, v6, v8
v_add_u32 v7, v7, v8
v_add_u32 v6, {xoff}, v6
v_add_u32 v7, {woff}, v7
v_add_u32 v8, {16*rs}, v6
v_add_u32 v9, {16*rs}, v7""")
    for i in range(16): a(f"v_mov_b32 v{32+i}, 0")
    a(f"""s_mov_b32 s19, 0
s_waitcnt lgkmcnt(0)
{name}_loop:
buffer_load_dwordx4 v[12:15], v6, s[4:7], s19 offen
buffer_load_dwordx4 v[16:19], v8, s[4:7], s19 offen
buffer_load_dwordx4 v[20:23], v7, s[4:7], s19 offen
buffer_load_dwordx4 v[24:27], v9, s[4:7], s19 offen
s_waitcnt vmcnt(0)
v_mfma_f32_16x16x32_bf16 v[32:35], v[20:23], v[12:15], v[32:35]
v_mfma_f32_16x16x32_bf16 v[36:39], v[24:27], v[12:15], v[36:39]
v_mfma_f32_16x16x32_bf16 v[40:43], v[20:23], v[16:19], v[40:43]
v_mfma_f32_16x16x32_bf16 v[44:47], v[24:27], v[16:19], v[44:47]
s_add_u32 s19, s19, 64
s_cmp_lt_u32 s19, {rs}
s_cbranch_scc1 {name}_loop
s_nop 15
s_nop 7""")
    epi(a)
    a(f"{name}_done:\ns_endpgm")
    P.kernel(name, a.text(), 64, ids="xy"); P.add_launch(name, (nx, M // 32, 1), (256, 1, 1))

def epi1(a):
    a(f"""s_mov_b32 s18, 10240
v_mul_lo_u32 v6, v4, s18
v_lshlrev_b32 v7, 2, v2
v_add_u32 v7, v7, v3
v_lshlrev_b32 v7, 1, v7
v_add_u32 v6, v6, v7
v_add_u32 v6, {C1}, v6
v_add_u32 v8, {16*10240}, v6""")
    for mi in range(2):
        for ni in range(2):
            r = 32 + 4 * (mi * 2 + ni)
            a(f"v_cvt_pk_bf16_f32 v12, v{r}, v{r+1}\nv_cvt_pk_bf16_f32 v13, v{r+2}, v{r+3}")
            a(f"buffer_store_dwordx2 v[12:13], v{6 if mi == 0 else 8}, s[4:7], 0 offen offset:{32*ni}\ns_nop 1")
def epi2(a):
    a(f"""v_lshlrev_b32 v6, 10, v4
v_lshlrev_b32 v7, 2, v2
v_add_u32 v7, v7, v3
v_lshlrev_b32 v7, 1, v7
v_add_u32 v6, v6, v7
v_add_u32 v8, {16*1024}, v6""")
    for mi in range(2):
        for ni in range(2):
            r = 32 + 4 * (mi * 2 + ni)
            va = 6 if mi == 0 else 8
            a(f"""buffer_load_dwordx2 v[14:15], v{va}, s[8:11], 0 offen offset:{32*ni}
s_waitcnt vmcnt(0)
v_lshlrev_b32 v16, 16, v14
v_and_b32 v17, 0xffff0000, v14
v_lshlrev_b32 v18, 16, v15
v_and_b32 v19, 0xffff0000, v15
v_add_f32 v16, v16, v{r}
v_add_f32 v17, v17, v{r+1}
v_add_f32 v18, v18, v{r+2}
v_add_f32 v19, v19, v{r+3}
v_cvt_pk_bf16_f32 v12, v16, v17
v_cvt_pk_bf16_f32 v13, v18, v19
buffer_store_dwordx2 v[12:13], v{va}, s[12:15], 0 offen offset:{32*ni}
s_nop 1""")
gemm("g1_kernel", 2048, 5120, 512, XN, W1T, epi1)

a = A()
a("s_cmp_ge_u32 s2, 256\ns_cbranch_scc1 at_done")
a.srd(4, 72, WSB)
a(f"""s_lshl_b32 s3, s2, 8
v_add_u32 v1, s3, v0
v_lshrrev_b32 v2, 5, v1
v_and_b32 v3, 31, v1
v_lshlrev_b32 v3, 5, v3
s_mov_b32 s18, 10240
v_mul_lo_u32 v4, v2, s18
v_add_u32 v4, v4, v3
v_add_u32 v4, {C1}, v4
s_waitcnt lgkmcnt(0)
buffer_load_dwordx4 v[8:11], v4, s[4:7], 0 offen
buffer_load_dwordx4 v[12:15], v4, s[4:7], 0 offen offset:16
s_waitcnt vmcnt(0)""")
def unpack(a, src, dst, n):
    for i in range(n):
        a(f"v_lshlrev_b32 v{dst+2*i}, 16, v{src+i}\nv_and_b32 v{dst+2*i+1}, 0xffff0000, v{src+i}")
unpack(a, 8, 16, 8)
for w in range(8):
    a(f"""v_subrev_u32 v5, {2*w}, v2
v_cmp_le_i32 vcc, 0, v5
v_max_i32 v5, 0, v5
v_mul_lo_u32 v6, v5, s18
v_add_u32 v6, v6, v3
v_add_u32 v6, {C1 + 1024}, v6
v_mov_b32 v{48+w}, v6
buffer_load_dwordx4 v[8:11], v6, s[4:7], 0 offen
buffer_load_dwordx4 v[12:15], v6, s[4:7], 0 offen offset:16
s_waitcnt vmcnt(0)""")
    unpack(a, 8, 64, 8)
    a(f"v_mul_f32 v{40+w}, v16, v64")
    for i in range(1, 16): a(f"v_fma_f32 v{40+w}, v{16+i}, v{64+i}, v{40+w}")
    a(f"v_mul_f32 v{40+w}, 0.25, v{40+w}\nv_mov_b32 v7, 0xce6e6b28\nv_cndmask_b32 v{40+w}, v7, v{40+w}, vcc")
a("v_max_f32 v56, v40, v41")
for w in range(2, 8): a(f"v_max_f32 v56, v56, v{40+w}")
for w in range(8): a(f"v_sub_f32 v{40+w}, v{40+w}, v56\nv_mul_f32 v{40+w}, 0x3fb8aa3b, v{40+w}\nv_exp_f32 v{40+w}, v{40+w}")
a("s_nop 0\nv_add_f32 v57, v40, v41")
for w in range(2, 8): a(f"v_add_f32 v57, v57, v{40+w}")
a("v_rcp_f32 v57, v57\ns_nop 0")
for w in range(8): a(f"v_mul_f32 v{40+w}, v{40+w}, v57")
for i in range(16): a(f"v_mov_b32 v{80+i}, 0")
for w in range(8):
    a(f"""buffer_load_dwordx4 v[8:11], v{48+w}, s[4:7], 0 offen offset:1024
buffer_load_dwordx4 v[12:15], v{48+w}, s[4:7], 0 offen offset:1040
s_waitcnt vmcnt(0)""")
    unpack(a, 8, 64, 8)
    for i in range(16): a(f"v_fma_f32 v{80+i}, v{40+w}, v{64+i}, v{80+i}")
for i in range(8): a(f"v_cvt_pk_bf16_f32 v{8+i}, v{80+2*i}, v{81+2*i}")
a(f"""s_mov_b32 s18, 4608
v_mul_lo_u32 v4, v2, s18
v_add_u32 v4, v4, v3
v_add_u32 v4, {OH}, v4
buffer_store_dwordx4 v[8:11], v4, s[4:7], 0 offen
buffer_store_dwordx4 v[12:15], v4, s[4:7], 0 offen offset:16
at_done:
s_endpgm""")
P.kernel("at_kernel", a.text(), 96); P.add_launch("at_kernel", (256, 1, 1), (256, 1, 1))

a = A()
a("s_cmp_ge_u32 s2, 2048\ns_cbranch_scc1 gl_done")
a.srd(4, 72, WSB)
a(f"""v_cmp_gt_u32 vcc, 224, v0
s_and_saveexec_b64 s[30:31], vcc
s_mul_i32 s16, s2, 10240
s_add_u32 s16, s16, {C1 + 3072}
s_mul_i32 s17, s2, 4608
s_add_u32 s17, s17, {OH + 1024}
v_lshlrev_b32 v1, 4, v0
v_add_u32 v2, s16, v1
v_add_u32 v3, s17, v1
s_waitcnt lgkmcnt(0)
buffer_load_dwordx4 v[8:11], v2, s[4:7], 0 offen
buffer_load_dwordx4 v[12:15], v2, s[4:7], 0 offen offset:3584
s_waitcnt vmcnt(0)""")
unpack(a, 8, 16, 4); unpack(a, 12, 24, 4)
for i in range(8): a(f"v_mul_f32 v{16+i}, v{16+i}, v{24+i}")
for i in range(4): a(f"v_cvt_pk_bf16_f32 v{8+i}, v{16+2*i}, v{17+2*i}")
a("buffer_store_dwordx4 v[8:11], v3, s[4:7], 0 offen\ngl_done:\ns_endpgm")
P.kernel("gl_kernel", a.text(), 32); P.add_launch("gl_kernel", (2048, 1, 1), (256, 1, 1))

gemm("g2_kernel", 2048, 512, 2304, OH, W2T, epi2)

n_empty = int(sys.argv[2]) if len(sys.argv) > 2 else 0
if n_empty:
    P.kernel("em_kernel", "    s_endpgm", 8)
    for i in range(n_empty): P.add_launch("em_kernel", (256, 1, 1), (256, 1, 1))
open(sys.argv[1], "w").write(P.render())
```

```python
import re

TRANS = ("v_exp_f32", "v_log_f32", "v_rcp_f32", "v_rsq_f32", "v_sqrt_f32", "v_sin_f32", "v_cos_f32", "v_rcp_iflag_f32")

def regs(tok):
    tok = tok.strip()
    m = re.fullmatch(r"([vsa])(\d+)", tok)
    if m: return {(m.group(1), int(m.group(2)))}
    m = re.fullmatch(r"([vsa])\[(\d+):(\d+)\]", tok)
    if m: return {(m.group(1), i) for i in range(int(m.group(2)), int(m.group(3)) + 1)}
    if tok == "vcc": return {("s", 106), ("s", 107)}
    if tok == "vcc_lo": return {("s", 106)}
    if tok == "vcc_hi": return {("s", 107)}
    if tok == "m0": return {("s", 124)}
    if tok == "exec": return {("s", 126), ("s", 127)}
    return set()

def split_ops(s):
    out = []; depth = 0; cur = ""
    for ch in s:
        if ch == "[": depth += 1
        if ch == "]": depth -= 1
        if ch == "," and depth == 0: out.append(cur.strip()); cur = ""
        else: cur += ch
    if cur.strip(): out.append(cur.strip())
    return out

def mfma_passes(op):
    if "4x4x4" in op: return 2
    if "32x32" in op: return 8
    if "16x16" in op: return 4
    raise ValueError(op)

class I:
    def __init__(self, line):
        self.line = line
        t = line.split(";")[0].strip()
        self.label = t[:-1] if t.endswith(":") else None
        self.op = ""; self.kind = "none"; self.w = set(); self.r = set()
        self.srcC = set(); self.srcAB = set(); self.states = 1
        self.dpp = False; self.store_data = set(); self.target = None
        if not t or self.label or t.startswith("."):
            self.states = 0; return
        parts = t.split(None, 1)
        op = parts[0]; self.op = op
        rest = parts[1] if len(parts) > 1 else ""
        ops = split_ops(rest)
        mods = ""
        if ops:
            last = ops[-1].split()
            if len(last) > 1:
                ops[-1] = last[0]; mods = " ".join(last[1:])
        self.ops = ops; self.mods = mods
        R = [regs(o) for o in ops]
        if op == "s_nop":
            self.kind = "nop"; self.states = int(ops[0], 0) + 1
        elif op.startswith("v_mfma"):
            self.kind = "mfma"; self.passes = mfma_passes(op)
            self.w = R[0]; self.srcAB = R[1] | R[2]; self.srcC = R[3]; self.r = self.srcAB | self.srcC
            self.dtok = ops[0]; self.ctok = ops[3]
        elif op.startswith("v_"):
            self.kind = "valu"
            base = op.replace("_e32", "").replace("_e64", "").replace("_dpp", "")
            self.base = base
            if "quad_perm" in t or "row_" in t or "wave_" in t: self.dpp = True
            if base.startswith("v_cmp"):
                self.w = R[0]; self.r = set().union(*R[1:])
            elif base.startswith("v_permlane") and "swap" in base:
                self.w = R[0] | R[1]; self.r = R[0] | R[1]
            elif base in ("v_add_co_u32", "v_sub_co_u32", "v_subrev_co_u32"):
                self.w = R[0] | R[1]; self.r = set().union(*R[2:])
            elif base in ("v_addc_co_u32", "v_subb_co_u32"):
                self.w = R[0] | R[1]; self.r = set().union(*R[2:])
            elif base in ("v_dot2c_f32_bf16", "v_fmac_f32", "v_mac_f32", "v_writelane_b32"):
                self.w = R[0]; self.r = set().union(*R)
            else:
                self.w = R[0]; self.r = set().union(*R[1:]) if len(R) > 1 else set()
            if self.dpp: self.r |= R[0]
        elif op.startswith("ds_"):
            self.kind = "ds"
            if op.startswith("ds_read") or op.startswith("ds_bpermute") or op.startswith("ds_permute") or op.startswith("ds_swizzle"):
                self.w = R[0]; self.r = set().union(*R[1:]) if len(R) > 1 else set()
            else:
                self.r = set().union(*R) if R else set()
            if "addtid" in op: self.r |= regs("m0")
        elif op.startswith("buffer_") or op.startswith("global_"):
            self.kind = "vmem"
            lds = (" lds" in " " + mods) or ("load_lds" in op)
            self.lds = lds
            if "load" in op and not lds:
                self.w = R[0]; self.r = set().union(*R[1:])
            elif "load" in op:
                self.r = set().union(*R) | regs("m0")
            elif op.startswith("buffer_store") or op.startswith("buffer_atomic"):
                self.r = set().union(*R)
                if "x4" in op or "x3" in op: self.store_data = R[0]
                if "atomic" in op and "sc0" in mods: self.w = R[0]
            else:
                if "atomic" in op and "sc0" in mods:
                    self.w = R[0]; self.r = set().union(*R[1:])
                else:
                    self.r = set().union(*R)
                    if "x4" in op or "x3" in op: self.store_data = R[1]
        elif op.startswith("s_"):
            self.kind = "salu"
            if op.startswith("s_cbranch") or op == "s_branch":
                self.kind = "branch"; self.target = ops[0]
            elif op.startswith("s_cmp") or op in ("s_waitcnt", "s_barrier", "s_endpgm", "s_setprio", "s_sleep"):
                self.r = set().union(*R) if R else set()
            elif op.startswith("s_load") or op.startswith("s_memtime") or op.startswith("s_memrealtime"):
                self.kind = "smem"; self.w = R[0]; self.r = set().union(*R[1:]) if len(R) > 1 else set()
            else:
                self.w = R[0] if R else set(); self.r = set().union(*R[1:]) if len(R) > 1 else set()
                if "saveexec" in op: self.w |= regs("exec")
        else:
            raise ValueError("unknown instr: " + line)

def vg(S): return {x for x in S if x[0] in "va"}
def sg(S): return {x for x in S if x[0] == "s"}

def need(prev, cur):
    n = 0
    pk, ck = prev.kind, cur.kind
    if pk == "valu":
        wv = vg(prev.w); ws = sg(prev.w)
        if ck == "mfma" and wv & cur.r: n = max(n, 2)
        if ck == "valu":
            if cur.dpp and wv & vg(cur.r): n = max(n, 2)
            if cur.base.startswith("v_permlane") and wv & cur.r: n = max(n, 2)
            if cur.base in ("v_readlane_b32", "v_readfirstlane_b32") and wv & cur.r: n = max(n, 1)
            if prev.base in TRANS and wv & cur.r: n = max(n, 1)
            if ws & sg(cur.r):
                n = max(n, 4 if cur.base in ("v_readlane_b32", "v_writelane_b32") else 2)
            if prev.base.startswith("v_dot") and (wv & (cur.r | cur.w)):
                if not (cur.base == prev.base and wv & cur.w and not (wv & set().union(*[regs(o) for o in cur.ops[1:]]))):
                    n = max(n, 3)
        if ck in ("vmem", "ds", "mfma") and prev.base.startswith("v_dot") and wv & cur.r: n = max(n, 3)
        if ck == "vmem" and ws & sg(cur.r): n = max(n, 5)
        if ck == "mfma" and ws & regs("exec"): n = max(n, 4)
    if pk == "mfma":
        p = prev.passes
        raw = {2: 5, 4: 8, 8: 12, 16: 20}[p]
        if ck == "mfma":
            if prev.w & cur.srcAB: n = max(n, raw)
            if prev.w & cur.srcC:
                if prev.dtok == cur.ctok and p == cur.passes: n = max(n, 2 if p == 2 else 0)
                else: n = max(n, {2: 4, 4: 6, 8: 10, 16: 18}[p])
            if (prev.w & cur.w) and not (prev.w & cur.srcC): n = max(n, raw)
        elif ck in ("valu", "vmem", "ds"):
            if prev.w & (cur.r | cur.w): n = max(n, raw)
            if ck == "valu" and prev.srcC & vg(cur.w): n = max(n, {2: 1, 4: 3, 8: 7, 16: 15}[p])
    if pk == "salu" and regs("m0") & prev.w:
        if (ck == "vmem" and getattr(cur, "lds", False)) or (ck == "ds" and "addtid" in cur.op): n = max(n, 1)
    if pk == "vmem" and prev.store_data:
        if ck == "valu" and prev.store_data & cur.w: n = max(n, 2)
        elif prev.store_data & cur.w: n = max(n, 1)
    return n

WINDOW = 24
def required_pad(hist, cur):
    pad = 0; dist = 0
    for prev in reversed(hist):
        if dist >= WINDOW: break
        n = need(prev, cur)
        if n > dist: pad = max(pad, n - dist)
        dist += prev.states
    return pad

def fix(lines):
    ins = [I(l) for l in lines]
    out = []; hist = []
    for x in ins:
        if x.states == 0 and x.kind == "none":
            out.append(x); continue
        pad = required_pad(hist, x) if x.kind != "nop" else 0
        while pad > 0:
            k = min(pad, 16)
            nop = I(f"    s_nop {k-1}"); out.append(nop); hist.append(nop); pad -= k
        out.append(x); hist.append(x)
        if x.op in ("s_branch", "s_endpgm"): hist = []
        if len(hist) > 64: hist = hist[-64:]
    labels = {x.label: i for i, x in enumerate(out) if x.label}
    errs = []
    for i, x in enumerate(out):
        if x.kind == "branch" and x.target in labels:
            h = [y for y in out[max(0, i - 64):i + 1] if y.states > 0]
            for j in range(len(h) - 2, -1, -1):
                if h[j].op in ("s_branch", "s_endpgm"): h = h[j + 1:]; break
            j = labels[x.target]; dist = 0
            while j < len(out) and dist < WINDOW:
                y = out[j]; j += 1
                if y.states == 0: continue
                if y.kind != "nop":
                    pad = required_pad(h, y)
                    if pad > 0: errs.append(f"hazard across branch '{x.line.strip()}' -> '{y.line.strip()}' needs {pad}")
                h = h + [y]; dist += y.states
                if y.op in ("s_branch", "s_endpgm"): break
    if errs: raise RuntimeError("\n".join(errs))
    return [x.line for x in out]
```

```python
import sys; sys.path.insert(0, "work")
from asmlib import *
import hazard

STATS = 0
CSP = 16384
OH = 65536
OH_TILE = 144 * 1024
WS_USED = OH + 64 * OH_TILE

XB = 2048 * 1024
WQKV_B = 512 * 3072
WG_B = 512 * 3584
WO_B = 512 * 1024
WD_B = 1792 * 1024

DPPM = "row_mask:0xf bank_mask:0xf"

def wave_allreduce_add(a, r, t):
    a(f"v_add_f32_dpp v{r}, v{r}, v{r} quad_perm:[1,0,3,2] {DPPM}")
    a(f"v_add_f32_dpp v{r}, v{r}, v{r} quad_perm:[2,3,0,1] {DPPM}")
    a(f"v_add_f32_dpp v{r}, v{r}, v{r} row_half_mirror {DPPM}")
    a(f"v_add_f32_dpp v{r}, v{r}, v{r} row_mirror {DPPM}")
    a(f"v_mov_b32 v{t}, v{r}\nv_permlane16_swap_b32 v{r}, v{t}\nv_add_f32 v{r}, v{r}, v{t}")
    a(f"v_mov_b32 v{t}, v{r}\nv_permlane32_swap_b32 v{r}, v{t}\nv_add_f32 v{r}, v{r}, v{t}")

def finish(P, name, a, vgpr, lds, grid=256, block=512):
    lines = hazard.fix(a.l)
    P.kernel(name, "\n".join(lines), vgpr)
    P.add_launch(name, (grid, 1, 1), (block, 1, 1), lds)

def gen_k0(P):
    a = A()
    a("s_cmp_ge_u32 s2, 256\ns_cbranch_scc1 k0_done")
    a.srd(4, 0, XB); a.srd(8, 72, WS_USED)
    a("""s_load_dwordx2 s[12:13], s[0:1], 8
s_load_dwordx2 s[14:15], s[0:1], 32
s_load_dwordx2 s[16:17], s[0:1], 40
v_lshrrev_b32 v1, 6, v0
v_and_b32 v2, 63, v0
v_readfirstlane_b32 s20, v1
s_lshl_b32 s21, s2, 3
s_add_u32 s21, s21, s20
s_lshl_b32 s22, s21, 10
v_lshlrev_b32 v3, 4, v2
s_waitcnt lgkmcnt(0)
buffer_load_dwordx4 v[4:7], v3, s[4:7], s22 offen""")
    a(f"""s_cmp_ge_u32 s2, 160
s_cbranch_scc1 k0_nocs
s_lshr_b32 s23, s2, 1
s_and_b32 s28, s2, 1
s_mov_b32 s24, s12
s_mov_b32 s25, s13
s_mov_b32 s26, {WQKV_B}
s_mov_b32 s27, 0x00020000
s_mov_b32 s29, 3072
s_mov_b32 s30, s23
s_cmp_lt_u32 s23, 24
s_cbranch_scc1 k0_sel
s_mov_b32 s24, s14
s_mov_b32 s25, s15
s_mov_b32 s26, {WG_B}
s_mov_b32 s29, 3584
s_sub_u32 s30, s23, 24
s_cmp_lt_u32 s23, 52
s_cbranch_scc1 k0_sel
s_mov_b32 s24, s16
s_mov_b32 s25, s17
s_sub_u32 s30, s23, 52
k0_sel:
s_lshl_b32 s31, s28, 8
s_lshl_b32 s33, s20, 5
s_add_u32 s31, s31, s33
s_mul_i32 s31, s31, s29
s_lshl_b32 s30, s30, 7
s_add_u32 s31, s31, s30
v_lshrrev_b32 v8, 3, v2
v_mul_lo_u32 v8, v8, s29
v_and_b32 v9, 7, v2
v_lshlrev_b32 v9, 4, v9
v_add_u32 v8, v8, v9
s_lshl_b32 s32, s29, 3""")
    for e in range(4):
        a(f"buffer_load_dwordx4 v[{16+4*e}:{19+4*e}], v8, s[24:27], s31 offen")
        if e < 3: a("s_add_u32 s31, s31, s32")
    a("k0_nocs:")
    a("s_cmp_ge_u32 s2, 160\ns_cbranch_scc1 k0_w0\ns_waitcnt vmcnt(4)\ns_branch k0_w1\nk0_w0:\ns_waitcnt vmcnt(0)\nk0_w1:")
    for i in range(4):
        a(f"v_lshlrev_b32 v{40+2*i}, 16, v{4+i}\nv_and_b32 v{41+2*i}, 0xffff0000, v{4+i}")
    a("v_add_f32 v48, v40, v41\nv_add_f32 v49, v42, v43\nv_add_f32 v50, v44, v45\nv_add_f32 v51, v46, v47")
    a("v_add_f32 v48, v48, v49\nv_add_f32 v50, v50, v51\nv_add_f32 v48, v48, v50")
    wave_allreduce_add(a, 48, 52)
    a("v_mul_f32 v48, 0x3b000000, v48")
    a("v_sub_f32 v52, v40, v48\nv_mul_f32 v49, v52, v52")
    for i in range(41, 48): a(f"v_sub_f32 v52, v{i}, v48\nv_fma_f32 v49, v52, v52, v49")
    wave_allreduce_add(a, 49, 52)
    a("""v_mul_f32 v49, 0x3b000000, v49
v_cvt_pk_bf16_f32 v48, v48, v48
v_cvt_pk_bf16_f32 v49, v49, v49
v_xor_b32 v48, 0x80008000, v48
v_and_b32 v49, 0xffff0000, v49
v_add_f32 v49, 0x3727c5ac, v49
v_cvt_pk_bf16_f32 v49, v49, v49
v_and_b32 v49, 0xffff0000, v49
v_sqrt_f32 v49, v49
v_cvt_pk_bf16_f32 v49, v49, v49
v_and_b32 v49, 0xffff0000, v49
v_rcp_f32 v49, v49
s_lshr_b32 s34, s21, 5
s_lshl_b32 s34, s34, 5
s_and_b32 s35, s21, 31
s_lshr_b32 s35, s35, 1
s_add_u32 s34, s34, s35
s_and_b32 s35, s21, 1
s_lshl_b32 s35, s35, 4
s_add_u32 s34, s34, s35
s_lshl_b32 s34, s34, 3""")
    a(f"""s_add_u32 s34, s34, {STATS}
v_mov_b32 v53, 0
v_cmp_eq_u32 vcc, 0, v2
s_and_saveexec_b64 s[36:37], vcc
buffer_store_dwordx2 v[48:49], v53, s[8:11], s34 offen
s_mov_b64 exec, s[36:37]
s_cmp_ge_u32 s2, 160
s_cbranch_scc1 k0_end
s_waitcnt vmcnt(1)""")
    for i in range(4):
        a(f"v_lshlrev_b32 v{40+2*i}, 16, v{16+i}\nv_and_b32 v{41+2*i}, 0xffff0000, v{16+i}")
    for e in range(1, 4):
        for i in range(4):
            a(f"v_lshlrev_b32 v52, 16, v{16+4*e+i}\nv_and_b32 v53, 0xffff0000, v{16+4*e+i}")
            a(f"v_add_f32 v{40+2*i}, v{40+2*i}, v52\nv_add_f32 v{41+2*i}, v{41+2*i}, v53")
    for i in range(4): a(f"v_permlane32_swap_b32 v{40+i}, v{44+i}")
    for i in range(4): a(f"v_add_f32 v{40+i}, v{40+i}, v{44+i}")
    for i in range(2): a(f"v_permlane16_swap_b32 v{40+i}, v{42+i}")
    for i in range(2): a(f"v_add_f32 v{40+i}, v{40+i}, v{42+i}")
    for i in range(2): a(f"v_add_f32_dpp v{40+i}, v{40+i}, v{40+i} row_ror:8 {DPPM}")
    a("""v_and_b32 v52, 8, v2
v_cmp_eq_u32 vcc, 0, v52
v_cndmask_b32 v40, v41, v40, vcc
v_and_b32 v52, 7, v2
v_lshlrev_b32 v52, 3, v52
v_lshrrev_b32 v53, 3, v2
v_add_u32 v52, v52, v53
v_lshlrev_b32 v52, 2, v52
s_lshl_b32 s34, s20, 8
v_add_u32 v52, s34, v52
ds_write_b32 v52, v40
s_waitcnt lgkmcnt(0)
s_barrier
s_cmp_lg_u32 s20, 0
s_cbranch_scc1 k0_end
v_lshlrev_b32 v52, 2, v2""")
    for i in range(8): a(f"ds_read_b32 v{40+i}, v52 offset:{256*i}")
    a("s_waitcnt lgkmcnt(0)")
    a("v_add_f32 v40, v40, v41\nv_add_f32 v42, v42, v43\nv_add_f32 v44, v44, v45\nv_add_f32 v46, v46, v47")
    a("v_add_f32 v40, v40, v42\nv_add_f32 v44, v44, v46\nv_add_f32 v40, v40, v44")
    a(f"""s_mul_i32 s34, s28, {5120*4}
s_lshl_b32 s35, s23, 8
s_add_u32 s34, s34, s35
s_add_u32 s34, s34, {CSP}
buffer_store_dword v40, v52, s[8:11], s34 offen
k0_end:
s_waitcnt vmcnt(0)
k0_done:
s_endpgm""")
    finish(P, "k0_kernel", a, 64, 2048)


WRING = 0; WST = 20480
XRING = 102400; XST = 18432
TAB = 157696
CST = TAB
RST = TAB + 2560
LDS1 = 163840
QB = 20480; KB = 40960; VB = 61440

ACC = [16, 32, 48, 64, 80]; HACC = 96
FA = [100, 124]; FB = [120, 144]; HA = 148; HB = 152
VT = [2, 3, 4, 5, 6]; VX = [7, 8, 9, 10]; VHA = 11; VHB = [12, 13]
VW = [156, 157, 158, 159, 160, 161]; VXD = [162, 163]; VXH = 164

def k1_prologue(a):
    a("s_cmp_ge_u32 s2, 256\ns_cbranch_scc1 k1_done")
    a.srd(4, 0, XB); a.srd(32, 72, WS_USED)
    a("""s_load_dwordx2 s[52:53], s[0:1], 8
s_load_dwordx4 s[56:59], s[0:1], 32
v_lshrrev_b32 v1, 6, v0
v_and_b32 v0, 63, v0
v_readfirstlane_b32 s46, v1
s_and_b32 s60, s2, 7
s_lshr_b32 s61, s2, 3
s_lshr_b32 s50, s60, 2
s_lshl_b32 s50, s50, 3
s_and_b32 s62, s61, 7
s_add_u32 s50, s50, s62
s_and_b32 s51, s60, 3
s_lshl_b32 s51, s51, 2
s_lshr_b32 s62, s61, 3
s_add_u32 s51, s51, s62
s_lshr_b32 s49, s51, 3
s_and_b32 s51, s51, 7
s_and_b32 s47, s46, 3
s_lshr_b32 s48, s46, 2""")
    a(f"""s_mov_b32 s11, 0x00020000
s_mov_b32 s15, 0x00020000
s_mov_b32 s19, 0x00020000
s_mov_b32 s23, 0x00020000
s_mov_b32 s27, 0x00020000
s_mov_b32 s31, 0x00020000
s_mov_b32 s22, {WG_B}
s_mov_b32 s26, {WG_B}
s_mov_b32 s30, {WG_B}
s_waitcnt lgkmcnt(0)
s_cmp_lg_u32 s49, 0
s_cbranch_scc1 k1_typeB
s_mov_b32 s8, s52
s_mov_b32 s9, s53
s_mov_b32 s12, s52
s_mov_b32 s13, s53
s_mov_b32 s16, s52
s_mov_b32 s17, s53
s_mov_b32 s10, {WQKV_B}
s_mov_b32 s14, {WQKV_B}
s_mov_b32 s18, {WQKV_B}
s_mov_b32 s20, s56
s_mov_b32 s21, s57
s_mov_b32 s24, s58
s_mov_b32 s25, s59
s_mov_b32 s28, s58
s_mov_b32 s29, s59
s_mov_b32 s70, 3072
s_lshl_b32 s62, s51, 7
s_add_u32 s63, s62, 1024
s_add_u32 s64, s62, 2048
s_mov_b32 s65, s62
s_mov_b32 s66, s62
s_mov_b32 s67, s62
s_lshl_b32 s77, s51, 6
s_add_u32 s78, s77, 512
s_add_u32 s79, s77, 1024
s_add_u32 s80, s77, 1536
s_add_u32 s81, s77, 3328
s_add_u32 s82, s77, {3328+32}
s_mov_b64 s[42:43], -1
s_mov_b64 s[44:45], 0
s_lshl_b32 s83, s48, 6
s_add_u32 s84, s83, 32
s_add_u32 s85, s83, 4096
s_add_u32 s86, s84, 4096
s_add_u32 s87, s83, 8192
s_add_u32 s88, s84, 8192
s_add_u32 s89, s83, {3*4096}
s_add_u32 s90, s84, {4*4096}
s_add_u32 s91, s84, {3*4096}
s_add_u32 s92, s83, {4*4096}
s_lshl_b32 s93, s51, 2
s_lshl_b32 s94, s48, 1
s_add_u32 s93, s93, s94
s_add_u32 s96, s93, 32
s_add_u32 s97, s93, 33
s_branch k1_typedone
k1_typeB:
s_mov_b32 s8, s56
s_mov_b32 s9, s57
s_mov_b32 s12, s56
s_mov_b32 s13, s57
s_mov_b32 s16, s58
s_mov_b32 s17, s59
s_mov_b32 s10, {WG_B}
s_mov_b32 s14, {WG_B}
s_mov_b32 s18, {WG_B}
s_mov_b32 s20, s58
s_mov_b32 s21, s59
s_mov_b32 s24, s56
s_mov_b32 s25, s57
s_mov_b32 s28, s58
s_mov_b32 s29, s59
s_mov_b32 s70, 3584
s_mul_i32 s74, s51, 160
s_add_u32 s74, s74, 512
s_and_b32 s75, s51, 1
s_lshl_b32 s76, s75, 5
s_add_u32 s76, s76, s74
s_add_u32 s95, s74, 128
s_cmp_lg_u32 s75, 0
s_cselect_b32 s95, s74, s95
s_lshl_b32 s62, s76, 1
s_add_u32 s63, s62, 128
s_mov_b32 s64, s62
s_mov_b32 s65, s63
s_lshl_b32 s66, s95, 1
s_mov_b32 s67, s66
s_add_u32 s77, s76, 1536
s_add_u32 s78, s76, {1536+64}
s_add_u32 s79, s76, 3328
s_add_u32 s80, s76, {3328+64}
s_add_u32 s81, s95, 1536
s_add_u32 s82, s95, 3328
s_lshr_b32 s76, s76, 4
s_lshr_b32 s95, s95, 4
s_add_u32 s76, s76, 32
s_add_u32 s95, s95, 32
s_cmp_lg_u32 s48, 0
s_cbranch_scc1 k1_typeB1""")
    def tiles(lst, steps):
        for j, (sa, ca, sb, cb) in enumerate(lst):
            a(f"s_mov_b32 s{83+2*j}, {sa*4096+32*ca}\ns_mov_b32 s{84+2*j}, {sb*4096+32*cb}")
        for ln in steps: a(ln)
    tiles([(0,0,2,1),(0,1,2,0),(0,2,2,3),(0,3,2,2),(1,0,3,1)],
          ["s_mov_b32 s93, s76", "s_add_u32 s94, s76, 1", "s_add_u32 s98, s76, 2", "s_add_u32 s96, s76, 3", "s_add_u32 s97, s76, 4", "s_mov_b32 s95, s98"])
    a("s_branch k1_typeBm\nk1_typeB1:")
    tiles([(1,1,3,0),(1,2,3,3),(1,3,3,2),(4,0,4,3),(4,1,4,2)],
          ["s_add_u32 s93, s76, 5", "s_add_u32 s94, s76, 6", "s_mov_b32 s96, s95", "s_add_u32 s97, s95, 1", "s_add_u32 s95, s76, 7"])
    a("""k1_typeBm:
v_bfe_u32 v1, v0, 2, 1
v_bfe_u32 v14, v0, 4, 1
v_xor_b32 v1, v1, v14
v_cmp_eq_u32 vcc, 0, v1
s_mov_b64 s[42:43], vcc
v_cmp_eq_u32 vcc, 1, v1
s_mov_b64 s[44:45], vcc
k1_typedone:""")

def k1_addr_setup(a):
    a("""v_lshrrev_b32 v14, 3, v0
s_lshl_b32 s3, s47, 3
v_add_u32 v14, s3, v14
v_mul_lo_u32 v165, v14, s70
s_movk_i32 s3, 3584
v_mul_lo_u32 v166, v14, s3
v_and_b32 v167, 7, v0
v_bfe_u32 v168, v0, 4, 1
v_lshlrev_b32 v168, 2, v168
v_xor_b32 v167, v167, v168
s_and_b32 s3, s47, 1
s_lshl_b32 s3, s3, 1
v_xor_b32 v167, s3, v167
v_lshlrev_b32 v168, 4, v167
v_xor_b32 v169, 32, v168""")
    a(f"""v_add_u32 v{VW[0]}, v165, v168
v_add_u32 v{VW[0]}, s62, v{VW[0]}
v_add_u32 v{VW[1]}, v165, v168
v_add_u32 v{VW[1]}, s63, v{VW[1]}
s_cmp_lg_u32 s49, 0
s_cbranch_scc1 k1_wB
v_add_u32 v{VW[2]}, v165, v168
v_add_u32 v{VW[3]}, v166, v168
v_add_u32 v{VW[4]}, v166, v169
v_mov_b32 v{VW[5]}, v{VW[4]}
s_branch k1_wD
k1_wB:
v_add_u32 v{VW[2]}, v165, v169
v_add_u32 v{VW[3]}, v166, v169
v_and_b32 v168, 48, v168
v_and_b32 v169, 48, v169
v_add_u32 v{VW[4]}, v166, v168
v_add_u32 v{VW[5]}, v166, v169
k1_wD:
v_add_u32 v{VW[2]}, s64, v{VW[2]}
v_add_u32 v{VW[3]}, s65, v{VW[3]}
v_add_u32 v{VW[4]}, s66, v{VW[4]}
v_add_u32 v{VW[5]}, s67, v{VW[5]}""")
    a(f"""s_lshl_b32 s3, s50, 7
s_lshr_b32 s60, s46, 1
s_lshl_b32 s60, s60, 5
s_add_u32 s3, s3, s60
s_and_b32 s60, s46, 1
s_add_u32 s3, s3, s60
v_lshrrev_b32 v14, 3, v0
v_lshlrev_b32 v14, 1, v14
v_add_u32 v14, s3, v14
v_lshlrev_b32 v14, 10, v14
v_and_b32 v165, 7, v0
v_lshrrev_b32 v166, 4, v0
v_xor_b32 v165, v165, v166
v_lshlrev_b32 v167, 4, v165
v_add_u32 v{VXD[0]}, v14, v167
v_xor_b32 v167, 64, v167
v_add_u32 v{VXD[1]}, v14, v167
v_add_u32 v{VXD[1]}, {16*1024}, v{VXD[1]}""")
    a(f"""s_lshl_b32 s3, s50, 7
s_sub_u32 s3, s3, 16
s_add_u32 s3, s3, s48
v_lshrrev_b32 v14, 3, v0
v_lshlrev_b32 v14, 1, v14
v_add_u32 v14, s3, v14
v_lshlrev_b32 v14, 10, v14
s_lshl_b32 s3, s48, 2
v_xor_b32 v165, s3, v165
v_lshlrev_b32 v165, 4, v165
v_add_u32 v{VXH}, v14, v165
s_cmp_lg_u32 s50, 0
s_cbranch_scc1 k1_hok
v_mov_b32 v{VXH}, 0x80000000
k1_hok:""")
    a("""s_or_b32 s68, s49, s47
s_cmp_eq_u32 s68, 0
s_cselect_b32 s68, 1, 0
s_mul_i32 s69, s48, 7168
s_sub_u32 s69, 16384, s69
s_lshl_b32 s71, s70, 6
s_lshl_b32 s36, s70, 5
s_mul_i32 s36, s36, s48
s_mul_i32 s37, s48, 114688
s_mov_b32 s38, 0""")
    a(f"""s_mul_i32 s39, s48, {WST}
s_lshl_b32 s3, s47, 10
s_add_u32 s39, s39, s3
s_lshl_b32 s40, s46, 11
s_add_u32 s40, s40, {XRING}""")
    a(f"""v_lshrrev_b32 v14, 5, v0
v_bfe_u32 v165, v0, 2, 2
v_lshlrev_b32 v166, 3, v14
v_add_u32 v166, v166, v165
v_lshlrev_b32 v166, 7, v166
v_and_b32 v167, 3, v0
v_lshlrev_b32 v167, 3, v167
v_add_u32 v166, v166, v167
v_and_b32 v167, 2, v165
v_xor_b32 v167, v167, v14
v_lshlrev_b32 v167, 5, v167
v_and_b32 v168, 16, v0
v_cmp_eq_u32 vcc, 0, v168""")
    for j in range(5):
        a(f"""v_mov_b32 v168, s{84+2*j}
v_mov_b32 v169, s{83+2*j}
v_cndmask_b32 v168, v168, v169, vcc
v_xor_b32 v168, v168, v167
v_add_u32 v{VT[j]}, v168, v166""")
    a(f"""v_and_b32 v165, 31, v0
s_lshl_b32 s3, s47, 5
v_add_u32 v165, s3, v165
v_bfe_u32 v166, v165, 1, 3
v_xor_b32 v166, v166, v14
v_lshlrev_b32 v166, 4, v166
v_lshlrev_b32 v165, 7, v165
v_add_u32 v165, v165, v166
v_add_u32 v{VX[0]}, {XRING}, v165
v_xor_b32 v{VX[1]}, 32, v{VX[0]}
v_xor_b32 v{VX[2]}, 64, v{VX[0]}
v_xor_b32 v{VX[3]}, 96, v{VX[0]}""")
    a(f"""v_lshrrev_b32 v14, 4, v0
v_bfe_u32 v165, v0, 2, 2
v_lshlrev_b32 v166, 3, v14
v_add_u32 v166, v166, v165
v_lshlrev_b32 v166, 7, v166
v_and_b32 v167, 3, v0
v_lshlrev_b32 v167, 3, v167
v_add_u32 v166, v166, v167
v_and_b32 v167, 2, v165
v_and_b32 v168, 1, v14
v_xor_b32 v167, v167, v168
v_xor_b32 v167, s47, v167
v_lshlrev_b32 v167, 5, v167
v_add_u32 v166, v166, v167
s_add_u32 s3, s48, 1
s_lshl_b32 s3, s3, 12
v_add_u32 v{VHA}, s3, v166
v_and_b32 v165, 15, v0
v_lshrrev_b32 v166, 1, v165
v_xor_b32 v166, v166, v14
v_lshlrev_b32 v166, 4, v166
v_lshlrev_b32 v165, 7, v165
v_add_u32 v165, v165, v166
v_add_u32 v{VHB[0]}, {XRING + 128*128}, v165
v_xor_b32 v{VHB[1]}, 64, v{VHB[0]}""")

def dma_w(a, tag):
    g = []
    g.append(f"s_mov_b32 m0, s39\nbuffer_load_dwordx4 v{VW[0]}, s[8:11], s36 offen lds")
    g.append(f"s_add_u32 m0, s39, 4096\nbuffer_load_dwordx4 v{VW[1]}, s[12:15], s36 offen lds")
    g.append(f"s_add_u32 m0, s39, 8192\nbuffer_load_dwordx4 v{VW[2]}, s[16:19], s36 offen lds")
    g.append(f"s_add_u32 m0, s39, 12288\nbuffer_load_dwordx4 v{VW[3]}, s[20:23], s37 offen lds")
    g.append(f"""s_add_u32 m0, s39, 16384
s_mov_b64 exec, s[42:43]
buffer_load_dwordx4 v{VW[4]}, s[24:27], s37 offen lds
s_mov_b64 exec, s[44:45]
s_cbranch_execz w4_{tag}
buffer_load_dwordx4 v{VW[5]}, s[28:31], s37 offen lds
w4_{tag}:
s_mov_b64 exec, -1
s_add_u32 s36, s36, s71
s_add_u32 s37, s37, 229376
s_add_u32 s39, s39, {2*WST}
s_sub_u32 s3, s39, {5*WST}
s_cmp_ge_u32 s39, {5*WST}
s_cselect_b32 s39, s3, s39""")
    return g

def dma_x(a, tag):
    g = []
    g.append(f"s_mov_b32 m0, s40\nbuffer_load_dwordx4 v{VXD[0]}, s[4:7], s38 offen lds")
    g.append(f"s_add_u32 m0, s40, 1024\nbuffer_load_dwordx4 v{VXD[1]}, s[4:7], s38 offen lds")
    g.append(f"""s_cmp_eq_u32 s68, 0
s_cbranch_scc1 xh_{tag}
s_add_u32 m0, s40, s69
buffer_load_dwordx4 v{VXH}, s[4:7], s38 offen lds
xh_{tag}:
s_add_u32 s38, s38, 128
s_add_u32 s40, s40, {XST}
s_sub_u32 s3, s40, {3*XST}
s_cmp_ge_u32 s40, {XRING + 3*XST}
s_cselect_b32 s40, s3, s40""")
    return g

def frag_reads(st, step_in_stage, xs):
    r = [f"ds_read_b128 v[{FB[st]}:{FB[st]+3}], v{VX[xs]}"]
    for j in range(5):
        for i in range(2):
            d = FA[st] + 4 * j + 2 * i
            r.append(f"ds_read_b64_tr_b16 v[{d}:{d+1}], v{VT[j]} offset:{2048*step_in_stage + 512*i}")
    return r
def halo_reads(odd):
    return [f"ds_read_b64_tr_b16 v[{HA}:{HA+1}], v{VHA}", f"ds_read_b64_tr_b16 v[{HA+2}:{HA+3}], v{VHA} offset:512",
            f"ds_read_b128 v[{HB}:{HB+3}], v{VHB[odd]}"]
def mf(st, j):
    return f"v_mfma_f32_32x32x16_bf16 v[{ACC[j]}:{ACC[j]+15}], v[{FA[st]+4*j}:{FA[st]+4*j+3}], v[{FB[st]}:{FB[st]+3}], v[{ACC[j]}:{ACC[j]+15}]"
def halo_mf(a, tag):
    a(f"""s_cmp_lg_u32 s49, 0
s_cbranch_scc1 hm_{tag}
v_mfma_f32_16x16x32_bf16 v[{HACC}:{HACC+3}], v[{HA}:{HA+3}], v[{HB}:{HB+3}], v[{HACC}:{HACC+3}]
hm_{tag}:""")

def w_advance():
    pre = f"""s_add_u32 s72, s72, {WST}
s_cmp_ge_u32 s72, {5*WST}
s_mov_b32 s73, {WST}
s_cselect_b32 s73, {-4*WST & 0xffffffff}, s73
s_cselect_b32 s72, 0, s72"""
    return [pre] + [f"v_add_u32 v{v}, s73, v{v}" for v in VT + [VHA]]
def x_advance():
    pre = f"""s_add_u32 s74, s74, {XST}
s_cmp_ge_u32 s74, {3*XST}
s_mov_b32 s75, {XST}
s_cselect_b32 s75, {-2*XST & 0xffffffff}, s75
s_cselect_b32 s74, 0, s74"""
    return [pre] + [f"v_add_u32 v{v}, s75, v{v}" for v in VX + VHB]

def phase_even(a, tag, xs_next, adv, vm):
    rd = frag_reads(1, 1, xs_next)
    a("s_waitcnt lgkmcnt(0)")
    a(mf(0, 0)); [a(x) for x in rd[0:4]]
    a(mf(0, 1)); [a(x) for x in rd[4:8]]
    a(mf(0, 2)); [a(x) for x in rd[8:11]]
    a(mf(0, 3)); [a(x) for x in adv]
    halo_mf(a, tag)
    a(mf(0, 4))
    a("s_waitcnt lgkmcnt(0)")
    a(vm)
    a("s_barrier")

def phase_odd(a, tag, kind, xs_next, odd_next):
    rd = frag_reads(0, 0, xs_next) + halo_reads(odd_next)
    d = dma_w(a, tag) if kind == "W" else dma_x(a, tag) if kind == "X" else []
    d = d + [""] * (5 - len(d))
    a(mf(1, 0)); [a(x) for x in rd[0:5]]
    if d[0]: a(d[0])
    a(mf(1, 1)); [a(x) for x in rd[5:10]]
    if d[1]: a(d[1])
    a(mf(1, 2)); [a(x) for x in rd[10:14]]
    if d[2]: a(d[2])
    a(mf(1, 3))
    if d[3]: a(d[3])
    a(mf(1, 4))
    if d[4]: a(d[4])

def k1_tables_load(a):
    a(f"""s_cmp_ge_u32 s46, 5
s_cbranch_scc1 tb_st
s_mov_b32 s3, s77
s_cmp_eq_u32 s46, 1
s_cselect_b32 s3, s78, s3
s_cmp_eq_u32 s46, 2
s_cselect_b32 s3, s79, s3
s_cmp_eq_u32 s46, 3
s_cselect_b32 s3, s80, s3
s_cmp_eq_u32 s46, 4
s_cselect_b32 s3, s81, s3
v_add_u32 v14, s3, v0
s_cmp_lg_u32 s46, 4
s_cbranch_scc1 tb_c1
s_sub_u32 s3, s82, 32
v_add_u32 v15, s3, v0
v_cmp_le_u32 vcc, 32, v0
v_cndmask_b32 v14, v14, v15, vcc
tb_c1:
v_lshlrev_b32 v14, 2, v14
s_mov_b32 s3, {CSP}
buffer_load_dword v170, v14, s[32:35], s3 offen
s_mov_b32 s3, {CSP + 5120*4}
buffer_load_dword v171, v14, s[32:35], s3 offen
s_branch tb_done
tb_st:
s_lshl_b32 s3, s50, 7
s_cmp_eq_u32 s46, 7
s_cbranch_scc1 tb_h
s_sub_u32 s60, s46, 5
s_lshl_b32 s60, s60, 6
s_add_u32 s3, s3, s60
v_add_u32 v14, s3, v0
v_lshlrev_b32 v14, 3, v14
s_branch tb_s1
tb_h:
v_and_b32 v14, 7, v0
v_bfe_u32 v15, v0, 3, 1
v_lshlrev_b32 v15, 4, v15
v_add_u32 v14, v14, v15
s_sub_u32 s3, s3, 24
v_add_u32 v14, s3, v14
v_lshlrev_b32 v14, 3, v14
s_cmp_lg_u32 s50, 0
s_cbranch_scc1 tb_s1
v_mov_b32 v14, 0x80000000
tb_s1:
s_mov_b32 s3, {STATS}
buffer_load_dwordx2 v[170:171], v14, s[32:35], s3 offen
buffer_load_dwordx2 v[170:171], v14, s[32:35], s3 offen
tb_done:""")

def k1_tables_store(a):
    a(f"""s_cmp_ge_u32 s46, 5
s_cbranch_scc1 ts_st
v_add_f32 v170, v170, v171
v_cvt_pk_bf16_f32 v172, v170, v170
v_and_b32 v173, 0xffff0000, v172
v_sub_f32 v170, v170, v173
v_cvt_pk_bf16_f32 v174, v170, v170
v_and_b32 v173, 0xffff0000, v174
v_sub_f32 v170, v170, v173
v_cvt_pk_bf16_f32 v175, v170, v170
v_and_b32 v172, 0xffff, v172
v_and_b32 v174, 0xffff0000, v174
v_or_b32 v172, v172, v174
v_and_b32 v173, 0xffff, v175""")
    a(f"""s_lshl_b32 s3, s46, 9
s_add_u32 s3, s3, {CST}
v_lshlrev_b32 v14, 3, v0
v_add_u32 v14, s3, v14
s_mov_b32 s60, 0
s_cmp_eq_u32 s46, 4
s_cselect_b32 s60, 128, 0
s_cmp_eq_u32 s49, 0
s_cbranch_scc1 ts_u1
s_lshr_b32 s3, s46, 1
s_cmp_eq_u32 s3, 1
s_cselect_b32 s60, 128, 0
s_cmp_lg_u32 s46, 4
s_cbranch_scc1 ts_u1
v_and_b32 v15, 32, v0
v_lshlrev_b32 v15, 2, v15
v_xor_b32 v14, v14, v15
ts_u1:
v_xor_b32 v14, s60, v14
ds_write_b64 v14, v[172:173]
s_branch ts_done
ts_st:
s_sub_u32 s3, s46, 5
s_lshl_b32 s3, s3, 9
s_add_u32 s3, s3, {RST}
v_lshlrev_b32 v14, 3, v0
v_add_u32 v14, s3, v14
s_cmp_lg_u32 s46, 7
s_cbranch_scc1 ts_s1
v_cmp_gt_u32 vcc, 16, v0
s_and_saveexec_b64 s[60:61], vcc
ds_write_b64 v14, v[170:171]
s_mov_b64 exec, s[60:61]
s_branch ts_done
ts_s1:
ds_write_b64 v14, v[170:171]
ts_done:""")

def ffn_store(a, j, tmp):
    b = ACC[j]
    for q in range(8): a(f"v_mul_f32 v{b+q}, v{b+q}, v{b+8+q}")
    for q in range(8): a(f"v_mul_f32 v{b+q}, v{b+q}, v180")
    for q in range(4): a(f"v_cvt_pk_bf16_f32 v{tmp+q}, v{b+2*q}, v{b+2*q+1}")
    a(f"""s_add_u32 s3, s60, s{93+j}
s_lshl_b32 s3, s3, 10
s_add_u32 s3, s3, {OH}
buffer_store_dwordx4 v[{tmp}:{tmp+3}], v181, s[32:35], s3 offen""")

def k1_epilogue(a):
    a(f"v_and_b32 v14, 15, v0\nv_lshlrev_b32 v14, 3, v14\nv_add_u32 v14, {TAB}, v14\nv_and_b32 v15, 16, v0\nv_cmp_eq_u32 vcc, 0, v15")
    for j in range(5):
        for (s, d) in ((83 + 2*j, 60), (84 + 2*j, 61)):
            a(f"""s_lshr_b32 s{d}, s{s}, 12
s_lshl_b32 s{d}, s{d}, 9
s_and_b32 s3, s{s}, 0x60
s_lshl_b32 s3, s3, 2
s_add_u32 s{d}, s{d}, s3""")
        a(f"""v_mov_b32 v165, s61
v_mov_b32 v166, s60
v_cndmask_b32 v165, v165, v166, vcc
v_add_u32 v165, v165, v14
ds_read_b64 v[{100+2*j}:{101+2*j}], v165 offset:{CST-TAB}""")
    a(f"""v_and_b32 v165, 31, v0
s_lshl_b32 s3, s47, 5
v_add_u32 v165, s3, v165
v_lshlrev_b32 v165, 3, v165
v_add_u32 v165, {TAB}, v165
ds_read_b64 v[110:111], v165 offset:{RST-TAB}
s_add_u32 s3, s48, 1
s_lshl_b32 s3, s3, 9
s_lshl_b32 s60, s47, 7
s_add_u32 s3, s3, s60
v_add_u32 v165, s3, v14
ds_read_b64 v[112:113], v165 offset:{CST-TAB}
ds_read_b64 v[114:115], v14 offset:{RST - TAB + 128*8}
s_waitcnt lgkmcnt(0)
v_cmp_gt_u32 vcc, 32, v0
v_cndmask_b32 v116, 0, v110, vcc
v_and_b32 v117, 0xffff, v116
v_cmp_gt_u32 vcc, 16, v0
v_cndmask_b32 v118, 0, v114, vcc
v_and_b32 v119, 0xffff, v118""")
    for j in range(5):
        a(f"v_mfma_f32_32x32x8_bf16 v[{ACC[j]}:{ACC[j]+15}], v[{100+2*j}:{101+2*j}], v[116:117], v[{ACC[j]}:{ACC[j]+15}]")
    a(f"v_mfma_f32_16x16x16_bf16 v[{HACC}:{HACC+3}], v[112:113], v[118:119], v[{HACC}:{HACC+3}]")
    a("""v_mul_f32 v180, v111, v111
v_lshlrev_b32 v181, 4, v0
s_lshl_b32 s60, s50, 2
s_add_u32 s60, s60, s47
s_mul_i32 s60, s60, 144
s_cmp_lg_u32 s49, 0
s_cbranch_scc1 ep_B""")
    ffn_store(a, 3, 184); ffn_store(a, 4, 188)
    a(f"""v_lshrrev_b32 v165, 5, v0
v_mul_u32_u24 v165, 2560, v165
v_bfe_u32 v166, v0, 4, 1
v_mul_u32_u24 v166, 1280, v166
v_add_u32 v165, v165, v166
v_and_b32 v166, 15, v0
v_lshlrev_b32 v167, 4, v166
v_add_u32 v165, v165, v167
s_mul_i32 s3, s48, {2*5120}
s_lshl_b32 s61, s47, 8
s_add_u32 s3, s3, s61
s_add_u32 s3, s3, 128
v_add_u32 v165, s3, v165""")
    for j, base in ((0, QB), (1, KB)):
        b = ACC[j]
        for q in range(16): a(f"v_mul_f32 v{b+q}, v{b+q}, v111")
        for q in range(8): a(f"v_cvt_pk_bf16_f32 v{120+8*j+q}, v{b+2*q}, v{b+2*q+1}")
        for hh in range(2):
            a(f"ds_write_b128 v165, v[{120+8*j+4*hh}:{123+8*j+4*hh}] offset:{base + 5120*hh}")
    a(f"""v_lshrrev_b32 v166, 5, v0
v_mul_u32_u24 v166, 2560, v166
v_bfe_u32 v167, v0, 4, 1
v_mul_u32_u24 v167, 640, v167
v_add_u32 v166, v166, v167
v_and_b32 v167, 15, v0
v_lshlrev_b32 v167, 3, v167
v_add_u32 v166, v166, v167
s_mul_i32 s3, s48, {2*5120}
s_lshl_b32 s61, s47, 7
s_add_u32 s3, s3, s61
s_add_u32 s3, s3, 64
v_add_u32 v166, s3, v166""")
    b = ACC[2]
    for q in range(16): a(f"v_mul_f32 v{b+q}, v{b+q}, v111")
    for q in range(8): a(f"v_cvt_pk_bf16_f32 v{136+q}, v{b+2*q}, v{b+2*q+1}")
    a(f"v_add_u32 v167, {VB}, v166")
    for hh in range(2):
        for mm in range(2):
            a(f"ds_write_b64 v167, v[{136+4*hh+2*mm}:{137+4*hh+2*mm}] offset:{5120*hh + 1280*mm}")
    for q in range(4): a(f"v_mul_f32 v{HACC+q}, v{HACC+q}, v115")
    a(f"""v_cvt_pk_bf16_f32 v144, v{HACC}, v{HACC+1}
v_cvt_pk_bf16_f32 v145, v{HACC+2}, v{HACC+3}
v_bfe_u32 v165, v0, 4, 1
v_bfe_u32 v166, v0, 5, 1
v_bfe_u32 v167, v0, 3, 1
v_and_b32 v168, 7, v0
s_mul_i32 s3, s47, 5120
s_cmp_lg_u32 s48, 0
s_cbranch_scc1 ep_hv
v_mul_u32_u24 v165, 2560, v165
v_lshlrev_b32 v166, 3, v166
v_mul_u32_u24 v167, 1280, v167
v_lshlrev_b32 v168, 4, v168
s_add_u32 s3, s3, {KB}
s_branch ep_hw
ep_hv:
v_mul_u32_u24 v165, 2560, v165
v_mul_u32_u24 v166, 1280, v166
v_mul_u32_u24 v167, 640, v167
v_lshlrev_b32 v168, 3, v168
s_add_u32 s3, s3, {VB}
ep_hw:
v_add_u32 v165, v165, v166
v_add_u32 v167, v167, v168
v_add_u32 v165, v165, v167
v_add_u32 v165, s3, v165
ds_write_b64 v165, v[144:145]
s_waitcnt lgkmcnt(0)
s_barrier""")
    a(f"""v_lshrrev_b32 v165, 5, v0
s_lshl_b32 s3, s48, 1
v_add_u32 v165, s3, v165
v_lshlrev_b32 v166, 4, v165
v_and_b32 v167, 15, v0
v_add_u32 v166, v166, v167
v_bfe_u32 v168, v0, 4, 1
v_mul_u32_u24 v169, 1280, v168
v_lshlrev_b32 v170, 4, v166
v_add_u32 v170, v170, v169
s_mul_i32 s3, s47, 5120
v_add_u32 v170, s3, v170""")
    a(f"ds_read_b128 v[100:103], v170 offset:{QB + 128}\nds_read_b128 v[104:107], v170 offset:{QB + 128 + 2560}")
    for kb in range(3):
        a(f"ds_read_b128 v[{108+8*kb}:{111+8*kb}], v170 offset:{KB + 64*kb}\nds_read_b128 v[{112+8*kb}:{115+8*kb}], v170 offset:{KB + 64*kb + 2560}")
    a(f"""v_lshlrev_b32 v171, 4, v165
v_and_b32 v172, 3, v0
v_lshlrev_b32 v172, 2, v172
v_add_u32 v171, v171, v172
v_bfe_u32 v172, v0, 2, 2
v_add_u32 v171, v171, v172
v_lshlrev_b32 v171, 3, v171
v_mul_u32_u24 v172, 640, v168
v_add_u32 v171, v171, v172
s_add_u32 s3, s3, {VB}
v_add_u32 v171, s3, v171""")
    for kb in range(3):
        for m in range(4):
            d = 132 + 8*kb + 2*m
            a(f"ds_read_b64_tr_b16 v[{d}:{d+1}], v171 offset:{1280*m + 32*kb}")
    a(f"""v_mov_b32 v172, 0
v_mov_b32 v173, 0
s_cmp_lg_u32 s50, 0
s_cbranch_scc1 at_nomask
v_mov_b32 v174, 0xf149f2ca
v_cmp_gt_u32 vcc, 8, v166
v_cndmask_b32 v172, 0, v174, vcc
v_cmp_gt_u32 vcc, 4, v166
v_cndmask_b32 v173, 0, v174, vcc
at_nomask:""")
    S = [16, 20, 24]
    for i in range(4): a(f"v_mov_b32 v{S[0]+i}, v172\nv_mov_b32 v{S[1]+i}, v173")
    a("s_waitcnt lgkmcnt(12)")
    for ds in range(4):
        for kb in range(3):
            c = f"v[{S[kb]}:{S[kb]+3}]" if not (kb == 2 and ds == 0) else "0"
            a(f"v_mfma_f32_4x4x4_16b_bf16 v[{S[kb]}:{S[kb]+3}], v[{108+8*kb+2*ds}:{109+8*kb+2*ds}], v[{100+2*ds}:{101+2*ds}], {c}")
    a("""s_mov_b32 s62, 0x11111111
s_mov_b32 s63, 0x11111111
s_mov_b32 s64, 0x33333333
s_mov_b32 s65, 0x33333333
s_mov_b32 s66, 0x77777777
s_mov_b32 s67, 0x77777777
s_mov_b32 s61, 0x3eb8aa3b""")
    a(f"v_cndmask_b32 v{S[2]+1}, v{S[2]+1}, v{S[0]+1}, s[62:63]")
    a(f"v_cndmask_b32 v{S[2]+2}, v{S[2]+2}, v{S[0]+2}, s[64:65]")
    a(f"v_cndmask_b32 v{S[2]+3}, v{S[2]+3}, v{S[0]+3}, s[66:67]")
    p = [S[2]+i for i in range(4)] + [S[1]+i for i in range(4)]
    a(f"v_max3_f32 v28, v{p[0]}, v{p[1]}, v{p[2]}\nv_max3_f32 v29, v{p[3]}, v{p[4]}, v{p[5]}")
    a(f"v_max3_f32 v28, v28, v{p[6]}, v{p[7]}\nv_max_f32 v28, v28, v29\nv_mul_f32 v28, s61, v28")
    for x in p: a(f"v_fma_f32 v{x}, s61, v{x}, -v28")
    for x in p: a(f"v_exp_f32 v{x}, v{x}")
    a(f"v_add_f32 v29, v{p[0]}, v{p[1]}\nv_add_f32 v30, v{p[2]}, v{p[3]}\nv_add_f32 v31, v{p[4]}, v{p[5]}\nv_add_f32 v28, v{p[6]}, v{p[7]}")
    a("v_add_f32 v29, v29, v30\nv_add_f32 v28, v28, v31\nv_add_f32 v28, v28, v29\nv_rcp_f32 v28, v28")
    for x in p: a(f"v_mul_f32 v{x}, v{x}, v28")
    a(f"""v_cvt_pk_bf16_f32 v32, v{p[0]}, v{p[1]}
v_cvt_pk_bf16_f32 v33, v{p[2]}, v{p[3]}
v_cvt_pk_bf16_f32 v34, v{p[4]}, v{p[5]}
v_cvt_pk_bf16_f32 v35, v{p[6]}, v{p[7]}
v_mov_b32 v28, 0xffff0000
v_cndmask_b32 v29, 0, v28, s[62:63]
v_cndmask_b32 v30, 0, v28, s[66:67]
v_mov_b32 v28, 0xffff
v_cndmask_b32 v31, 0, v28, s[64:65]
v_or_b32 v30, v30, v31
v_and_b32 v36, v32, v29
v_and_b32 v37, v33, v30
v_xor_b32 v32, v32, v36
v_xor_b32 v33, v33, v37
s_waitcnt lgkmcnt(0)""")
    Pk = [36, 34, 32]
    O = [40, 44, 48, 52]
    for kb in range(3):
        for m in range(4):
            c = f"v[{O[m]}:{O[m]+3}]" if kb else "0"
            d = 132 + 8*kb + 2*m
            a(f"v_mfma_f32_4x4x4_16b_bf16 v[{O[m]}:{O[m]+3}], v[{d}:{d+1}], v[{Pk[kb]}:{Pk[kb]+1}], {c}")
    for m in range(4):
        a(f"v_cvt_pk_bf16_f32 v{56+2*m}, v{O[m]}, v{O[m]+1}\nv_cvt_pk_bf16_f32 v{57+2*m}, v{O[m]+2}, v{O[m]+3}")
    a(f"""v_lshrrev_b32 v165, 5, v0
s_mov_b32 s3, {OH_TILE}
v_mul_lo_u32 v165, v165, s3
v_and_b32 v166, 31, v0
v_lshlrev_b32 v166, 4, v166
v_add_u32 v165, v165, v166
s_lshl_b32 s3, s50, 2
s_lshl_b32 s61, s48, 1
s_add_u32 s3, s3, s61
s_mul_i32 s3, s3, 144
s_lshl_b32 s61, s51, 2
s_add_u32 s3, s3, s61
s_add_u32 s3, s3, s47
s_lshl_b32 s3, s3, 10
s_add_u32 s3, s3, {OH}
buffer_store_dwordx4 v[56:59], v165, s[32:35], s3 offen
buffer_store_dwordx4 v[60:63], v165, s[32:35], s3 offen offset:512
s_branch ep_end
ep_B:""")
    for j in range(5): ffn_store(a, j, 184 + 4*j)
    a("ep_end:\ns_waitcnt vmcnt(0)")

def gen_k1(P):
    a = A()
    k1_prologue(a)
    k1_tables_load(a)
    k1_addr_setup(a)
    a("s_cmp_lg_u32 s48, 0\ns_cbranch_scc1 pr_h1")
    for k, g in enumerate([dma_w, dma_x, dma_w, dma_x]):
        for x in g(a, f"p0{k}"): a(x)
    a("s_branch pr_d\npr_h1:")
    for k, g in enumerate([dma_x, dma_w, dma_x, dma_w]):
        for x in g(a, f"p1{k}"): a(x)
    a("pr_d:")
    for r in list(range(16, 100)): a(f"v_mov_b32 v{r}, 0")
    a("s_waitcnt vmcnt(14)")
    k1_tables_store(a)
    a("s_mov_b32 s72, 0\ns_mov_b32 s74, 0\ns_mov_b32 s41, 0")
    a("s_waitcnt lgkmcnt(0)\ns_waitcnt vmcnt(7)\ns_barrier")
    a("s_cmp_lg_u32 s48, 0\ns_cbranch_scc1 b0_h1")
    for x in dma_w(a, "b00"): a(x)
    a("s_branch b0_d\nb0_h1:")
    for x in dma_x(a, "b01"): a(x)
    a("b0_d:")
    for x in frag_reads(0, 0, 0) + halo_reads(0): a(x)
    a("k1_loop:")
    phase_even(a, "e0", 1, w_advance(), "s_waitcnt vmcnt(7)")
    a("s_cmp_ge_u32 s41, 6\ns_cbranch_scc1 o1_n\ns_cmp_lg_u32 s48, 0\ns_cbranch_scc1 o1_w")
    phase_odd(a, "o1x", "X", 2, 1)
    a("s_branch o1_d\no1_w:")
    phase_odd(a, "o1w", "W", 2, 1)
    a("s_branch o1_d\no1_n:")
    phase_odd(a, "o1n", "N", 2, 1)
    a("o1_d:")
    phase_even(a, "e1", 3, w_advance() + x_advance(),
               "s_cmp_ge_u32 s41, 6\ns_cbranch_scc1 e1_v0\ns_waitcnt vmcnt(7)\ns_branch e1_v1\ne1_v0:\ns_waitcnt vmcnt(0)\ne1_v1:")
    a("s_cmp_ge_u32 s41, 5\ns_cbranch_scc1 o3_n\ns_cmp_lg_u32 s48, 0\ns_cbranch_scc1 o3_x")
    phase_odd(a, "o3w", "W", 0, 0)
    a("s_branch o3_d\no3_x:")
    phase_odd(a, "o3x", "X", 0, 0)
    a("s_branch o3_d\no3_n:")
    phase_odd(a, "o3n", "N", 0, 0)
    a("o3_d:\ns_add_u32 s41, s41, 1\ns_cmp_lt_u32 s41, 8\ns_cbranch_scc1 k1_loop")
    a("s_waitcnt lgkmcnt(0)")
    k1_epilogue(a)
    a("k1_done:\ns_endpgm")
    finish(P, "k1_kernel", a, 256, LDS1)


REG2 = 36864
LDS2 = 4 * REG2
def gen_k2(P):
    a = A()
    a("s_cmp_ge_u32 s2, 256\ns_cbranch_scc1 k2_done")
    a.srd(4, 0, XB); a.srd(8, 48, WD_B); a.srd(12, 16, WO_B); a.srd(16, 72, WS_USED); a.srd(20, 56, XB)
    a("""v_lshrrev_b32 v1, 6, v0
v_readfirstlane_b32 s46, v1
s_and_b32 s24, s2, 7
s_lshr_b32 s25, s2, 3
s_lshl_b32 s26, s24, 2
s_and_b32 s27, s25, 3
s_add_u32 s26, s26, s27
s_lshr_b32 s27, s25, 2
s_and_b32 s47, s46, 3
s_lshr_b32 s48, s46, 2""")
    a("""v_lshrrev_b32 v2, 3, v0
v_and_b32 v3, 15, v2
v_lshlrev_b32 v3, 1, v3
v_bfe_u32 v4, v2, 4, 1
v_add_u32 v3, v3, v4
v_and_b32 v4, 32, v2
v_add_u32 v3, v3, v4
s_lshl_b32 s3, s26, 6
v_add_u32 v3, s3, v3
v_lshlrev_b32 v3, 10, v3
v_and_b32 v4, 7, v0
v_lshlrev_b32 v5, 4, v4
v_add_u32 v3, v3, v5
s_lshl_b32 s3, s27, 7
v_add_u32 v11, s3, v3
v_lshlrev_b32 v5, 8, v2
v_lshlrev_b32 v4, 1, v4
v_and_b32 v6, 15, v2
v_xor_b32 v4, v4, v6
v_lshlrev_b32 v4, 4, v4
v_add_u32 v10, v5, v4
v_and_b32 v0, 63, v0""")
    a("""v_lshrrev_b32 v2, 3, v0
s_lshl_b32 s3, s48, 3
v_add_u32 v2, s3, v2
v_lshlrev_b32 v2, 10, v2
v_and_b32 v3, 7, v0
v_bfe_u32 v4, v0, 4, 1
v_lshlrev_b32 v4, 2, v4
v_xor_b32 v3, v3, v4
v_lshlrev_b32 v3, 4, v3
v_add_u32 v2, v2, v3
s_lshl_b32 s3, s27, 7
v_add_u32 v9, s3, v2""")
    a(f"""v_lshrrev_b32 v2, 5, v0
v_lshlrev_b32 v2, 2, v2
v_bfe_u32 v3, v0, 2, 2
v_add_u32 v2, v2, v3
v_lshlrev_b32 v2, 7, v2
v_and_b32 v3, 2, v3
v_bfe_u32 v4, v0, 4, 1
v_xor_b32 v3, v3, v4
v_lshlrev_b32 v3, 5, v3
v_add_u32 v2, v2, v3
v_and_b32 v3, 3, v0
v_lshlrev_b32 v3, 3, v3
v_add_u32 v2, v2, v3
s_mul_i32 s28, s47, {REG2}
v_add_u32 v7, s28, v2
v_xor_b32 v8, 64, v7
v_lshlrev_b32 v6, 4, v0
s_lshl_b32 s3, s48, 10
s_add_u32 s29, s28, s3""")
    a(f"""s_mul_i32 s30, s47, {28*16*1024}
s_mul_i32 s31, s47, {8*16*1024}
s_lshl_b32 s3, s26, 1
s_add_u32 s3, s3, s48
s_mul_i32 s3, s3, 144
s_mul_i32 s33, s47, 28
s_add_u32 s33, s33, s3
s_add_u32 s33, s33, 32
s_lshl_b32 s33, s33, 10
s_add_u32 s33, s33, {OH}
s_lshl_b32 s34, s47, 3
s_add_u32 s34, s34, s3
s_lshl_b32 s34, s34, 10
s_add_u32 s34, s34, {OH}
s_waitcnt lgkmcnt(0)
buffer_load_dwordx4 v[12:15], v11, s[4:7], 0 offen""")
    def w2_piece(sig):
        slot = sig % 18
        if sig < 28:
            return f"s_add_u32 m0, s29, {2048*slot}\nbuffer_load_dwordx4 v9, s[8:11], s30 offen lds\ns_add_u32 s30, s30, {16*1024}"
        return f"s_add_u32 m0, s29, {2048*slot}\nbuffer_load_dwordx4 v9, s[12:15], s31 offen lds\ns_add_u32 s31, s31, {16*1024}"
    OHR = 192
    def oh_load(sig):
        d = OHR + 4 * (sig % 16)
        sreg = 33 if sig < 28 else 34
        return f"buffer_load_dwordx4 v[{d}:{d+3}], v6, s[16:19], s{sreg} offen\ns_add_u32 s{sreg}, s{sreg}, 1024"
    for sig in range(18): a(w2_piece(sig))
    for sig in range(16): a(oh_load(sig))
    for r in range(16, 48): a(f"v_mov_b32 v{r}, 0")
    a("s_waitcnt vmcnt(16)\ns_barrier")
    W2R = 48
    for sig in range(18):
        for nt in range(2):
            for i in range(2):
                d = W2R + 8*sig + 4*nt + 2*i
                a(f"ds_read_b64_tr_b16 v[{d}:{d+1}], v{7+nt} offset:{2048*sig + 1024*i}")
    a("s_waitcnt lgkmcnt(0)\ns_barrier")
    for sig in range(18, 36): a(w2_piece(sig))
    def lds_frags(sig):
        b = W2R + 8 * (sig % 2)
        return [f"ds_read_b64_tr_b16 v[{b+4*nt+2*i}:{b+4*nt+2*i+1}], v{7+nt} offset:{2048*(sig-18) + 1024*i}" for nt in range(2) for i in range(2)]
    for sig in range(36):
        if sig < 16: vm = 33
        else: vm = min(15, 35 - sig)
        if sig == 17:
            pass
        a(f"s_waitcnt vmcnt({vm})")
        if sig == 17:
            a("s_barrier")
            for x in lds_frags(18): a(x)
        if sig >= 18:
            a("s_waitcnt lgkmcnt(0)")
        b = W2R + 8*sig if sig < 18 else W2R + 8 * (sig % 2)
        o = OHR + 4 * (sig % 16)
        a(f"v_mfma_f32_32x32x16_bf16 v[16:31], v[{b}:{b+3}], v[{o}:{o+3}], v[16:31]")
        if sig >= 18 and sig + 1 < 36:
            for x in lds_frags(sig + 1): a(x)
        a(f"v_mfma_f32_32x32x16_bf16 v[32:47], v[{b+4}:{b+7}], v[{o}:{o+3}], v[32:47]")
        if sig + 16 < 36: a(oh_load(sig + 16))
    a(f"""s_barrier
v_and_b32 v2, 31, v0
s_lshl_b32 s3, s48, 5
v_add_u32 v2, s3, v2
v_lshlrev_b32 v3, 8, v2
v_and_b32 v2, 15, v2
v_lshrrev_b32 v4, 5, v0
v_xor_b32 v2, v2, v4
v_lshlrev_b32 v2, 4, v2
v_add_u32 v3, v3, v2
s_lshl_b32 s3, s47, 14
v_add_u32 v3, s3, v3""")
    for nt in range(2):
        for qq in range(4):
            a(f"v_xor_b32 v2, {128*nt + 32*qq}, v3\nds_write_b128 v2, v[{16+16*nt+4*qq}:{19+16*nt+4*qq}]")
    a("s_waitcnt lgkmcnt(0)\ns_barrier\nv_xor_b32 v9, 16, v10")
    for kq in range(4):
        a(f"ds_read_b128 v[{48+8*kq}:{51+8*kq}], v10 offset:{16384*kq}\nds_read_b128 v[{52+8*kq}:{55+8*kq}], v9 offset:{16384*kq}")
    for i in range(4):
        a(f"v_lshlrev_b32 v{80+2*i}, 16, v{12+i}\nv_and_b32 v{81+2*i}, 0xffff0000, v{12+i}")
    a("s_waitcnt lgkmcnt(0)")
    for i in range(8):
        a(f"v_add_f32 v{48+i}, v{48+i}, v{56+i}\nv_add_f32 v{64+i}, v{64+i}, v{72+i}")
    for i in range(8):
        a(f"v_add_f32 v{48+i}, v{48+i}, v{64+i}\nv_add_f32 v{48+i}, v{48+i}, v{80+i}")
    for i in range(4): a(f"v_cvt_pk_bf16_f32 v{88+i}, v{48+2*i}, v{49+2*i}")
    a("buffer_store_dwordx4 v[88:91], v11, s[20:23], 0 offen\ns_waitcnt vmcnt(0)\nk2_done:\ns_endpgm")
    finish(P, "k2_kernel", a, 256, LDS2)

if __name__ == "__main__":
    P = Prog()
    gen_k0(P)
    if len(sys.argv) > 2 and int(sys.argv[2]) >= 1: gen_k1(P)
    if len(sys.argv) > 2 and int(sys.argv[2]) >= 2: gen_k2(P)
    open(sys.argv[1], "w").write(P.render())
```

```python
import sys; sys.path.insert(0, "work")
from asmlib import *
import hazard

STATS = 0
CSP = 16384
OH = 65536
OH_TILE = 144 * 1024
WS_USED = OH + 64 * OH_TILE

XB = 2048 * 1024
WQKV_B = 512 * 3072
WG_B = 512 * 3584
WO_B = 512 * 1024
WD_B = 1792 * 1024

DPPM = "row_mask:0xf bank_mask:0xf"

def wave_allreduce_add(a, r, t):
    a(f"v_add_f32_dpp v{r}, v{r}, v{r} quad_perm:[1,0,3,2] {DPPM}")
    a(f"v_add_f32_dpp v{r}, v{r}, v{r} quad_perm:[2,3,0,1] {DPPM}")
    a(f"v_add_f32_dpp v{r}, v{r}, v{r} row_half_mirror {DPPM}")
    a(f"v_add_f32_dpp v{r}, v{r}, v{r} row_mirror {DPPM}")
    a(f"v_mov_b32 v{t}, v{r}\nv_permlane16_swap_b32 v{r}, v{t}\nv_add_f32 v{r}, v{r}, v{t}")
    a(f"v_mov_b32 v{t}, v{r}\nv_permlane32_swap_b32 v{r}, v{t}\nv_add_f32 v{r}, v{r}, v{t}")

import os
EXP = set(os.environ.get("EXP", "").split(","))
PROF = False
PROF_OFF = 16 << 20
class Stamps:
    def __init__(self, a, vreg, kidx):
        self.a = a; self.v = vreg; self.k = kidx; self.n = 0; self.names = []
    def __call__(self, name, real=False):
        if not PROF: return
        op = "s_memrealtime" if real else "s_memtime"
        self.a(f"{op} s[100:101]\ns_waitcnt lgkmcnt(0)\nv_writelane_b32 v{self.v}, s100, {self.n}")
        self.names.append(name); self.n += 1
    def dump(self, wave_sreg, tmp):
        if not PROF: return
        a = self.a
        off = PROF_OFF + self.k * (256 * 8 * 256)
        a(f"""s_load_dwordx2 s[96:97], s[0:1], 72
s_lshl_b32 s3, s2, 3
s_add_u32 s3, s3, s{wave_sreg}
s_lshl_b32 s3, s3, 8
s_add_u32 s3, s3, {off}
v_mbcnt_lo_u32_b32 v{tmp}, -1, 0
v_mbcnt_hi_u32_b32 v{tmp}, -1, v{tmp}
v_lshlrev_b32 v{tmp}, 2, v{tmp}
s_waitcnt lgkmcnt(0)
s_mov_b32 s98, {PROF_OFF + (4 << 20)}
s_mov_b32 s99, 0x00020000
buffer_store_dword v{self.v}, v{tmp}, s[96:99], s3 offen
s_waitcnt vmcnt(0)""")
        print(f"; stamps kernel {self.k}:", self.names, file=sys.stderr)

def finish(P, name, a, vgpr, lds, grid=256, block=512):
    lines = hazard.fix(a.l)
    P.kernel(name, "\n".join(lines), vgpr)
    P.add_launch(name, (grid, 1, 1), (block, 1, 1), lds)

def gen_k0(P):
    a = A()
    a("s_cmp_ge_u32 s2, 256\ns_cbranch_scc1 k0_done")
    st = Stamps(a, 63, 0); st("real0", True); st("start")
    a.srd(4, 0, XB); a.srd(8, 72, WS_USED)
    a("""s_load_dwordx2 s[12:13], s[0:1], 8
s_load_dwordx2 s[14:15], s[0:1], 32
s_load_dwordx2 s[16:17], s[0:1], 40
v_lshrrev_b32 v1, 6, v0
v_and_b32 v2, 63, v0
v_readfirstlane_b32 s20, v1
s_lshl_b32 s21, s2, 3
s_add_u32 s21, s21, s20
s_lshl_b32 s22, s21, 10
v_lshlrev_b32 v3, 4, v2
s_waitcnt lgkmcnt(0)
buffer_load_dwordx4 v[4:7], v3, s[4:7], s22 offen""")
    a(f"""s_cmp_ge_u32 s2, 160
s_cbranch_scc1 k0_nocs
s_lshr_b32 s23, s2, 1
s_and_b32 s28, s2, 1
s_mov_b32 s24, s12
s_mov_b32 s25, s13
s_mov_b32 s26, {WQKV_B}
s_mov_b32 s27, 0x00020000
s_mov_b32 s29, 3072
s_mov_b32 s30, s23
s_cmp_lt_u32 s23, 24
s_cbranch_scc1 k0_sel
s_mov_b32 s24, s14
s_mov_b32 s25, s15
s_mov_b32 s26, {WG_B}
s_mov_b32 s29, 3584
s_sub_u32 s30, s23, 24
s_cmp_lt_u32 s23, 52
s_cbranch_scc1 k0_sel
s_mov_b32 s24, s16
s_mov_b32 s25, s17
s_sub_u32 s30, s23, 52
k0_sel:
s_lshl_b32 s31, s28, 8
s_lshl_b32 s33, s20, 5
s_add_u32 s31, s31, s33
s_mul_i32 s31, s31, s29
s_lshl_b32 s30, s30, 7
s_add_u32 s31, s31, s30
v_lshrrev_b32 v8, 3, v2
v_mul_lo_u32 v8, v8, s29
v_and_b32 v9, 7, v2
v_lshlrev_b32 v9, 4, v9
v_add_u32 v8, v8, v9
s_lshl_b32 s32, s29, 3""")
    for e in range(4):
        a(f"buffer_load_dwordx4 v[{16+4*e}:{19+4*e}], v8, s[24:27], s31 offen")
        if e < 3: a("s_add_u32 s31, s31, s32")
    a("k0_nocs:")
    a("s_cmp_ge_u32 s2, 160\ns_cbranch_scc1 k0_w0\ns_waitcnt vmcnt(4)\ns_branch k0_w1\nk0_w0:\ns_waitcnt vmcnt(0)\nk0_w1:")
    for i in range(4):
        a(f"v_lshlrev_b32 v{40+2*i}, 16, v{4+i}\nv_and_b32 v{41+2*i}, 0xffff0000, v{4+i}")
    a("v_add_f32 v48, v40, v41\nv_add_f32 v49, v42, v43\nv_add_f32 v50, v44, v45\nv_add_f32 v51, v46, v47")
    a("v_add_f32 v48, v48, v49\nv_add_f32 v50, v50, v51\nv_add_f32 v48, v48, v50")
    wave_allreduce_add(a, 48, 52)
    a("v_mul_f32 v48, 0x3b000000, v48")
    a("v_sub_f32 v52, v40, v48\nv_mul_f32 v49, v52, v52")
    for i in range(41, 48): a(f"v_sub_f32 v52, v{i}, v48\nv_fma_f32 v49, v52, v52, v49")
    wave_allreduce_add(a, 49, 52)
    a("""v_mul_f32 v49, 0x3b000000, v49
v_cvt_pk_bf16_f32 v48, v48, v48
v_cvt_pk_bf16_f32 v49, v49, v49
v_xor_b32 v48, 0x80008000, v48
v_and_b32 v49, 0xffff0000, v49
v_add_f32 v49, 0x3727c5ac, v49
v_cvt_pk_bf16_f32 v49, v49, v49
v_and_b32 v49, 0xffff0000, v49
v_sqrt_f32 v49, v49
v_cvt_pk_bf16_f32 v49, v49, v49
v_and_b32 v49, 0xffff0000, v49
v_rcp_f32 v49, v49
s_lshr_b32 s34, s21, 5
s_lshl_b32 s34, s34, 5
s_and_b32 s35, s21, 31
s_lshr_b32 s35, s35, 1
s_add_u32 s34, s34, s35
s_and_b32 s35, s21, 1
s_lshl_b32 s35, s35, 4
s_add_u32 s34, s34, s35
s_lshl_b32 s34, s34, 3""")
    a(f"""s_add_u32 s34, s34, {STATS}
v_mov_b32 v53, 0
v_cmp_eq_u32 vcc, 0, v2
s_and_saveexec_b64 s[36:37], vcc
buffer_store_dwordx2 v[48:49], v53, s[8:11], s34 offen
s_mov_b64 exec, s[36:37]
s_cmp_ge_u32 s2, 160
s_cbranch_scc1 k0_end
s_waitcnt vmcnt(1)""")
    for i in range(4):
        a(f"v_lshlrev_b32 v{40+2*i}, 16, v{16+i}\nv_and_b32 v{41+2*i}, 0xffff0000, v{16+i}")
    for e in range(1, 4):
        for i in range(4):
            a(f"v_lshlrev_b32 v52, 16, v{16+4*e+i}\nv_and_b32 v53, 0xffff0000, v{16+4*e+i}")
            a(f"v_add_f32 v{40+2*i}, v{40+2*i}, v52\nv_add_f32 v{41+2*i}, v{41+2*i}, v53")
    for i in range(4): a(f"v_permlane32_swap_b32 v{40+i}, v{44+i}")
    for i in range(4): a(f"v_add_f32 v{40+i}, v{40+i}, v{44+i}")
    for i in range(2): a(f"v_permlane16_swap_b32 v{40+i}, v{42+i}")
    for i in range(2): a(f"v_add_f32 v{40+i}, v{40+i}, v{42+i}")
    for i in range(2): a(f"v_add_f32_dpp v{40+i}, v{40+i}, v{40+i} row_ror:8 {DPPM}")
    a("""v_and_b32 v52, 8, v2
v_cmp_eq_u32 vcc, 0, v52
v_cndmask_b32 v40, v41, v40, vcc
v_and_b32 v52, 7, v2
v_lshlrev_b32 v52, 3, v52
v_lshrrev_b32 v53, 3, v2
v_add_u32 v52, v52, v53
v_lshlrev_b32 v52, 2, v52
s_lshl_b32 s34, s20, 8
v_add_u32 v52, s34, v52
ds_write_b32 v52, v40
s_waitcnt lgkmcnt(0)
s_barrier
s_cmp_lg_u32 s20, 0
s_cbranch_scc1 k0_end
v_lshlrev_b32 v52, 2, v2""")
    for i in range(8): a(f"ds_read_b32 v{40+i}, v52 offset:{256*i}")
    a("s_waitcnt lgkmcnt(0)")
    a("v_add_f32 v40, v40, v41\nv_add_f32 v42, v42, v43\nv_add_f32 v44, v44, v45\nv_add_f32 v46, v46, v47")
    a("v_add_f32 v40, v40, v42\nv_add_f32 v44, v44, v46\nv_add_f32 v40, v40, v44")
    a(f"""s_mul_i32 s34, s28, {5120*4}
s_lshl_b32 s35, s23, 8
s_add_u32 s34, s34, s35
s_add_u32 s34, s34, {CSP}
buffer_store_dword v40, v52, s[8:11], s34 offen
k0_end:
s_waitcnt vmcnt(0)""")
    st("end"); st("real1", True); st.dump(20, 62)
    a("k0_done:\ns_endpgm")
    finish(P, "k0_kernel", a, 64, 2048)


WRING = 0; WST = 20480
XRING = 102400; XST = 18432
TAB = 157696
CST = TAB
RST = TAB + 2560
LDS1 = 163840
QB = 20480; KB = 40960; VB = 61440

ACC = [16, 32, 48, 64, 80]; HACC = 96
FA = [100, 124]; FB = [120, 144]; HA = 148; HB = 152
VT = [2, 3, 4, 5, 6]; VX = [7, 8, 9, 10]; VHA = 11; VHB = [12, 13]
VW = [156, 157, 158, 159, 160, 161]; VXD = [162, 163]; VXH = 164

def k1_prologue(a):
    a.srd(4, 0, XB); a.srd(32, 72, WS_USED)
    a("""s_load_dwordx2 s[52:53], s[0:1], 8
s_load_dwordx4 s[56:59], s[0:1], 32
v_lshrrev_b32 v1, 6, v0
v_and_b32 v0, 63, v0
v_readfirstlane_b32 s46, v1
s_and_b32 s60, s2, 7
s_lshr_b32 s61, s2, 3
s_lshr_b32 s50, s60, 2
s_lshl_b32 s50, s50, 3
s_and_b32 s62, s61, 7
s_add_u32 s50, s50, s62
s_and_b32 s51, s60, 3
s_lshl_b32 s51, s51, 2
s_lshr_b32 s62, s61, 3
s_add_u32 s51, s51, s62
s_lshr_b32 s49, s51, 3
s_and_b32 s51, s51, 7
s_and_b32 s47, s46, 3
s_lshr_b32 s48, s46, 2""")
    a(f"""s_mov_b32 s11, 0x00020000
s_mov_b32 s15, 0x00020000
s_mov_b32 s19, 0x00020000
s_mov_b32 s23, 0x00020000
s_mov_b32 s27, 0x00020000
s_mov_b32 s31, 0x00020000
s_mov_b32 s22, {WG_B}
s_mov_b32 s26, {WG_B}
s_mov_b32 s30, {WG_B}
s_waitcnt lgkmcnt(0)
s_cmp_lg_u32 s49, 0
s_cbranch_scc1 k1_typeB
s_mov_b32 s8, s52
s_mov_b32 s9, s53
s_mov_b32 s12, s52
s_mov_b32 s13, s53
s_mov_b32 s16, s52
s_mov_b32 s17, s53
s_mov_b32 s10, {WQKV_B}
s_mov_b32 s14, {WQKV_B}
s_mov_b32 s18, {WQKV_B}
s_mov_b32 s20, s56
s_mov_b32 s21, s57
s_mov_b32 s24, s58
s_mov_b32 s25, s59
s_mov_b32 s28, s58
s_mov_b32 s29, s59
s_mov_b32 s70, 3072
s_lshl_b32 s62, s51, 7
s_add_u32 s63, s62, 1024
s_add_u32 s64, s62, 2048
s_mov_b32 s65, s62
s_mov_b32 s66, s62
s_mov_b32 s67, s62
s_lshl_b32 s77, s51, 6
s_add_u32 s78, s77, 512
s_add_u32 s79, s77, 1024
s_add_u32 s80, s77, 1536
s_add_u32 s81, s77, 3328
s_add_u32 s82, s77, {3328+32}
s_mov_b64 s[42:43], -1
s_mov_b64 s[44:45], 0
s_lshl_b32 s83, s48, 6
s_add_u32 s84, s83, 32
s_add_u32 s85, s83, 4096
s_add_u32 s86, s84, 4096
s_add_u32 s87, s83, 8192
s_add_u32 s88, s84, 8192
s_add_u32 s89, s83, {3*4096}
s_add_u32 s90, s84, {4*4096}
s_add_u32 s91, s84, {3*4096}
s_add_u32 s92, s83, {4*4096}
s_lshl_b32 s93, s51, 2
s_lshl_b32 s94, s48, 1
s_add_u32 s93, s93, s94
s_add_u32 s96, s93, 32
s_add_u32 s97, s93, 33
s_branch k1_typedone
k1_typeB:
s_mov_b32 s8, s56
s_mov_b32 s9, s57
s_mov_b32 s12, s56
s_mov_b32 s13, s57
s_mov_b32 s16, s58
s_mov_b32 s17, s59
s_mov_b32 s10, {WG_B}
s_mov_b32 s14, {WG_B}
s_mov_b32 s18, {WG_B}
s_mov_b32 s20, s58
s_mov_b32 s21, s59
s_mov_b32 s24, s56
s_mov_b32 s25, s57
s_mov_b32 s28, s58
s_mov_b32 s29, s59
s_mov_b32 s70, 3584
s_mul_i32 s74, s51, 160
s_add_u32 s74, s74, 512
s_and_b32 s75, s51, 1
s_lshl_b32 s76, s75, 5
s_add_u32 s76, s76, s74
s_add_u32 s95, s74, 128
s_cmp_lg_u32 s75, 0
s_cselect_b32 s95, s74, s95
s_lshl_b32 s62, s76, 1
s_add_u32 s63, s62, 128
s_mov_b32 s64, s62
s_mov_b32 s65, s63
s_lshl_b32 s66, s95, 1
s_mov_b32 s67, s66
s_add_u32 s77, s76, 1536
s_add_u32 s78, s76, {1536+64}
s_add_u32 s79, s76, 3328
s_add_u32 s80, s76, {3328+64}
s_add_u32 s81, s95, 1536
s_add_u32 s82, s95, 3328
s_lshr_b32 s76, s76, 4
s_lshr_b32 s95, s95, 4
s_add_u32 s76, s76, 32
s_add_u32 s95, s95, 32
s_cmp_lg_u32 s48, 0
s_cbranch_scc1 k1_typeB1""")
    def tiles(lst, steps):
        for j, (sa, ca, sb, cb) in enumerate(lst):
            a(f"s_mov_b32 s{83+2*j}, {sa*4096+32*ca}\ns_mov_b32 s{84+2*j}, {sb*4096+32*cb}")
        for ln in steps: a(ln)
    tiles([(0,0,2,1),(0,1,2,0),(0,2,2,3),(0,3,2,2),(1,0,3,1)],
          ["s_mov_b32 s93, s76", "s_add_u32 s94, s76, 1", "s_add_u32 s98, s76, 2", "s_add_u32 s96, s76, 3", "s_add_u32 s97, s76, 4", "s_mov_b32 s95, s98"])
    a("s_branch k1_typeBm\nk1_typeB1:")
    tiles([(1,1,3,0),(1,2,3,3),(1,3,3,2),(4,0,4,3),(4,1,4,2)],
          ["s_add_u32 s93, s76, 5", "s_add_u32 s94, s76, 6", "s_mov_b32 s96, s95", "s_add_u32 s97, s95, 1", "s_add_u32 s95, s76, 7"])
    a("""k1_typeBm:
v_bfe_u32 v1, v0, 2, 1
v_bfe_u32 v14, v0, 4, 1
v_xor_b32 v1, v1, v14
v_cmp_eq_u32 vcc, 0, v1
s_mov_b64 s[42:43], vcc
v_cmp_eq_u32 vcc, 1, v1
s_mov_b64 s[44:45], vcc
k1_typedone:""")

def k1_addr_setup(a):
    a("""v_lshrrev_b32 v14, 3, v0
s_lshl_b32 s3, s47, 3
v_add_u32 v14, s3, v14
v_mul_lo_u32 v165, v14, s70
s_movk_i32 s3, 3584
v_mul_lo_u32 v166, v14, s3
v_and_b32 v167, 7, v0
v_bfe_u32 v168, v0, 4, 1
v_lshlrev_b32 v168, 2, v168
v_xor_b32 v167, v167, v168
s_and_b32 s3, s47, 1
s_lshl_b32 s3, s3, 1
v_xor_b32 v167, s3, v167
v_lshlrev_b32 v168, 4, v167
v_xor_b32 v169, 32, v168""")
    a(f"""v_add_u32 v{VW[0]}, v165, v168
v_add_u32 v{VW[0]}, s62, v{VW[0]}
v_add_u32 v{VW[1]}, v165, v168
v_add_u32 v{VW[1]}, s63, v{VW[1]}
s_cmp_lg_u32 s49, 0
s_cbranch_scc1 k1_wB
v_add_u32 v{VW[2]}, v165, v168
v_add_u32 v{VW[3]}, v166, v168
v_add_u32 v{VW[4]}, v166, v169
v_mov_b32 v{VW[5]}, v{VW[4]}
s_branch k1_wD
k1_wB:
v_add_u32 v{VW[2]}, v165, v169
v_add_u32 v{VW[3]}, v166, v169
v_and_b32 v168, 48, v168
v_and_b32 v169, 48, v169
v_add_u32 v{VW[4]}, v166, v168
v_add_u32 v{VW[5]}, v166, v169
k1_wD:
v_add_u32 v{VW[2]}, s64, v{VW[2]}
v_add_u32 v{VW[3]}, s65, v{VW[3]}
v_add_u32 v{VW[4]}, s66, v{VW[4]}
v_add_u32 v{VW[5]}, s67, v{VW[5]}""")
    a(f"""s_lshl_b32 s3, s50, 7
s_lshr_b32 s60, s46, 1
s_lshl_b32 s60, s60, 5
s_add_u32 s3, s3, s60
s_and_b32 s60, s46, 1
s_add_u32 s3, s3, s60
v_lshrrev_b32 v14, 3, v0
v_lshlrev_b32 v14, 1, v14
v_add_u32 v14, s3, v14
v_lshlrev_b32 v14, 10, v14
v_and_b32 v165, 7, v0
v_lshrrev_b32 v166, 4, v0
v_xor_b32 v165, v165, v166
v_lshlrev_b32 v167, 4, v165
v_add_u32 v{VXD[0]}, v14, v167
v_xor_b32 v167, 64, v167
v_add_u32 v{VXD[1]}, v14, v167
v_add_u32 v{VXD[1]}, {16*1024}, v{VXD[1]}""")
    a(f"""s_lshl_b32 s3, s50, 7
s_sub_u32 s3, s3, 16
s_add_u32 s3, s3, s48
v_lshrrev_b32 v14, 3, v0
v_lshlrev_b32 v14, 1, v14
v_add_u32 v14, s3, v14
v_lshlrev_b32 v14, 10, v14
s_lshl_b32 s3, s48, 2
v_xor_b32 v165, s3, v165
v_lshlrev_b32 v165, 4, v165
v_add_u32 v{VXH}, v14, v165
s_cmp_lg_u32 s50, 0
s_cbranch_scc1 k1_hok
v_mov_b32 v{VXH}, 0x80000000
k1_hok:""")
    a("""s_or_b32 s68, s49, s47
s_cmp_eq_u32 s68, 0
s_cselect_b32 s68, 1, 0
s_mul_i32 s69, s48, 7168
s_sub_u32 s69, 16384, s69
s_lshl_b32 s71, s70, 6
s_lshl_b32 s36, s70, 5
s_mul_i32 s36, s36, s48
s_mul_i32 s37, s48, 114688
s_mov_b32 s38, 0""")
    a(f"""s_mul_i32 s39, s48, {WST}
s_lshl_b32 s3, s47, 10
s_add_u32 s39, s39, s3
s_lshl_b32 s40, s46, 11
s_add_u32 s40, s40, {XRING}""")
    a(f"""v_lshrrev_b32 v14, 5, v0
v_bfe_u32 v165, v0, 2, 2
v_lshlrev_b32 v166, 3, v14
v_add_u32 v166, v166, v165
v_lshlrev_b32 v166, 7, v166
v_and_b32 v167, 3, v0
v_lshlrev_b32 v167, 3, v167
v_add_u32 v166, v166, v167
v_and_b32 v167, 2, v165
v_xor_b32 v167, v167, v14
v_lshlrev_b32 v167, 5, v167
v_and_b32 v168, 16, v0
v_cmp_eq_u32 vcc, 0, v168""")
    for j in range(5):
        a(f"""v_mov_b32 v168, s{84+2*j}
v_mov_b32 v169, s{83+2*j}
v_cndmask_b32 v168, v168, v169, vcc
v_xor_b32 v168, v168, v167
v_add_u32 v{VT[j]}, v168, v166""")
    a(f"""v_and_b32 v165, 31, v0
s_lshl_b32 s3, s47, 5
v_add_u32 v165, s3, v165
v_bfe_u32 v166, v165, 1, 3
v_xor_b32 v166, v166, v14
v_lshlrev_b32 v166, 4, v166
v_lshlrev_b32 v165, 7, v165
v_add_u32 v165, v165, v166
v_add_u32 v{VX[0]}, {XRING}, v165
v_xor_b32 v{VX[1]}, 32, v{VX[0]}
v_xor_b32 v{VX[2]}, 64, v{VX[0]}
v_xor_b32 v{VX[3]}, 96, v{VX[0]}""")
    a(f"""v_lshrrev_b32 v14, 4, v0
v_bfe_u32 v165, v0, 2, 2
v_lshlrev_b32 v166, 3, v14
v_add_u32 v166, v166, v165
v_lshlrev_b32 v166, 7, v166
v_and_b32 v167, 3, v0
v_lshlrev_b32 v167, 3, v167
v_add_u32 v166, v166, v167
v_and_b32 v167, 2, v165
v_and_b32 v168, 1, v14
v_xor_b32 v167, v167, v168
v_xor_b32 v167, s47, v167
v_lshlrev_b32 v167, 5, v167
v_add_u32 v166, v166, v167
s_add_u32 s3, s48, 1
s_lshl_b32 s3, s3, 12
v_add_u32 v{VHA}, s3, v166
v_and_b32 v165, 15, v0
v_lshrrev_b32 v166, 1, v165
v_xor_b32 v166, v166, v14
v_lshlrev_b32 v166, 4, v166
v_lshlrev_b32 v165, 7, v165
v_add_u32 v165, v165, v166
v_add_u32 v{VHB[0]}, {XRING + 128*128}, v165
v_xor_b32 v{VHB[1]}, 64, v{VHB[0]}""")

def dma_w(a, tag):
    g = []
    g.append(f"s_mov_b32 m0, s39\nbuffer_load_dwordx4 v{VW[0]}, s[8:11], s36 offen lds")
    g.append(f"s_add_u32 m0, s39, 4096\nbuffer_load_dwordx4 v{VW[1]}, s[12:15], s36 offen lds")
    g.append(f"s_add_u32 m0, s39, 8192\nbuffer_load_dwordx4 v{VW[2]}, s[16:19], s36 offen lds")
    g.append(f"s_add_u32 m0, s39, 12288\nbuffer_load_dwordx4 v{VW[3]}, s[20:23], s37 offen lds")
    g.append(f"""s_add_u32 m0, s39, 16384
s_mov_b64 exec, s[42:43]
buffer_load_dwordx4 v{VW[4]}, s[24:27], s37 offen lds
s_mov_b64 exec, s[44:45]
s_cbranch_execz w4_{tag}
buffer_load_dwordx4 v{VW[5]}, s[28:31], s37 offen lds
w4_{tag}:
s_mov_b64 exec, -1
s_add_u32 s36, s36, s71
s_add_u32 s37, s37, 229376
s_add_u32 s39, s39, {2*WST}
s_sub_u32 s3, s39, {5*WST}
s_cmp_ge_u32 s39, {5*WST}
s_cselect_b32 s39, s3, s39""")
    return g

def dma_x(a, tag):
    g = []
    g.append(f"s_mov_b32 m0, s40\nbuffer_load_dwordx4 v{VXD[0]}, s[4:7], s38 offen lds")
    g.append(f"s_add_u32 m0, s40, 1024\nbuffer_load_dwordx4 v{VXD[1]}, s[4:7], s38 offen lds")
    g.append(f"""s_cmp_eq_u32 s68, 0
s_cbranch_scc1 xh_{tag}
s_add_u32 m0, s40, s69
buffer_load_dwordx4 v{VXH}, s[4:7], s38 offen lds
xh_{tag}:
s_add_u32 s38, s38, 128
s_add_u32 s40, s40, {XST}
s_sub_u32 s3, s40, {3*XST}
s_cmp_ge_u32 s40, {XRING + 3*XST}
s_cselect_b32 s40, s3, s40""")
    return g

def frag_reads(st, step_in_stage, xs):
    if "nords" in EXP: return ["s_nop 0"] * 11
    r = [f"ds_read_b128 v[{FB[st]}:{FB[st]+3}], v{VX[xs]}"]
    for j in range(5):
        for i in range(2):
            d = FA[st] + 4 * j + 2 * i
            r.append(f"ds_read_b64_tr_b16 v[{d}:{d+1}], v{VT[j]} offset:{2048*step_in_stage + 512*i}")
    return r
def halo_reads(odd):
    if "nords" in EXP or "nohalo" in EXP: return ["s_nop 0"] * 3
    return [f"ds_read_b64_tr_b16 v[{HA}:{HA+1}], v{VHA}", f"ds_read_b64_tr_b16 v[{HA+2}:{HA+3}], v{VHA} offset:512",
            f"ds_read_b128 v[{HB}:{HB+3}], v{VHB[odd]}"]
def mf(st, j):
    return f"v_mfma_f32_32x32x16_bf16 v[{ACC[j]}:{ACC[j]+15}], v[{FA[st]+4*j}:{FA[st]+4*j+3}], v[{FB[st]}:{FB[st]+3}], v[{ACC[j]}:{ACC[j]+15}]"
def halo_mf(a, tag):
    if "nohalo" in EXP: return
    a(f"""s_cmp_lg_u32 s49, 0
s_cbranch_scc1 hm_{tag}
v_mfma_f32_16x16x32_bf16 v[{HACC}:{HACC+3}], v[{HA}:{HA+3}], v[{HB}:{HB+3}], v[{HACC}:{HACC+3}]
hm_{tag}:""")

def w_advance():
    pre = f"""s_add_u32 s72, s72, {WST}
s_cmp_ge_u32 s72, {5*WST}
s_mov_b32 s73, {WST}
s_cselect_b32 s73, {-4*WST & 0xffffffff}, s73
s_cselect_b32 s72, 0, s72"""
    return [pre] + [f"v_add_u32 v{v}, s73, v{v}" for v in VT + [VHA]]
def x_advance():
    pre = f"""s_add_u32 s74, s74, {XST}
s_cmp_ge_u32 s74, {3*XST}
s_mov_b32 s75, {XST}
s_cselect_b32 s75, {-2*XST & 0xffffffff}, s75
s_cselect_b32 s74, 0, s74"""
    return [pre] + [f"v_add_u32 v{v}, s75, v{v}" for v in VX + VHB]

def phase_even(a, tag, xs_next, adv, vm):
    rd = frag_reads(1, 1, xs_next)
    a("s_waitcnt lgkmcnt(0)")
    a(mf(0, 0)); [a(x) for x in rd[0:4]]
    a(mf(0, 1)); [a(x) for x in rd[4:8]]
    a(mf(0, 2)); [a(x) for x in rd[8:11]]
    a(mf(0, 3)); [a(x) for x in adv]
    halo_mf(a, tag)
    a(mf(0, 4))
    a("s_waitcnt lgkmcnt(0)")
    a(vm)
    if "nobar" not in EXP: a("s_barrier")

def phase_odd(a, tag, kind, xs_next, odd_next):
    rd = frag_reads(0, 0, xs_next) + halo_reads(odd_next)
    d = dma_w(a, tag) if kind == "W" else dma_x(a, tag) if kind == "X" else []
    if "nodma" in EXP: d = []
    d = d + [""] * (5 - len(d))
    a(mf(1, 0)); [a(x) for x in rd[0:5]]
    if d[0]: a(d[0])
    a(mf(1, 1)); [a(x) for x in rd[5:10]]
    if d[1]: a(d[1])
    a(mf(1, 2)); [a(x) for x in rd[10:14]]
    if d[2]: a(d[2])
    a(mf(1, 3))
    if d[3]: a(d[3])
    a(mf(1, 4))
    if d[4]: a(d[4])

def k1_tables_load(a):
    a(f"""s_cmp_ge_u32 s46, 5
s_cbranch_scc1 tb_st
s_mov_b32 s3, s77
s_cmp_eq_u32 s46, 1
s_cselect_b32 s3, s78, s3
s_cmp_eq_u32 s46, 2
s_cselect_b32 s3, s79, s3
s_cmp_eq_u32 s46, 3
s_cselect_b32 s3, s80, s3
s_cmp_eq_u32 s46, 4
s_cselect_b32 s3, s81, s3
v_add_u32 v14, s3, v0
s_cmp_lg_u32 s46, 4
s_cbranch_scc1 tb_c1
s_sub_u32 s3, s82, 32
v_add_u32 v15, s3, v0
v_cmp_le_u32 vcc, 32, v0
v_cndmask_b32 v14, v14, v15, vcc
tb_c1:
v_lshlrev_b32 v14, 2, v14
s_mov_b32 s3, {CSP}
buffer_load_dword v170, v14, s[32:35], s3 offen
s_mov_b32 s3, {CSP + 5120*4}
buffer_load_dword v171, v14, s[32:35], s3 offen
s_branch tb_done
tb_st:
s_lshl_b32 s3, s50, 7
s_cmp_eq_u32 s46, 7
s_cbranch_scc1 tb_h
s_sub_u32 s60, s46, 5
s_lshl_b32 s60, s60, 6
s_add_u32 s3, s3, s60
v_add_u32 v14, s3, v0
v_lshlrev_b32 v14, 3, v14
s_branch tb_s1
tb_h:
v_and_b32 v14, 7, v0
v_bfe_u32 v15, v0, 3, 1
v_lshlrev_b32 v15, 4, v15
v_add_u32 v14, v14, v15
s_sub_u32 s3, s3, 24
v_add_u32 v14, s3, v14
v_lshlrev_b32 v14, 3, v14
s_cmp_lg_u32 s50, 0
s_cbranch_scc1 tb_s1
v_mov_b32 v14, 0x80000000
tb_s1:
s_mov_b32 s3, {STATS}
buffer_load_dwordx2 v[170:171], v14, s[32:35], s3 offen
buffer_load_dwordx2 v[170:171], v14, s[32:35], s3 offen
tb_done:""")

def k1_tables_store(a):
    a(f"""s_cmp_ge_u32 s46, 5
s_cbranch_scc1 ts_st
v_add_f32 v170, v170, v171
v_cvt_pk_bf16_f32 v172, v170, v170
v_and_b32 v173, 0xffff0000, v172
v_sub_f32 v170, v170, v173
v_cvt_pk_bf16_f32 v174, v170, v170
v_and_b32 v173, 0xffff0000, v174
v_sub_f32 v170, v170, v173
v_cvt_pk_bf16_f32 v175, v170, v170
v_and_b32 v172, 0xffff, v172
v_and_b32 v174, 0xffff0000, v174
v_or_b32 v172, v172, v174
v_and_b32 v173, 0xffff, v175""")
    a(f"""s_lshl_b32 s3, s46, 9
s_add_u32 s3, s3, {CST}
v_lshlrev_b32 v14, 3, v0
v_add_u32 v14, s3, v14
s_mov_b32 s60, 0
s_cmp_eq_u32 s46, 4
s_cselect_b32 s60, 128, 0
s_cmp_eq_u32 s49, 0
s_cbranch_scc1 ts_u1
s_lshr_b32 s3, s46, 1
s_cmp_eq_u32 s3, 1
s_cselect_b32 s60, 128, 0
s_cmp_lg_u32 s46, 4
s_cbranch_scc1 ts_u1
v_and_b32 v15, 32, v0
v_lshlrev_b32 v15, 2, v15
v_xor_b32 v14, v14, v15
ts_u1:
v_xor_b32 v14, s60, v14
ds_write_b64 v14, v[172:173]
s_branch ts_done
ts_st:
s_sub_u32 s3, s46, 5
s_lshl_b32 s3, s3, 9
s_add_u32 s3, s3, {RST}
v_lshlrev_b32 v14, 3, v0
v_add_u32 v14, s3, v14
s_cmp_lg_u32 s46, 7
s_cbranch_scc1 ts_s1
v_cmp_gt_u32 vcc, 16, v0
s_and_saveexec_b64 s[60:61], vcc
ds_write_b64 v14, v[170:171]
s_mov_b64 exec, s[60:61]
s_branch ts_done
ts_s1:
ds_write_b64 v14, v[170:171]
ts_done:""")

def ffn_store(a, j, tmp):
    b = ACC[j]
    for q in range(8): a(f"v_mul_f32 v{b+q}, v{b+q}, v{b+8+q}")
    for q in range(8): a(f"v_mul_f32 v{b+q}, v{b+q}, v180")
    for q in range(4): a(f"v_cvt_pk_bf16_f32 v{tmp+q}, v{b+2*q}, v{b+2*q+1}")
    a(f"""s_add_u32 s3, s60, s{93+j}
s_lshl_b32 s3, s3, 10
s_add_u32 s3, s3, {OH}
buffer_store_dwordx4 v[{tmp}:{tmp+3}], v181, s[32:35], s3 offen""")

def k1_epilogue(a, st):
    a(f"v_and_b32 v14, 15, v0\nv_lshlrev_b32 v14, 3, v14\nv_add_u32 v14, {TAB}, v14\nv_and_b32 v15, 16, v0\nv_cmp_eq_u32 vcc, 0, v15")
    for j in range(5):
        for (s, d) in ((83 + 2*j, 60), (84 + 2*j, 61)):
            a(f"""s_lshr_b32 s{d}, s{s}, 12
s_lshl_b32 s{d}, s{d}, 9
s_and_b32 s3, s{s}, 0x60
s_lshl_b32 s3, s3, 2
s_add_u32 s{d}, s{d}, s3""")
        a(f"""v_mov_b32 v165, s61
v_mov_b32 v166, s60
v_cndmask_b32 v165, v165, v166, vcc
v_add_u32 v165, v165, v14
ds_read_b64 v[{100+2*j}:{101+2*j}], v165 offset:{CST-TAB}""")
    a(f"""v_and_b32 v165, 31, v0
s_lshl_b32 s3, s47, 5
v_add_u32 v165, s3, v165
v_lshlrev_b32 v165, 3, v165
v_add_u32 v165, {TAB}, v165
ds_read_b64 v[110:111], v165 offset:{RST-TAB}
s_add_u32 s3, s48, 1
s_lshl_b32 s3, s3, 9
s_lshl_b32 s60, s47, 7
s_add_u32 s3, s3, s60
v_add_u32 v165, s3, v14
ds_read_b64 v[112:113], v165 offset:{CST-TAB}
ds_read_b64 v[114:115], v14 offset:{RST - TAB + 128*8}
s_waitcnt lgkmcnt(0)
v_cmp_gt_u32 vcc, 32, v0
v_cndmask_b32 v116, 0, v110, vcc
v_and_b32 v117, 0xffff, v116
v_cmp_gt_u32 vcc, 16, v0
v_cndmask_b32 v118, 0, v114, vcc
v_and_b32 v119, 0xffff, v118""")
    for j in range(5):
        a(f"v_mfma_f32_32x32x8_bf16 v[{ACC[j]}:{ACC[j]+15}], v[{100+2*j}:{101+2*j}], v[116:117], v[{ACC[j]}:{ACC[j]+15}]")
    a(f"v_mfma_f32_16x16x16_bf16 v[{HACC}:{HACC+3}], v[112:113], v[118:119], v[{HACC}:{HACC+3}]")
    a("""v_mul_f32 v180, v111, v111
v_lshlrev_b32 v181, 4, v0
s_lshl_b32 s60, s50, 2
s_add_u32 s60, s60, s47
s_mul_i32 s60, s60, 144
s_cmp_lg_u32 s49, 0
s_cbranch_scc1 ep_B""")
    ffn_store(a, 3, 184); ffn_store(a, 4, 188)
    a(f"""v_lshrrev_b32 v165, 5, v0
v_mul_u32_u24 v165, 2560, v165
v_bfe_u32 v166, v0, 4, 1
v_mul_u32_u24 v166, 1280, v166
v_add_u32 v165, v165, v166
v_and_b32 v166, 15, v0
v_lshlrev_b32 v167, 4, v166
v_add_u32 v165, v165, v167
s_mul_i32 s3, s48, {2*5120}
s_lshl_b32 s61, s47, 8
s_add_u32 s3, s3, s61
s_add_u32 s3, s3, 128
v_add_u32 v165, s3, v165""")
    for j, base in ((0, QB), (1, KB)):
        b = ACC[j]
        for q in range(16): a(f"v_mul_f32 v{b+q}, v{b+q}, v111")
        for q in range(8): a(f"v_cvt_pk_bf16_f32 v{120+8*j+q}, v{b+2*q}, v{b+2*q+1}")
        for hh in range(2):
            a(f"ds_write_b128 v165, v[{120+8*j+4*hh}:{123+8*j+4*hh}] offset:{base + 5120*hh}")
    a(f"""v_lshrrev_b32 v166, 5, v0
v_mul_u32_u24 v166, 2560, v166
v_bfe_u32 v167, v0, 4, 1
v_mul_u32_u24 v167, 640, v167
v_add_u32 v166, v166, v167
v_and_b32 v167, 15, v0
v_lshlrev_b32 v167, 3, v167
v_add_u32 v166, v166, v167
s_mul_i32 s3, s48, {2*5120}
s_lshl_b32 s61, s47, 7
s_add_u32 s3, s3, s61
s_add_u32 s3, s3, 64
v_add_u32 v166, s3, v166""")
    b = ACC[2]
    for q in range(16): a(f"v_mul_f32 v{b+q}, v{b+q}, v111")
    for q in range(8): a(f"v_cvt_pk_bf16_f32 v{136+q}, v{b+2*q}, v{b+2*q+1}")
    a(f"v_add_u32 v167, {VB}, v166")
    for hh in range(2):
        for mm in range(2):
            a(f"ds_write_b64 v167, v[{136+4*hh+2*mm}:{137+4*hh+2*mm}] offset:{5120*hh + 1280*mm}")
    for q in range(4): a(f"v_mul_f32 v{HACC+q}, v{HACC+q}, v115")
    a(f"""v_cvt_pk_bf16_f32 v144, v{HACC}, v{HACC+1}
v_cvt_pk_bf16_f32 v145, v{HACC+2}, v{HACC+3}
v_bfe_u32 v165, v0, 4, 1
v_bfe_u32 v166, v0, 5, 1
v_bfe_u32 v167, v0, 3, 1
v_and_b32 v168, 7, v0
s_mul_i32 s3, s47, 5120
s_cmp_lg_u32 s48, 0
s_cbranch_scc1 ep_hv
v_mul_u32_u24 v165, 2560, v165
v_lshlrev_b32 v166, 3, v166
v_mul_u32_u24 v167, 1280, v167
v_lshlrev_b32 v168, 4, v168
s_add_u32 s3, s3, {KB}
s_branch ep_hw
ep_hv:
v_mul_u32_u24 v165, 2560, v165
v_mul_u32_u24 v166, 1280, v166
v_mul_u32_u24 v167, 640, v167
v_lshlrev_b32 v168, 3, v168
s_add_u32 s3, s3, {VB}
ep_hw:
v_add_u32 v165, v165, v166
v_add_u32 v167, v167, v168
v_add_u32 v165, v165, v167
v_add_u32 v165, s3, v165
ds_write_b64 v165, v[144:145]
s_waitcnt lgkmcnt(0)
s_barrier""")
    st("staged")
    a(f"""v_lshrrev_b32 v165, 5, v0
s_lshl_b32 s3, s48, 1
v_add_u32 v165, s3, v165
v_lshlrev_b32 v166, 4, v165
v_and_b32 v167, 15, v0
v_add_u32 v166, v166, v167
v_bfe_u32 v168, v0, 4, 1
v_mul_u32_u24 v169, 1280, v168
v_lshlrev_b32 v170, 4, v166
v_add_u32 v170, v170, v169
s_mul_i32 s3, s47, 5120
v_add_u32 v170, s3, v170""")
    a(f"ds_read_b128 v[100:103], v170 offset:{QB + 128}\nds_read_b128 v[104:107], v170 offset:{QB + 128 + 2560}")
    for kb in range(3):
        a(f"ds_read_b128 v[{108+8*kb}:{111+8*kb}], v170 offset:{KB + 64*kb}\nds_read_b128 v[{112+8*kb}:{115+8*kb}], v170 offset:{KB + 64*kb + 2560}")
    a(f"""v_lshlrev_b32 v171, 4, v165
v_and_b32 v172, 3, v0
v_lshlrev_b32 v172, 2, v172
v_add_u32 v171, v171, v172
v_bfe_u32 v172, v0, 2, 2
v_add_u32 v171, v171, v172
v_lshlrev_b32 v171, 3, v171
v_mul_u32_u24 v172, 640, v168
v_add_u32 v171, v171, v172
s_add_u32 s3, s3, {VB}
v_add_u32 v171, s3, v171""")
    for kb in range(3):
        for m in range(4):
            d = 132 + 8*kb + 2*m
            a(f"ds_read_b64_tr_b16 v[{d}:{d+1}], v171 offset:{1280*m + 32*kb}")
    a(f"""v_mov_b32 v172, 0
v_mov_b32 v173, 0
s_cmp_lg_u32 s50, 0
s_cbranch_scc1 at_nomask
v_mov_b32 v174, 0xf149f2ca
v_cmp_gt_u32 vcc, 8, v166
v_cndmask_b32 v172, 0, v174, vcc
v_cmp_gt_u32 vcc, 4, v166
v_cndmask_b32 v173, 0, v174, vcc
at_nomask:""")
    S = [16, 20, 24]
    for i in range(4): a(f"v_mov_b32 v{S[0]+i}, v172\nv_mov_b32 v{S[1]+i}, v173")
    a("s_waitcnt lgkmcnt(12)")
    for ds in range(4):
        for kb in range(3):
            c = f"v[{S[kb]}:{S[kb]+3}]" if not (kb == 2 and ds == 0) else "0"
            a(f"v_mfma_f32_4x4x4_16b_bf16 v[{S[kb]}:{S[kb]+3}], v[{108+8*kb+2*ds}:{109+8*kb+2*ds}], v[{100+2*ds}:{101+2*ds}], {c}")
    a("""s_mov_b32 s62, 0x11111111
s_mov_b32 s63, 0x11111111
s_mov_b32 s64, 0x33333333
s_mov_b32 s65, 0x33333333
s_mov_b32 s66, 0x77777777
s_mov_b32 s67, 0x77777777
s_mov_b32 s61, 0x3eb8aa3b""")
    a(f"v_cndmask_b32 v{S[2]+1}, v{S[2]+1}, v{S[0]+1}, s[62:63]")
    a(f"v_cndmask_b32 v{S[2]+2}, v{S[2]+2}, v{S[0]+2}, s[64:65]")
    a(f"v_cndmask_b32 v{S[2]+3}, v{S[2]+3}, v{S[0]+3}, s[66:67]")
    p = [S[2]+i for i in range(4)] + [S[1]+i for i in range(4)]
    a(f"v_max3_f32 v28, v{p[0]}, v{p[1]}, v{p[2]}\nv_max3_f32 v29, v{p[3]}, v{p[4]}, v{p[5]}")
    a(f"v_max3_f32 v28, v28, v{p[6]}, v{p[7]}\nv_max_f32 v28, v28, v29\nv_mul_f32 v28, s61, v28")
    for x in p: a(f"v_fma_f32 v{x}, s61, v{x}, -v28")
    for x in p: a(f"v_exp_f32 v{x}, v{x}")
    a(f"v_add_f32 v29, v{p[0]}, v{p[1]}\nv_add_f32 v30, v{p[2]}, v{p[3]}\nv_add_f32 v31, v{p[4]}, v{p[5]}\nv_add_f32 v28, v{p[6]}, v{p[7]}")
    a("v_add_f32 v29, v29, v30\nv_add_f32 v28, v28, v31\nv_add_f32 v28, v28, v29\nv_rcp_f32 v28, v28")
    for x in p: a(f"v_mul_f32 v{x}, v{x}, v28")
    a(f"""v_cvt_pk_bf16_f32 v32, v{p[0]}, v{p[1]}
v_cvt_pk_bf16_f32 v33, v{p[2]}, v{p[3]}
v_cvt_pk_bf16_f32 v34, v{p[4]}, v{p[5]}
v_cvt_pk_bf16_f32 v35, v{p[6]}, v{p[7]}
v_mov_b32 v28, 0xffff0000
v_cndmask_b32 v29, 0, v28, s[62:63]
v_cndmask_b32 v30, 0, v28, s[66:67]
v_mov_b32 v28, 0xffff
v_cndmask_b32 v31, 0, v28, s[64:65]
v_or_b32 v30, v30, v31
v_and_b32 v36, v32, v29
v_and_b32 v37, v33, v30
v_xor_b32 v32, v32, v36
v_xor_b32 v33, v33, v37
s_waitcnt lgkmcnt(0)""")
    Pk = [36, 34, 32]
    O = [40, 44, 48, 52]
    for kb in range(3):
        for m in range(4):
            c = f"v[{O[m]}:{O[m]+3}]" if kb else "0"
            d = 132 + 8*kb + 2*m
            a(f"v_mfma_f32_4x4x4_16b_bf16 v[{O[m]}:{O[m]+3}], v[{d}:{d+1}], v[{Pk[kb]}:{Pk[kb]+1}], {c}")
    for m in range(4):
        a(f"v_cvt_pk_bf16_f32 v{56+2*m}, v{O[m]}, v{O[m]+1}\nv_cvt_pk_bf16_f32 v{57+2*m}, v{O[m]+2}, v{O[m]+3}")
    a(f"""v_lshrrev_b32 v165, 5, v0
s_mov_b32 s3, {OH_TILE}
v_mul_lo_u32 v165, v165, s3
v_and_b32 v166, 31, v0
v_lshlrev_b32 v166, 4, v166
v_add_u32 v165, v165, v166
s_lshl_b32 s3, s50, 2
s_lshl_b32 s61, s48, 1
s_add_u32 s3, s3, s61
s_mul_i32 s3, s3, 144
s_lshl_b32 s61, s51, 2
s_add_u32 s3, s3, s61
s_add_u32 s3, s3, s47
s_lshl_b32 s3, s3, 10
s_add_u32 s3, s3, {OH}
buffer_store_dwordx4 v[56:59], v165, s[32:35], s3 offen
buffer_store_dwordx4 v[60:63], v165, s[32:35], s3 offen offset:512
s_branch ep_end
ep_B:""")
    for j in range(5): ffn_store(a, j, 184 + 4*j)
    a("ep_end:")
    st("stores_issued")
    a("s_waitcnt vmcnt(0)")

def gen_k1(P):
    a = A()
    st = Stamps(a, 255, 1)
    a("s_cmp_ge_u32 s2, 256\ns_cbranch_scc1 k1_done")
    st("real0", True); st("start")
    k1_prologue(a)
    st("karg")
    k1_tables_load(a)
    k1_addr_setup(a)
    a("s_cmp_lg_u32 s48, 0\ns_cbranch_scc1 pr_h1")
    for k, g in enumerate([dma_w, dma_x, dma_w, dma_x]):
        for x in g(a, f"p0{k}"): a(x)
    a("s_branch pr_d\npr_h1:")
    for k, g in enumerate([dma_x, dma_w, dma_x, dma_w]):
        for x in g(a, f"p1{k}"): a(x)
    a("pr_d:")
    st("dma_issued")
    for r in list(range(16, 100)): a(f"v_mov_b32 v{r}, 0")
    a("s_waitcnt vmcnt(14)")
    k1_tables_store(a)
    a("s_mov_b32 s72, 0\ns_mov_b32 s74, 0\ns_mov_b32 s41, 0")
    a("s_waitcnt lgkmcnt(0)\ns_waitcnt vmcnt(7)\ns_barrier")
    st("B0")
    a("s_cmp_lg_u32 s48, 0\ns_cbranch_scc1 b0_h1")
    for x in dma_w(a, "b00"): a(x)
    a("s_branch b0_d\nb0_h1:")
    for x in dma_x(a, "b01"): a(x)
    a("b0_d:")
    for x in frag_reads(0, 0, 0) + halo_reads(0): a(x)
    a("k1_loop:")
    if PROF:
        a("s_memtime s[100:101]\ns_waitcnt lgkmcnt(0)\ns_add_u32 m0, s41, 16\nv_writelane_b32 v255, s100, m0")
    phase_even(a, "e0", 1, w_advance(), "s_waitcnt vmcnt(7)")
    a("s_cmp_ge_u32 s41, 6\ns_cbranch_scc1 o1_n\ns_cmp_lg_u32 s48, 0\ns_cbranch_scc1 o1_w")
    phase_odd(a, "o1x", "X", 2, 1)
    a("s_branch o1_d\no1_w:")
    phase_odd(a, "o1w", "W", 2, 1)
    a("s_branch o1_d\no1_n:")
    phase_odd(a, "o1n", "N", 2, 1)
    a("o1_d:")
    phase_even(a, "e1", 3, w_advance() + x_advance(),
               "s_cmp_ge_u32 s41, 6\ns_cbranch_scc1 e1_v0\ns_waitcnt vmcnt(7)\ns_branch e1_v1\ne1_v0:\ns_waitcnt vmcnt(0)\ne1_v1:")
    a("s_cmp_ge_u32 s41, 5\ns_cbranch_scc1 o3_n\ns_cmp_lg_u32 s48, 0\ns_cbranch_scc1 o3_x")
    phase_odd(a, "o3w", "W", 0, 0)
    a("s_branch o3_d\no3_x:")
    phase_odd(a, "o3x", "X", 0, 0)
    a("s_branch o3_d\no3_n:")
    phase_odd(a, "o3n", "N", 0, 0)
    a("o3_d:\ns_add_u32 s41, s41, 1\ns_cmp_lt_u32 s41, 8\ns_cbranch_scc1 k1_loop")
    a("s_waitcnt lgkmcnt(0)")
    st("loop_end")
    k1_epilogue(a, st)
    st("end"); st("real1", True); st.dump(46, 254)
    a("k1_done:\ns_endpgm")
    finish(P, "k1_kernel", a, 256, LDS1)


REG2 = 36864
LDS2 = 4 * REG2
def gen_k2(P):
    a = A()
    a("s_cmp_ge_u32 s2, 256\ns_cbranch_scc1 k2_done")
    st = Stamps(a, 1, 2)
    a.srd(4, 0, XB); a.srd(8, 48, WD_B); a.srd(12, 16, WO_B); a.srd(16, 72, WS_USED); a.srd(20, 56, XB)
    a("""v_lshrrev_b32 v1, 6, v0
v_readfirstlane_b32 s46, v1
s_and_b32 s24, s2, 7
s_lshr_b32 s25, s2, 3
s_lshl_b32 s26, s24, 2
s_and_b32 s27, s25, 3
s_add_u32 s26, s26, s27
s_lshr_b32 s27, s25, 2
s_and_b32 s47, s46, 3
s_lshr_b32 s48, s46, 2""")
    st("real0", True); st("start")
    a("""v_lshrrev_b32 v2, 3, v0
v_and_b32 v3, 15, v2
v_lshlrev_b32 v3, 1, v3
v_bfe_u32 v4, v2, 4, 1
v_add_u32 v3, v3, v4
v_and_b32 v4, 32, v2
v_add_u32 v3, v3, v4
s_lshl_b32 s3, s26, 6
v_add_u32 v3, s3, v3
v_lshlrev_b32 v3, 10, v3
v_and_b32 v4, 7, v0
v_lshlrev_b32 v5, 4, v4
v_add_u32 v3, v3, v5
s_lshl_b32 s3, s27, 7
v_add_u32 v11, s3, v3
v_lshlrev_b32 v5, 8, v2
v_lshlrev_b32 v4, 1, v4
v_and_b32 v6, 15, v2
v_xor_b32 v4, v4, v6
v_lshlrev_b32 v4, 4, v4
v_add_u32 v10, v5, v4
v_and_b32 v0, 63, v0""")
    a("""v_lshrrev_b32 v2, 3, v0
s_lshl_b32 s3, s48, 3
v_add_u32 v2, s3, v2
v_lshlrev_b32 v2, 10, v2
v_and_b32 v3, 7, v0
v_bfe_u32 v4, v0, 4, 1
v_lshlrev_b32 v4, 2, v4
v_xor_b32 v3, v3, v4
v_lshlrev_b32 v3, 4, v3
v_add_u32 v2, v2, v3
s_lshl_b32 s3, s27, 7
v_add_u32 v9, s3, v2""")
    a(f"""v_lshrrev_b32 v2, 5, v0
v_lshlrev_b32 v2, 2, v2
v_bfe_u32 v3, v0, 2, 2
v_add_u32 v2, v2, v3
v_lshlrev_b32 v2, 7, v2
v_and_b32 v3, 2, v3
v_bfe_u32 v4, v0, 4, 1
v_xor_b32 v3, v3, v4
v_lshlrev_b32 v3, 5, v3
v_add_u32 v2, v2, v3
v_and_b32 v3, 3, v0
v_lshlrev_b32 v3, 3, v3
v_add_u32 v2, v2, v3
s_mul_i32 s28, s47, {REG2}
v_add_u32 v7, s28, v2
v_xor_b32 v8, 64, v7
v_lshlrev_b32 v6, 4, v0
s_lshl_b32 s3, s48, 10
s_add_u32 s29, s28, s3""")
    a(f"""s_mul_i32 s30, s47, {28*16*1024}
s_mul_i32 s31, s47, {8*16*1024}
s_lshl_b32 s3, s26, 1
s_add_u32 s3, s3, s48
s_mul_i32 s3, s3, 144
s_mul_i32 s33, s47, 28
s_add_u32 s33, s33, s3
s_add_u32 s33, s33, 32
s_lshl_b32 s33, s33, 10
s_add_u32 s33, s33, {OH}
s_lshl_b32 s34, s47, 3
s_add_u32 s34, s34, s3
s_lshl_b32 s34, s34, 10
s_add_u32 s34, s34, {OH}
s_waitcnt lgkmcnt(0)
buffer_load_dwordx4 v[12:15], v11, s[4:7], 0 offen""")
    def w2_piece(sig):
        slot = sig % 18
        if sig < 28:
            return f"s_add_u32 m0, s29, {2048*slot}\nbuffer_load_dwordx4 v9, s[8:11], s30 offen lds\ns_add_u32 s30, s30, {16*1024}"
        return f"s_add_u32 m0, s29, {2048*slot}\nbuffer_load_dwordx4 v9, s[12:15], s31 offen lds\ns_add_u32 s31, s31, {16*1024}"
    OHR = 192
    def oh_load(sig):
        d = OHR + 4 * (sig % 16)
        sreg = 33 if sig < 28 else 34
        return f"buffer_load_dwordx4 v[{d}:{d+3}], v6, s[16:19], s{sreg} offen\ns_add_u32 s{sreg}, s{sreg}, 1024"
    for sig in range(18): a(w2_piece(sig))
    for sig in range(16): a(oh_load(sig))
    st("issued")
    for r in range(16, 48): a(f"v_mov_b32 v{r}, 0")
    a("s_waitcnt vmcnt(16)\ns_barrier")
    st("r1_landed")
    W2R = 48
    for sig in range(18):
        for nt in range(2):
            for i in range(2):
                d = W2R + 8*sig + 4*nt + 2*i
                a(f"ds_read_b64_tr_b16 v[{d}:{d+1}], v{7+nt} offset:{2048*sig + 1024*i}")
    a("s_waitcnt lgkmcnt(0)\ns_barrier")
    st("r1_regs")
    for sig in range(18, 36): a(w2_piece(sig))
    st("r2_issued")
    def lds_frags(sig):
        b = W2R + 8 * (sig % 2)
        return [f"ds_read_b64_tr_b16 v[{b+4*nt+2*i}:{b+4*nt+2*i+1}], v{7+nt} offset:{2048*(sig-18) + 1024*i}" for nt in range(2) for i in range(2)]
    for sig in range(36):
        if sig < 16: vm = 33
        else: vm = min(15, 35 - sig)
        if sig == 17:
            pass
        a(f"s_waitcnt vmcnt({vm})")
        if sig == 17:
            a("s_barrier")
            for x in lds_frags(18): a(x)
        if sig in (1, 9, 17, 18, 27, 35): st(f"step{sig}")
        if sig >= 18:
            a("s_waitcnt lgkmcnt(0)")
        b = W2R + 8*sig if sig < 18 else W2R + 8 * (sig % 2)
        o = OHR + 4 * (sig % 16)
        a(f"v_mfma_f32_32x32x16_bf16 v[16:31], v[{b}:{b+3}], v[{o}:{o+3}], v[16:31]")
        if sig >= 18 and sig + 1 < 36:
            for x in lds_frags(sig + 1): a(x)
        a(f"v_mfma_f32_32x32x16_bf16 v[32:47], v[{b+4}:{b+7}], v[{o}:{o+3}], v[32:47]")
        if sig + 16 < 36: a(oh_load(sig + 16))
    st("loop_end")
    a(f"""s_barrier
v_and_b32 v2, 31, v0
s_lshl_b32 s3, s48, 5
v_add_u32 v2, s3, v2
v_lshlrev_b32 v3, 8, v2
v_and_b32 v2, 15, v2
v_lshrrev_b32 v4, 5, v0
v_xor_b32 v2, v2, v4
v_lshlrev_b32 v2, 4, v2
v_add_u32 v3, v3, v2
s_lshl_b32 s3, s47, 14
v_add_u32 v3, s3, v3""")
    for nt in range(2):
        for qq in range(4):
            a(f"v_xor_b32 v2, {128*nt + 32*qq}, v3\nds_write_b128 v2, v[{16+16*nt+4*qq}:{19+16*nt+4*qq}]")
    a("s_waitcnt lgkmcnt(0)\ns_barrier\nv_xor_b32 v9, 16, v10")
    for kq in range(4):
        a(f"ds_read_b128 v[{48+8*kq}:{51+8*kq}], v10 offset:{16384*kq}\nds_read_b128 v[{52+8*kq}:{55+8*kq}], v9 offset:{16384*kq}")
    for i in range(4):
        a(f"v_lshlrev_b32 v{80+2*i}, 16, v{12+i}\nv_and_b32 v{81+2*i}, 0xffff0000, v{12+i}")
    a("s_waitcnt lgkmcnt(0)")
    for i in range(8):
        a(f"v_add_f32 v{48+i}, v{48+i}, v{56+i}\nv_add_f32 v{64+i}, v{64+i}, v{72+i}")
    for i in range(8):
        a(f"v_add_f32 v{48+i}, v{48+i}, v{64+i}\nv_add_f32 v{48+i}, v{48+i}, v{80+i}")
    for i in range(4): a(f"v_cvt_pk_bf16_f32 v{88+i}, v{48+2*i}, v{49+2*i}")
    a("buffer_store_dwordx4 v[88:91], v11, s[20:23], 0 offen\ns_waitcnt vmcnt(0)")
    st("end"); st("real1", True); st.dump(46, 2)
    a("k2_done:\ns_endpgm")
    finish(P, "k2_kernel", a, 256, LDS2)

if __name__ == "__main__":
    if len(sys.argv) > 3 and sys.argv[3] == "prof": PROF = True
    P = Prog()
    gen_k0(P)
    if len(sys.argv) > 2 and int(sys.argv[2]) >= 1: gen_k1(P)
    if len(sys.argv) > 2 and int(sys.argv[2]) >= 2: gen_k2(P)
    open(sys.argv[1], "w").write(P.render())
```

```python
import sys; sys.path.insert(0, "work")
from asmlib import *
import hazard, gen1
from gen1 import Stamps, wave_allreduce_add, DPPM
import os

OPT = dict(fstats=0, nb=2, prio=3, fuse2=0)
for kv in os.environ.get("OPT", "").split(","):
    if "=" in kv:
        k, v = kv.split("="); OPT[k] = int(v)

STATS = 0
OH = 65536
OH_TILE = 144 * 1024
WS_USED = OH + 64 * OH_TILE
XB = 2048 * 1024
WQKV_B = 512 * 3072
WG_B = 512 * 3584
WO_B = 512 * 1024
WD_B = 1792 * 1024

WST = 20480
XRING = 102400; XST = 18432
TAB = 157696
CST = TAB; RST = TAB + 2560
LDS1 = 163840
REG2 = 36864
QOFF = 20480; KOFF = 25600; VOFF = 30720

S_X, S_QKV, S_G, S_U, S_WS, S_DBG, S_WD, S_WO, S_OUT = 4, 8, 12, 16, 20, 24, 28, 32, 36
def srd(n): return f"s[{n}:{n+3}]"

class VM:
    def __init__(self): self.q = []
    def issue(self, tag): self.q.append(tag)
    def wait(self, *tags):
        idx = [i for i, t in enumerate(self.q) if t in tags]
        if not idx: return None
        n = len(self.q) - 1 - max(idx)
        assert n <= 63, n
        return f"s_waitcnt vmcnt({n})"

VT = [2, 3, 4, 5, 6]; VTH = [7, 8, 9, 10, 11]; VX = [12, 13, 14, 15]; VC = [16, 17, 18, 19, 20]; VR = 21; VL16 = 22; VSTAMP = 23
FA = [32, 60]; FB = [52, 80]
def ACC(rt, j): return 96 + 80 * rt + 16 * j

def prologue(a):
    for (s, off) in ((S_X, 0), (S_QKV, 8), (S_G, 32), (S_U, 40), (S_WS, 72), (S_DBG, 64), (S_WD, 48), (S_WO, 16), (S_OUT, 56)):
        a(f"s_load_dwordx2 s[{s}:{s+1}], s[0:1], {off}")
    a("""v_lshrrev_b32 v1, 6, v0
v_and_b32 v0, 63, v0
s_and_b32 s60, s2, 7
s_lshr_b32 s61, s2, 3
v_readfirstlane_b32 s46, v1
s_lshr_b32 s50, s60, 2
s_lshl_b32 s50, s50, 3
s_and_b32 s62, s61, 7
s_add_u32 s50, s50, s62
s_and_b32 s52, s60, 3
s_lshl_b32 s52, s52, 2
s_lshr_b32 s62, s61, 3
s_add_u32 s52, s52, s62
s_lshr_b32 s48, s52, 3
s_and_b32 s51, s52, 7
s_and_b32 s47, s46, 3""")
    for (s, nb) in ((S_X, XB), (S_QKV, WQKV_B), (S_G, WG_B), (S_U, WG_B), (S_WS, WS_USED), (S_DBG, 256), (S_WD, WD_B), (S_WO, WO_B), (S_OUT, XB)):
        a(f"s_mov_b32 s{s+2}, {nb}\ns_mov_b32 s{s+3}, 0x00020000")
    a("""s_mul_i32 s74, s51, 160
s_add_u32 s74, s74, 512
s_and_b32 s75, s51, 1
s_lshl_b32 s76, s75, 5
s_add_u32 s76, s76, s74
s_add_u32 s95, s74, 128
s_cmp_lg_u32 s75, 0
s_cselect_b32 s95, s74, s95""")

def prod_setup_common(a):
    a("""v_lshrrev_b32 v58, 3, v0
s_lshl_b32 s3, s47, 3
v_add_u32 v56, s3, v58
v_and_b32 v57, 7, v0
v_bfe_u32 v59, v0, 4, 1
v_lshlrev_b32 v59, 2, v59
v_xor_b32 v57, v57, v59
s_and_b32 s3, s47, 1
s_lshl_b32 s3, s3, 1
v_xor_b32 v57, s3, v57
v_lshlrev_b32 v57, 4, v57
s_lshl_b32 s43, s47, 10
s_lshl_b32 s44, s47, 12
s_lshl_b32 s45, s47, 9
s_mov_b32 s53, 0x3f803f80""")
    a("""s_lshl_b32 s3, s50, 7
s_lshl_b32 s60, s47, 5
s_add_u32 s3, s3, s60
v_lshlrev_b32 v59, 1, v58
v_add_u32 v59, s3, v59
v_lshlrev_b32 v59, 10, v59
v_and_b32 v60, 7, v0
v_lshrrev_b32 v61, 4, v0
v_xor_b32 v60, v60, v61
v_lshlrev_b32 v60, 4, v60
v_add_u32 v6, v59, v60
v_xor_b32 v60, 64, v60
v_add_u32 v7, v59, v60
v_add_u32 v7, 0x4000, v7""")
    a(f"""v_lshrrev_b32 v58, 4, v0
v_bfe_u32 v59, v0, 2, 2
v_lshlrev_b32 v60, 3, v58
v_add_u32 v60, v60, v59
v_lshlrev_b32 v60, 7, v60
v_and_b32 v61, 3, v0
v_lshlrev_b32 v61, 3, v61
v_add_u32 v60, v60, v61
v_and_b32 v61, 2, v59
v_and_b32 v62, 1, v58
v_xor_b32 v61, v61, v62
v_xor_b32 v61, s47, v61
v_lshlrev_b32 v61, 5, v61
v_add_u32 v9, v60, v61
v_add_u32 v10, {3*WST}, v9""")

def prod_stats_addr(a, T):
    a(f"""s_lshl_b32 s3, s50, 7
s_lshl_b32 s60, s47, 6
s_add_u32 s61, s3, s60
v_add_u32 v14, s61, v0
v_lshlrev_b32 v14, 3, v14
v_add_u32 v15, s60, v0
v_lshlrev_b32 v15, 3, v15
v_add_u32 v15, {RST}, v15
s_cmp_lt_u32 s47, 2
s_cbranch_scc1 psa_done{T}
v_and_b32 v58, 7, v0
v_bfe_u32 v59, v0, 3, 1
v_lshlrev_b32 v59, 4, v59
v_add_u32 v58, v58, v59
s_sub_u32 s3, s3, 24
v_add_u32 v14, s3, v58
v_lshlrev_b32 v14, 3, v14
v_and_b32 v15, 15, v0
v_lshlrev_b32 v15, 3, v15
v_add_u32 v15, {RST + 128*8}, v15
s_cmp_lg_u32 s50, 0
s_cbranch_scc1 psa_done{T}
v_mov_b32 v14, 0x80000000
psa_done{T}:""")

def prod_poll_addr(a, T):
    a("""s_lshl_b32 s3, s50, 4
v_lshlrev_b32 v13, 2, v0
v_add_u32 v13, s3, v13
v_mov_b32 v21, 0
v_cmp_lt_u32 vcc, 3, v0""")
    if T == "A":
        a(f"""s_sub_u32 s60, s3, 4
s_cmp_eq_u32 s50, 0
s_cselect_b32 s60, s3, s60
s_movk_i32 s61, 0x0101
s_cselect_b32 s61, 0x01010101, s61
v_mov_b32 v58, s60
v_cndmask_b32 v13, v13, v58, vcc
v_mov_b32 v58, s61
v_cndmask_b32 v21, v21, v58, vcc""")
    else:
        a("""v_mov_b32 v58, s3
v_cndmask_b32 v13, v13, v58, vcc""")

def producer(a, T, st):
    vm = VM()
    A_ = T == "A"
    if A_:
        a("""s_movk_i32 s60, 3072
v_mul_lo_u32 v58, v56, s60
s_lshl_b32 s3, s51, 7
v_add_u32 v58, s3, v58
v_add_u32 v2, v58, v57
s_movk_i32 s60, 3584
v_mul_lo_u32 v58, v56, s60
v_add_u32 v58, s3, v58
v_add_u32 v3, v58, v57
v_xor_b32 v57, 32, v57
v_add_u32 v4, v58, v57""")
        a(f"""s_lshr_b32 s3, s47, 1
s_lshl_b32 s60, s50, 7
s_add_u32 s3, s3, s60
s_sub_u32 s3, s3, 16
s_and_b32 s60, s47, 1
s_lshl_b32 s60, s60, 3
s_add_u32 s3, s3, s60
v_lshrrev_b32 v58, 3, v0
v_lshlrev_b32 v58, 1, v58
v_add_u32 v58, s3, v58
v_lshlrev_b32 v58, 10, v58
v_and_b32 v59, 7, v0
v_lshrrev_b32 v60, 4, v0
v_xor_b32 v59, v59, v60
s_lshl_b32 s60, s47, 1
v_xor_b32 v59, s60, v59
v_and_b32 v59, 7, v59
v_lshlrev_b32 v59, 4, v59
v_add_u32 v8, v58, v59
s_cmp_lg_u32 s50, 0
s_cbranch_scc1 pA_hok
v_mov_b32 v8, 0x80000000
pA_hok:
v_and_b32 v58, 15, v0
v_lshrrev_b32 v59, 1, v58
v_lshrrev_b32 v60, 4, v0
v_xor_b32 v59, v59, v60
v_lshlrev_b32 v59, 4, v59
v_lshlrev_b32 v58, 7, v58
v_add_u32 v58, v58, v59
v_add_u32 v11, {XRING + 128*128}, v58
v_xor_b32 v12, 64, v11
s_mov_b32 s58, -1
s_mov_b32 s59, 0""")
    else:
        a("""s_movk_i32 s60, 3584
v_mul_lo_u32 v58, v56, s60
s_lshl_b32 s3, s76, 1
v_add_u32 v59, s3, v58
v_add_u32 v2, v59, v57
v_xor_b32 v60, 32, v57
v_add_u32 v3, v59, v60
s_lshl_b32 s3, s95, 1
v_add_u32 v59, s3, v58
v_and_b32 v57, 48, v57
v_and_b32 v60, 48, v60
v_add_u32 v4, v59, v57
v_add_u32 v5, v59, v60
v_bfe_u32 v58, v0, 2, 1
v_bfe_u32 v59, v0, 4, 1
v_xor_b32 v58, v58, v59
v_cmp_eq_u32 vcc, 0, v58
s_mov_b64 s[54:55], vcc
v_cmp_eq_u32 vcc, 1, v58
s_mov_b64 s[56:57], vcc""")
    def W(s):
        base = (s % 5) * WST
        if A_:
            a(f"s_mov_b32 s40, {s*98304}\ns_mov_b32 s41, {s*114688}")
            lst = [(2, S_QKV, 40, 0), (2, S_QKV, 40, 1024), (2, S_QKV, 40, 2048), (3, S_G, 41, 0), (4, S_U, 41, 0)]
        else:
            a(f"s_mov_b32 s41, {s*114688}")
            lst = [(2, S_G, 41, 0), (2, S_G, 41, 128), (3, S_U, 41, 0), (3, S_U, 41, 128)]
        for sig, (v, sr, so, imm) in enumerate(lst):
            a(f"s_add_u32 m0, s43, {base + sig*4096 - imm}")
            a(f"buffer_load_dwordx4 v{v}, {srd(sr)}, s{so} offen offset:{imm} lds"); vm.issue(("W", s))
        if not A_:
            a(f"s_add_u32 m0, s43, {base + 4*4096}\ns_mov_b64 exec, s[54:55]")
            a(f"buffer_load_dwordx4 v4, {srd(S_G)}, s41 offen lds"); vm.issue(("W", s))
            a("s_mov_b64 exec, s[56:57]")
            a(f"buffer_load_dwordx4 v5, {srd(S_U)}, s41 offen lds"); vm.issue(("W", s))
            a("s_mov_b64 exec, -1")
    def X(g):
        xs = XRING + (g % 3) * XST
        a(f"s_mov_b32 s42, {128*g}")
        for par in range(2):
            for half in range(2):
                a(f"s_add_u32 m0, s44, {xs + 2048*par + 1024*half - 1024*par}")
                a(f"buffer_load_dwordx4 v{6+half}, {srd(S_X)}, s42 offen offset:{1024*par} lds"); vm.issue(("X", g))
        if A_:
            a(f"s_add_u32 m0, s45, {xs + 16384}\ns_mov_b64 exec, s[58:59]")
            a(f"buffer_load_dwordx4 v8, {srd(S_X)}, s42 offen lds"); vm.issue(("X", g))
            a("s_mov_b64 exec, -1")
    a("s_waitcnt lgkmcnt(0)")
    st("karg")
    W(0); X(0); W(1); X(1); W(2); W(3); X(2); W(4)
    st("dma_issued")
    prod_stats_addr(a, T)
    if OPT["fstats"]: prod_poll_addr(a, T)
    for r in list(range(16, 21)) + (list(range(24, 32)) if A_ else []): a(f"v_mov_b32 v{r}, 0")
    a(vm.wait(("W", 0), ("X", 0)))
    a("s_barrier")
    st("Pm1")
    for s in range(16):
        if s >= 1:
            if s + 4 < 16: W(s + 4)
            if (s - 1) & 1:
                g = (s - 2) // 2 + 3
                if g < 8: X(g)
        if OPT["fstats"]:
            if s == 3:
                a(f"""s_cmp_lg_u32 s47, 0
s_cbranch_scc1 pf_skip{T}
s_mov_b64 exec, 1
v_mov_b32 v58, 1
v_mov_b32 v59, s52
s_lshl_b32 s3, s50, 4
buffer_store_byte v58, v59, {srd(S_DBG)}, s3 offen sc1
s_mov_b64 exec, -1
pf_skip{T}:""")
            if s == 9:
                a(f"buffer_load_dword v22, v13, {srd(S_DBG)}, 0 offen sc1"); vm.issue("poll")
        slot = s % 5
        vb, off0 = (9, slot * WST) if slot < 3 else (10, (slot - 3) * WST)
        for sig in range(5):
            for i in range(2):
                d = 32 + 4 * sig + 2 * i
                a(f"ds_read_b64_tr_b16 v[{d}:{d+1}], v{vb} offset:{off0 + sig*4096 + 512*i}")
        if A_:
            a(f"ds_read_b128 v[52:55], v{11 + (s & 1)} offset:{((s >> 1) % 3) * XST}")
        if s == 12:
            if OPT["fstats"]:
                a(vm.wait("poll"))
                a(f"""s_mov_b32 s60, 0
pp_spin{T}:
v_or_b32 v58, v22, v21
v_lshrrev_b32 v59, 1, v58
v_or_b32 v58, v58, v59
v_and_b32 v58, 0x01010101, v58
v_cmp_ne_u32 vcc, 0x01010101, v58
s_cbranch_vccz pp_ok{T}
s_add_u32 s60, s60, 1
s_cmp_ge_u32 s60, 0x8000
s_cbranch_scc1 pp_ok{T}
s_sleep 4
buffer_load_dword v22, v13, {srd(S_DBG)}, 0 offen sc1
s_waitcnt vmcnt(0)
s_branch pp_spin{T}
pp_ok{T}:""")
                a(f"buffer_load_dwordx2 v[56:57], v14, {srd(S_WS)}, 0 offen sc1"); vm.issue("stats")
            else:
                a(f"buffer_load_dwordx2 v[56:57], v14, {srd(S_WS)}, 0 offen"); vm.issue("stats")
        a("s_waitcnt lgkmcnt(0)")
        for d in range(4):
            for sig in range(5):
                a(f"v_dot2c_f32_bf16 v{16+sig}, s53, v{32+4*sig+d}")
            if A_ and d == 0:
                a("v_mfma_f32_16x16x32_bf16 v[24:27], v[36:39], v[52:55], v[24:27]")
            if A_ and d == 2:
                a("v_mfma_f32_16x16x32_bf16 v[28:31], v[40:43], v[52:55], v[28:31]")
        if s == 13:
            a(vm.wait("stats"))
            a("ds_write_b64 v15, v[56:57]")
        if s == 15:
            a("""v_permlane32_swap_b32 v16, v18
v_permlane32_swap_b32 v17, v19
v_mov_b32 v58, v20
v_add_f32 v16, v16, v18
v_add_f32 v17, v17, v19
v_permlane32_swap_b32 v20, v58
v_add_f32 v20, v20, v58
v_permlane16_swap_b32 v16, v17
v_mov_b32 v58, v20
v_add_f32 v16, v16, v17
v_permlane16_swap_b32 v20, v58
v_add_f32 v20, v20, v58""")
            for (x, t) in ((16, 60), (20, 66)):
                a(f"""v_cvt_pk_bf16_f32 v{t}, v{x}, v{x}
v_and_b32 v{t+2}, 0xffff0000, v{t}
v_sub_f32 v{x}, v{x}, v{t+2}
v_cvt_pk_bf16_f32 v{t+3}, v{x}, v{x}
v_and_b32 v{t+2}, 0xffff0000, v{t+3}
v_sub_f32 v{x}, v{x}, v{t+2}
v_cvt_pk_bf16_f32 v{t+1}, v{x}, v{x}
v_and_b32 v{t}, 0xffff, v{t}
v_or_b32 v{t}, v{t}, v{t+2}
v_and_b32 v{t+1}, 0xffff, v{t+1}""")
            a(f"""v_and_b32 v58, 15, v0
v_lshlrev_b32 v58, 3, v58
s_lshl_b32 s3, s47, 7
s_add_u32 s3, s3, {CST}
v_add_u32 v58, s3, v58
v_lshrrev_b32 v59, 4, v0
v_lshlrev_b32 v59, 9, v59
v_add_u32 v59, v59, v58
ds_write_b64 v59, v[60:61]
ds_write_b64 v58, v[66:67] offset:2048
s_waitcnt lgkmcnt(0)""")
        need = []
        if s + 1 < 16: need.append(("W", s + 1))
        if (s & 1) and (s + 1) // 2 < 8: need.append(("X", (s + 1) // 2))
        w = vm.wait(*need) if need else None
        if w: a(w)
        if s == 13: a("s_waitcnt lgkmcnt(0)")
        a("s_barrier")
        if s in (0, 3, 7, 11): st(f"P{s}")
    st("P15")
    if A_:
        a(f"""ds_read_b64 v[60:61], v58 offset:512
ds_read_b64 v[62:63], v58 offset:1024
v_and_b32 v59, 15, v0
v_lshlrev_b32 v59, 3, v59
v_add_u32 v59, {RST + 128*8}, v59
ds_read_b64 v[64:65], v59
v_cmp_gt_u32 vcc, 16, v0
v_bfe_u32 v68, v0, 4, 1
v_mul_u32_u24 v68, 2560, v68
v_bfe_u32 v69, v0, 5, 1
v_bfe_u32 v70, v0, 3, 1
v_and_b32 v71, 7, v0
s_mul_i32 s3, s47, {REG2}
s_waitcnt lgkmcnt(0)
v_cndmask_b32 v66, 0, v64, vcc
v_and_b32 v67, 0xffff, v66
v_mfma_f32_16x16x16_bf16 v[24:27], v[60:61], v[66:67], v[24:27]
v_mfma_f32_16x16x16_bf16 v[28:31], v[62:63], v[66:67], v[28:31]
v_lshlrev_b32 v72, 3, v69
v_mul_u32_u24 v73, 1280, v70
v_lshlrev_b32 v74, 4, v71
v_add_u32 v72, v72, v68
v_add_u32 v73, v73, v74
v_add_u32 v72, v72, v73
v_add_u32 v72, s3, v72
v_mul_u32_u24 v73, 1280, v69
v_mul_u32_u24 v74, 640, v70
v_lshlrev_b32 v75, 3, v71
v_add_u32 v73, v73, v68
v_add_u32 v74, v74, v75
v_add_u32 v73, v73, v74
v_add_u32 v73, s3, v73""")
        for q in range(8): a(f"v_mul_f32 v{24+q}, v{24+q}, v65")
        a(f"""v_cvt_pk_bf16_f32 v60, v24, v25
v_cvt_pk_bf16_f32 v61, v26, v27
v_cvt_pk_bf16_f32 v62, v28, v29
v_cvt_pk_bf16_f32 v63, v30, v31
ds_write_b64 v72, v[60:61] offset:{KOFF}
ds_write_b64 v73, v[62:63] offset:{VOFF}
s_waitcnt lgkmcnt(0)
s_branch attn""")
    else:
        a("s_branch p1_done")

def cons_setup(a):
    a("""s_lshr_b32 s49, s47, 1
s_and_b32 s47, s47, 1""")
    a("s_cmp_lg_u32 s48, 0\ns_cbranch_scc1 cs_B")
    a(f"""s_lshl_b32 s83, s49, 6
s_mov_b32 s84, 32
s_add_u32 s85, s83, 4096
s_mov_b32 s86, 32
s_add_u32 s87, s83, 8192
s_mov_b32 s88, 32
s_add_u32 s89, s83, {3*4096}
s_mov_b32 s90, {4096+32}
s_add_u32 s91, s83, {3*4096+32}
s_mov_b32 s92, {4096-32}
s_lshl_b32 s66, s51, 2
s_lshl_b32 s3, s49, 1
s_add_u32 s66, s66, s3
s_add_u32 s66, s66, 32
s_add_u32 s67, s66, 1
s_branch cs_D
cs_B:
s_lshr_b32 s60, s76, 4
s_add_u32 s60, s60, 32
s_lshr_b32 s61, s95, 4
s_add_u32 s61, s61, 32
s_cmp_lg_u32 s49, 0
s_cbranch_scc1 cs_B1""")
    def tiles(lst):
        for j, (sa, ca, sb, cb) in enumerate(lst):
            t0 = sa * 4096 + 32 * ca; t1 = sb * 4096 + 32 * cb
            a(f"s_mov_b32 s{83+2*j}, {t0}\ns_mov_b32 s{84+2*j}, {t1 - t0}")
    tiles([(0,0,2,1),(0,1,2,0),(0,2,2,3),(0,3,2,2),(1,0,3,1)])
    a("s_mov_b32 s63, s60\ns_add_u32 s64, s60, 1\ns_add_u32 s65, s60, 2\ns_add_u32 s66, s60, 3\ns_add_u32 s67, s60, 4\ns_branch cs_D\ncs_B1:")
    tiles([(1,1,3,0),(1,2,3,3),(1,3,3,2),(4,0,4,3),(4,1,4,2)])
    a("s_add_u32 s63, s60, 5\ns_add_u32 s64, s60, 6\ns_add_u32 s65, s60, 7\ns_mov_b32 s66, s61\ns_add_u32 s67, s61, 1\ncs_D:")
    a(f"""v_lshrrev_b32 v24, 5, v0
v_bfe_u32 v25, v0, 2, 2
v_lshlrev_b32 v26, 3, v24
v_add_u32 v26, v26, v25
v_lshlrev_b32 v26, 7, v26
v_and_b32 v27, 3, v0
v_lshlrev_b32 v27, 3, v27
v_add_u32 v26, v26, v27
v_and_b32 v27, 2, v25
v_xor_b32 v27, v27, v24
v_lshlrev_b32 v27, 5, v27
v_bfe_u32 v28, v0, 4, 1
v_and_b32 v29, 15, v0
v_lshlrev_b32 v29, 3, v29
v_add_u32 v29, {CST}, v29""")
    for j in range(5):
        a(f"""v_mul_lo_u32 v30, v28, s{84+2*j}
v_add_u32 v30, s{83+2*j}, v30
v_xor_b32 v31, v30, v27
v_add_u32 v{VT[j]}, v31, v26
v_add_u32 v{VTH[j]}, {4*WST}, v{VT[j]}
v_lshrrev_b32 v31, 12, v30
v_lshlrev_b32 v31, 9, v31
v_and_b32 v30, 0x60, v30
v_lshlrev_b32 v30, 2, v30
v_add_u32 v30, v30, v31
v_add_u32 v{VC[j]}, v30, v29""")
    a(f"""v_and_b32 v25, 31, v0
s_lshl_b32 s3, s47, 6
v_add_u32 v25, s3, v25
v_lshlrev_b32 v{VR}, 3, v25
v_add_u32 v{VR}, {RST}, v{VR}
v_bfe_u32 v26, v25, 1, 3
v_xor_b32 v26, v26, v24
v_lshlrev_b32 v26, 4, v26
v_lshlrev_b32 v25, 7, v25
v_add_u32 v25, v25, v26
v_add_u32 v{VX[0]}, {XRING}, v25
v_xor_b32 v{VX[1]}, 32, v{VX[0]}
v_xor_b32 v{VX[2]}, 64, v{VX[0]}
v_xor_b32 v{VX[3]}, 96, v{VX[0]}
v_lshlrev_b32 v{VL16}, 4, v0""")

def cons_stats(a):
    a("s_waitcnt vmcnt(0)")
    for r in range(2):
        for i in range(4):
            a(f"v_lshlrev_b32 v{40+8*r+2*i}, 16, v{32+4*r+i}\nv_and_b32 v{41+8*r+2*i}, 0xffff0000, v{32+4*r+i}")
    for r in range(2):
        b = 40 + 8 * r; s = 56 + 4 * r
        a(f"v_add_f32 v{s}, v{b}, v{b+1}\nv_add_f32 v{s+1}, v{b+2}, v{b+3}\nv_add_f32 v{s+2}, v{b+4}, v{b+5}\nv_add_f32 v{s+3}, v{b+6}, v{b+7}")
    for r in range(2):
        s = 56 + 4 * r
        a(f"v_add_f32 v{s}, v{s}, v{s+1}\nv_add_f32 v{s+2}, v{s+2}, v{s+3}")
    for r in range(2):
        s = 56 + 4 * r
        a(f"v_add_f32 v{s}, v{s}, v{s+2}")
    def allred2(r0, r1, t0, t1):
        for m in ("quad_perm:[1,0,3,2]", "quad_perm:[2,3,0,1]", "row_half_mirror", "row_mirror"):
            a(f"v_add_f32_dpp v{r0}, v{r0}, v{r0} {m} {DPPM}\nv_add_f32_dpp v{r1}, v{r1}, v{r1} {m} {DPPM}\ns_nop 0")
        for sw in ("16", "32"):
            a(f"v_mov_b32 v{t0}, v{r0}\nv_mov_b32 v{t1}, v{r1}\ns_nop 0\nv_permlane{sw}_swap_b32 v{r0}, v{t0}\nv_permlane{sw}_swap_b32 v{r1}, v{t1}")
            a(f"v_add_f32 v{r0}, v{r0}, v{t0}\nv_add_f32 v{r1}, v{r1}, v{t1}")
    allred2(56, 60, 64, 65)
    a("v_mul_f32 v56, 0x3b000000, v56\nv_mul_f32 v60, 0x3b000000, v60")
    for i in range(8):
        for r in range(2):
            b = 40 + 8 * r; s = 56 + 4 * r
            a(f"v_sub_f32 v{b+i}, v{b+i}, v{s}")
    for i in range(8):
        for r in range(2):
            b = 40 + 8 * r; s = 56 + 4 * r
            if i == 0: a(f"v_mul_f32 v{s+1}, v{b}, v{b}")
            else: a(f"v_fma_f32 v{s+1}, v{b+i}, v{b+i}, v{s+1}")
    allred2(57, 61, 64, 65)
    a("""v_cmp_eq_u32 vcc, 1, v0
v_cndmask_b32 v48, v56, v60, vcc
v_cndmask_b32 v49, v57, v61, vcc
v_mul_f32 v49, 0x3b000000, v49
v_cvt_pk_bf16_f32 v48, v48, v48
v_cvt_pk_bf16_f32 v49, v49, v49
v_xor_b32 v48, 0x80008000, v48
v_and_b32 v49, 0xffff0000, v49
v_add_f32 v49, 0x3727c5ac, v49
v_cvt_pk_bf16_f32 v49, v49, v49
v_and_b32 v49, 0xffff0000, v49
v_sqrt_f32 v49, v49
s_nop 0
v_cvt_pk_bf16_f32 v49, v49, v49
v_and_b32 v49, 0xffff0000, v49
v_rcp_f32 v49, v49
v_lshlrev_b32 v50, 7, v0
s_mov_b64 exec, 3""")
    a(f"buffer_store_dwordx2 v[48:49], v50, {srd(S_WS)}, s62 offen sc1\ns_mov_b64 exec, -1")

def cons_reads(m):
    st = m & 1; s = m >> 1; half = m & 1; g = m >> 2; xs = m & 3; slot = s % 5
    def fa(j):
        v, o = (VT[j], slot * WST) if slot < 4 else (VTH[j], 0)
        return [f"ds_read_b64_tr_b16 v[{FA[st]+4*j+2*i}:{FA[st]+4*j+2*i+1}], v{v} offset:{o + 2048*half + 512*i}" for i in range(2)]
    def fb(rt):
        return [f"ds_read_b128 v[{FB[st]+4*rt}:{FB[st]+4*rt+3}], v{VX[xs]} offset:{(g % 3)*XST + 4096*rt}"]
    return fb(0) + fa(0) + fb(1) + fa(1) + fa(2) + fa(3) + fa(4)

def table_reads():
    r = [f"ds_read_b64 v[{32+2*j}:{33+2*j}], v{VC[j]}" for j in range(5)]
    r += [f"ds_read_b64 v[{42+2*rt}:{43+2*rt}], v{VR} offset:{256*rt}" for rt in range(2)]
    return r

def ffn_tile(a, rt, j):
    b = ACC(rt, j)
    for q in range(4): a(f"v_pk_mul_f32 v[{b+2*q}:{b+2*q+1}], v[{b+2*q}:{b+2*q+1}], v[{b+8+2*q}:{b+9+2*q}]")
    for q in range(4): a(f"v_pk_mul_f32 v[{b+2*q}:{b+2*q+1}], v[{b+2*q}:{b+2*q+1}], v[50:51] op_sel:[0,{rt}] op_sel_hi:[1,{rt}]")
    for q in range(4): a(f"v_cvt_pk_bf16_f32 v{b+8+q}, v{b+2*q}, v{b+2*q+1}")
    sc = " sc1" if OPT["fuse2"] else ""
    a(f"""s_add_u32 s3, s{60+rt}, s{63+j}
s_lshl_b32 s3, s3, 10
s_add_u32 s3, s3, {OH}
buffer_store_dwordx4 v[{b+8}:{b+11}], v{VL16}, {srd(S_WS)}, s3 offen{sc}""")

def consumer(a, st):
    if OPT["fstats"]:
        a("""s_lshl_b32 s60, s50, 7
s_lshl_b32 s61, s52, 3
s_add_u32 s60, s60, s61
s_lshl_b32 s61, s47, 1
s_add_u32 s60, s60, s61
v_lshlrev_b32 v24, 4, v0
s_lshr_b32 s62, s60, 5
s_lshl_b32 s62, s62, 5
s_and_b32 s61, s60, 31
s_lshr_b32 s61, s61, 1
s_add_u32 s62, s62, s61
s_lshl_b32 s62, s62, 3
s_lshl_b32 s60, s60, 10
s_waitcnt lgkmcnt(0)""")
        a(f"buffer_load_dwordx4 v[32:35], v24, {srd(S_X)}, s60 offen\nbuffer_load_dwordx4 v[36:39], v24, {srd(S_X)}, s60 offen offset:1024")
        a("s_mov_b32 s68, s62")
    cons_setup(a)
    if OPT["fstats"]:
        a("s_mov_b32 s62, s68")
        cons_stats(a)
    else:
        a("s_waitcnt lgkmcnt(0)")
    st("setup")
    a("s_barrier")
    st("Pm1")
    if OPT["prio"]: a(f"s_setprio {OPT['prio']}")
    for x in cons_reads(0): a(x)
    for n in range(32):
        cur = n & 1
        rd = cons_reads(n + 1) if n < 31 else table_reads()
        mf = []
        for j in range(5):
            for rt in range(2):
                b = ACC(rt, j)
                c = f"v[{b}:{b+15}]" if n else "0"
                mf.append(f"v_mfma_f32_32x32x16_bf16 v[{b}:{b+15}], v[{FA[cur]+4*j}:{FA[cur]+4*j+3}], v[{FB[cur]+4*rt}:{FB[cur]+4*rt+3}], {c}")
        a("s_waitcnt lgkmcnt(0)")
        k = 0
        if n & 1:
            if n == 5 and OPT["fstats"]: a("s_waitcnt vmcnt(0)")
            for _ in range(OPT["nb"]): a(mf[k]); k += 1
            a("s_barrier")
        else:
            a(mf[k]); k += 1
        per = 4
        i = 0
        while k < 10:
            for x in rd[i:i + per]: a(x)
            i += per
            a(mf[k]); k += 1
        if n in (1, 7, 15, 23): st(f"s{n}")
    st("loop_end")
    if OPT["prio"]: a("s_setprio 0")
    a("""s_waitcnt lgkmcnt(0)
v_cmp_gt_u32 vcc, 32, v0
v_cndmask_b32 v46, 0, v42, vcc
v_cndmask_b32 v48, 0, v44, vcc
v_and_b32 v47, 0xffff, v46
v_and_b32 v49, 0xffff, v48
v_mul_f32 v50, v43, v43
v_mul_f32 v51, v45, v45
s_lshl_b32 s60, s50, 2
s_lshl_b32 s3, s47, 1
s_add_u32 s60, s60, s3
s_mul_i32 s60, s60, 144
s_add_u32 s61, s60, 144""")
    for j in range(5):
        for rt in range(2):
            b = ACC(rt, j)
            a(f"v_mfma_f32_32x32x8_bf16 v[{b}:{b+15}], v[{32+2*j}:{33+2*j}], v[{46+2*rt}:{47+2*rt}], v[{b}:{b+15}]")
    a("s_cmp_lg_u32 s48, 0\ns_cbranch_scc1 ep_B")
    a(f"""v_lshrrev_b32 v24, 5, v0
v_mul_u32_u24 v24, 2560, v24
v_bfe_u32 v25, v0, 4, 1
v_and_b32 v26, 15, v0
s_mul_i32 s3, s49, {2*REG2}
v_mul_u32_u24 v27, 1280, v25
v_lshlrev_b32 v28, 4, v26
v_add_u32 v27, v27, v24
v_add_u32 v27, v27, v28
s_lshl_b32 s62, s47, 9
s_add_u32 s62, s62, s3
s_add_u32 s62, s62, 128
v_add_u32 v27, s62, v27
v_mul_u32_u24 v28, 640, v25
v_lshlrev_b32 v29, 3, v26
v_add_u32 v28, v28, v24
v_add_u32 v28, v28, v29
s_lshl_b32 s62, s47, 8
s_add_u32 s62, s62, s3
s_add_u32 s62, s62, {VOFF + 64}
v_add_u32 v28, s62, v28""")
    for j in range(3):
        for rt in range(2):
            b = ACC(rt, j)
            for q in range(8):
                a(f"v_pk_mul_f32 v[{b+2*q}:{b+2*q+1}], v[{b+2*q}:{b+2*q+1}], v[{42+2*rt}:{43+2*rt}] op_sel:[0,1] op_sel_hi:[1,1]")
            for q in range(8): a(f"v_cvt_pk_bf16_f32 v{b+q}, v{b+2*q}, v{b+2*q+1}")
            for hh in range(2):
                if j < 2:
                    a(f"ds_write_b128 v27, v[{b+4*hh}:{b+4*hh+3}] offset:{(QOFF, KOFF)[j] + REG2*hh + 256*rt}")
                else:
                    for mm in range(2):
                        a(f"ds_write_b64 v28, v[{b+4*hh+2*mm}:{b+4*hh+2*mm+1}] offset:{REG2*hh + 1280*mm + 128*rt}")
    for j in (3, 4):
        for rt in range(2): ffn_tile(a, rt, j)
    a("s_waitcnt lgkmcnt(0)")
    st("staged")

def attention(a, st):
    Q = 24; K = 32; V = 56; S = [80, 84, 88]; T = 92; PP = 96
    a(f"""attn:
s_barrier
s_and_b32 s47, s46, 3
s_lshr_b32 s49, s46, 2
v_lshrrev_b32 v1, 5, v0
s_lshl_b32 s3, s49, 1
v_add_u32 v1, s3, v1
v_lshlrev_b32 v102, 4, v1
v_and_b32 v{T}, 15, v0
v_add_u32 v102, v102, v{T}
v_bfe_u32 v{T+1}, v0, 4, 1
v_mul_u32_u24 v{T+2}, 1280, v{T+1}
v_lshlrev_b32 v103, 4, v102
v_add_u32 v103, v103, v{T+2}
s_mul_i32 s3, s47, {REG2}
v_add_u32 v103, s3, v103""")
    a(f"ds_read_b128 v[{Q}:{Q+3}], v103 offset:{QOFF + 128}\nds_read_b128 v[{Q+4}:{Q+7}], v103 offset:{QOFF + 128 + 2560}")
    for kb in range(3):
        a(f"ds_read_b128 v[{K+8*kb}:{K+8*kb+3}], v103 offset:{KOFF + 64*kb}\nds_read_b128 v[{K+8*kb+4}:{K+8*kb+7}], v103 offset:{KOFF + 64*kb + 2560}")
    a(f"""v_lshlrev_b32 v1, 4, v1
v_and_b32 v{T}, 3, v0
v_lshlrev_b32 v{T}, 2, v{T}
v_add_u32 v1, v1, v{T}
v_bfe_u32 v{T}, v0, 2, 2
v_add_u32 v1, v1, v{T}
v_lshlrev_b32 v1, 3, v1
v_mul_u32_u24 v{T}, 640, v{T+1}
v_add_u32 v1, v1, v{T}
s_add_u32 s3, s3, {VOFF}
v_add_u32 v1, s3, v1""")
    for kb in range(3):
        for m in range(4):
            d = V + 8 * kb + 2 * m
            a(f"ds_read_b64_tr_b16 v[{d}:{d+1}], v1 offset:{1280*m + 32*kb}")
    a(f"""v_mov_b32 v{T}, 0
v_mov_b32 v{T+1}, 0
s_cmp_lg_u32 s50, 0
s_cbranch_scc1 at_nomask
v_mov_b32 v{T+2}, 0xf149f2ca
v_cmp_gt_u32 vcc, 8, v102
v_cndmask_b32 v{T}, 0, v{T+2}, vcc
v_cmp_gt_u32 vcc, 4, v102
v_cndmask_b32 v{T+1}, 0, v{T+2}, vcc
at_nomask:""")
    for i in range(4): a(f"v_mov_b32 v{S[0]+i}, v{T}\nv_mov_b32 v{S[1]+i}, v{T+1}")
    a("s_waitcnt lgkmcnt(12)")
    for ds in range(4):
        for kb in range(3):
            c = f"v[{S[kb]}:{S[kb]+3}]" if not (kb == 2 and ds == 0) else "0"
            a(f"v_mfma_f32_4x4x4_16b_bf16 v[{S[kb]}:{S[kb]+3}], v[{K+8*kb+2*ds}:{K+8*kb+2*ds+1}], v[{Q+2*ds}:{Q+2*ds+1}], {c}")
    a("""s_mov_b32 s62, 0x11111111
s_mov_b32 s63, 0x11111111
s_mov_b32 s64, 0x33333333
s_mov_b32 s65, 0x33333333
s_mov_b32 s66, 0x77777777
s_mov_b32 s67, 0x77777777
s_mov_b32 s61, 0x3eb8aa3b""")
    a(f"v_cndmask_b32 v{S[2]+1}, v{S[2]+1}, v{S[0]+1}, s[62:63]")
    a(f"v_cndmask_b32 v{S[2]+2}, v{S[2]+2}, v{S[0]+2}, s[64:65]")
    a(f"v_cndmask_b32 v{S[2]+3}, v{S[2]+3}, v{S[0]+3}, s[66:67]")
    p = [S[2] + i for i in range(4)] + [S[1] + i for i in range(4)]
    t0, t1, t2, t3 = T, T + 1, T + 2, T + 3
    a(f"v_max3_f32 v{t0}, v{p[0]}, v{p[1]}, v{p[2]}\nv_max3_f32 v{t1}, v{p[3]}, v{p[4]}, v{p[5]}")
    a(f"v_max3_f32 v{t0}, v{t0}, v{p[6]}, v{p[7]}\nv_max_f32 v{t0}, v{t0}, v{t1}\nv_mul_f32 v{t0}, s61, v{t0}")
    for x in p: a(f"v_fma_f32 v{x}, s61, v{x}, -v{t0}")
    for x in p: a(f"v_exp_f32 v{x}, v{x}")
    a(f"v_add_f32 v{t1}, v{p[0]}, v{p[1]}\nv_add_f32 v{t2}, v{p[2]}, v{p[3]}\nv_add_f32 v{t3}, v{p[4]}, v{p[5]}\nv_add_f32 v{t0}, v{p[6]}, v{p[7]}")
    a(f"v_add_f32 v{t1}, v{t1}, v{t2}\nv_add_f32 v{t0}, v{t0}, v{t3}\nv_add_f32 v{t0}, v{t0}, v{t1}\nv_rcp_f32 v{t0}, v{t0}")
    for x in p: a(f"v_mul_f32 v{x}, v{x}, v{t0}")
    P0, P1, P2, P3, P4, P5 = [PP + i for i in range(6)]
    a(f"""v_cvt_pk_bf16_f32 v{P0}, v{p[0]}, v{p[1]}
v_cvt_pk_bf16_f32 v{P1}, v{p[2]}, v{p[3]}
v_cvt_pk_bf16_f32 v{P2}, v{p[4]}, v{p[5]}
v_cvt_pk_bf16_f32 v{P3}, v{p[6]}, v{p[7]}
v_mov_b32 v{t0}, 0xffff0000
v_cndmask_b32 v{t1}, 0, v{t0}, s[62:63]
v_cndmask_b32 v{t2}, 0, v{t0}, s[66:67]
v_mov_b32 v{t0}, 0xffff
v_cndmask_b32 v{t3}, 0, v{t0}, s[64:65]
v_or_b32 v{t2}, v{t2}, v{t3}
v_and_b32 v{P4}, v{P0}, v{t1}
v_and_b32 v{P5}, v{P1}, v{t2}
v_xor_b32 v{P0}, v{P0}, v{P4}
v_xor_b32 v{P1}, v{P1}, v{P5}
s_waitcnt lgkmcnt(0)""")
    Pk = [P4, P2, P0]
    O = [K, K + 4, K + 8, K + 12]
    for kb in range(3):
        for m in range(4):
            c = f"v[{O[m]}:{O[m]+3}]" if kb else "0"
            d = V + 8 * kb + 2 * m
            a(f"v_mfma_f32_4x4x4_16b_bf16 v[{O[m]}:{O[m]+3}], v[{d}:{d+1}], v[{Pk[kb]}:{Pk[kb]+1}], {c}")
    for m in range(4):
        a(f"v_cvt_pk_bf16_f32 v{Q+2*m}, v{O[m]}, v{O[m]+1}\nv_cvt_pk_bf16_f32 v{Q+2*m+1}, v{O[m]+2}, v{O[m]+3}")
    sc = " sc1" if OPT["fuse2"] else ""
    a(f"""v_lshrrev_b32 v{t0}, 5, v0
s_mov_b32 s3, {OH_TILE}
v_mul_lo_u32 v{t0}, v{t0}, s3
v_and_b32 v{t1}, 31, v0
v_lshlrev_b32 v{t1}, 4, v{t1}
v_add_u32 v{t0}, v{t0}, v{t1}
s_lshl_b32 s3, s50, 2
s_lshl_b32 s61, s49, 1
s_add_u32 s3, s3, s61
s_mul_i32 s3, s3, 144
s_lshl_b32 s61, s51, 2
s_add_u32 s3, s3, s61
s_add_u32 s3, s3, s47
s_lshl_b32 s3, s3, 10
s_add_u32 s3, s3, {OH}
buffer_store_dwordx4 v[{Q}:{Q+3}], v{t0}, {srd(S_WS)}, s3 offen{sc}
buffer_store_dwordx4 v[{Q+4}:{Q+7}], v{t0}, {srd(S_WS)}, s3 offen offset:512{sc}
s_branch p1_done""")

def gen_k1(P, name="k1_kernel"):
    a = A()
    a("s_cmp_ge_u32 s2, 256\ns_cbranch_scc1 k1_done")
    stc = Stamps(a, VSTAMP, 1); stp = Stamps(a, VSTAMP, 1)
    if gen1.PROF:
        stc("real0", True); stc("start")
        stp.names = list(stc.names); stp.n = stc.n
    prologue(a)
    a("s_cmp_lt_u32 s46, 4\ns_cbranch_scc1 cons")
    prod_setup_common(a)
    a("s_cmp_lg_u32 s48, 0\ns_cbranch_scc1 prodB")
    n0 = stp.n; nm0 = list(stp.names)
    producer(a, "A", stp)
    nA = stp.n
    a("prodB:")
    stp.n = n0; stp.names = list(nm0)
    producer(a, "B", stp)
    a("cons:")
    consumer(a, stc)
    attention(a, lambda *x: None)
    a("ep_B:\ns_nop 3")
    for j in range(5):
        for rt in range(2): ffn_tile(a, rt, j)
    a("p1_done:")
    if gen1.PROF:
        for k, (op, nm) in enumerate((("s_memtime", "issued"),)):
            a(f"{op} s[100:101]\ns_waitcnt lgkmcnt(0)\nv_writelane_b32 v{VSTAMP}, s100, 30")
    a("s_waitcnt vmcnt(0)")
    if gen1.PROF:
        a(f"s_memtime s[100:101]\ns_waitcnt lgkmcnt(0)\nv_writelane_b32 v{VSTAMP}, s100, 31")
        a(f"s_memrealtime s[100:101]\ns_waitcnt lgkmcnt(0)\nv_writelane_b32 v{VSTAMP}, s100, 32")
        stc.dump(46, 24)
        print("CONS", stc.names, file=sys.stderr); print("PROD", stp.names, file=sys.stderr)
        open("last.names", "w").write(repr({"cons": stc.names, "prod": stp.names}))
    a("k1_done:\ns_endpgm")
    gen1.finish(P, name, a, 256, LDS1)

if __name__ == "__main__":
    if len(sys.argv) > 2 and sys.argv[2] == "prof": gen1.PROF = True
    P = Prog()
    if not OPT["fstats"]: gen1.gen_k0(P)
    gen_k1(P)
    gen1.gen_k2(P)
    open(sys.argv[1], "w").write(P.render())
```

```python
import sys; sys.path.insert(0, "work")
from asmlib import *
import hazard, gen1
from gen1 import Stamps, DPPM
import os

OPT = dict(fuse=0, nb=2, prio=3, per=2, fill=3, ramp=1, pf=1, rot=1, kpre=8, fa=5, pollA=3, nohalo=0, w2s=12, x16=1,
           polls=11, tl0=4, tl1=4, tl2=4, w2a=4, chkA=5, p2prio=0)
for kv in os.environ.get("OPT", "").split(","):
    if "=" in kv:
        k, v = kv.split("="); OPT[k] = int(v)

STATS = 0
OH = 65536
OH_TILE = 144 * 1024
CSP = OH + 64 * OH_TILE
PK = CSP + 16 * 16 * 4 * 320
WS_USED = PK + 8 * 144 * 2048
FLG = 16384
FLG2 = FLG + 12288
XB = 2048 * 1024
WQKV_B = 512 * 3072
WG_B = 512 * 3584
WO_B = 512 * 1024
WD_B = 1792 * 1024

WST = 20480
XRING = 102400; XST = 18432
TAB = 157696
CST = TAB; RST = TAB + 2560
LDS1 = 163840
REG2 = 36864
QOFF = 20480; KOFF = 25600; VOFF = 30720

S_X, S_QKV, S_G, S_U, S_WS, S_DBG, S_WD, S_WO, S_OUT = 4, 8, 12, 16, 20, 24, 28, 32, 36
S_PK = 68
def srd(n): return f"s[{n}:{n+3}]"

class VM:
    def __init__(self): self.q = []
    def issue(self, tag): self.q.append(tag)
    def wait(self, *tags):
        idx = [i for i, t in enumerate(self.q) if t in tags]
        if not idx: return None
        n = len(self.q) - 1 - max(idx)
        assert n <= 63, n
        return f"s_waitcnt vmcnt({n})"

VT = [2, 3, 4, 5, 6]; VTH = [7, 8, 9, 10, 11]; VX = [12, 13, 14, 15]; VC = [16, 17, 18, 19, 20]; VR = 21; VL16 = 22; VSTAMP = 23
FA = [32, 60]; FB = [52, 80]
def ACC(rt, j): return 96 + 80 * rt + 16 * j
W2BASE = [176, 112, 192, 128, 208, 144, 224, 160, 240]
def W2R(i): return W2BASE[i >> 1] + 8 * (i & 1)
ACC2 = 24
RING0 = [96, 104, 88, 12]

def prologue(a):
    if OPT["x16"]:
        a("s_load_dwordx16 s[76:91], s[0:1], 0\ns_load_dwordx4 s[92:95], s[0:1], 64")
    else:
        for (s, off) in ((S_X, 0), (S_QKV, 8), (S_G, 32), (S_U, 40), (S_WS, 72), (S_DBG, 64), (S_WD, 48), (S_WO, 16), (S_OUT, 56)):
            a(f"s_load_dwordx2 s[{s}:{s+1}], s[0:1], {off}")
    a("""v_lshrrev_b32 v1, 6, v0
v_and_b32 v0, 63, v0
s_and_b32 s60, s2, 7
s_lshr_b32 s61, s2, 3
v_readfirstlane_b32 s46, v1
s_lshr_b32 s50, s60, 2
s_lshl_b32 s50, s50, 3
s_and_b32 s62, s61, 7
s_add_u32 s50, s50, s62
s_and_b32 s52, s60, 3
s_lshl_b32 s52, s52, 2
s_lshr_b32 s62, s61, 3
s_add_u32 s52, s52, s62
s_lshr_b32 s48, s52, 3
s_and_b32 s51, s52, 7
s_and_b32 s47, s46, 3""")
    for (s, nb) in ((S_X, XB), (S_QKV, WQKV_B), (S_G, WG_B), (S_U, WG_B), (S_WS, WS_USED), (S_DBG, 256), (S_WD, WD_B), (S_WO, WO_B), (S_OUT, XB)):
        a(f"s_mov_b32 s{s+2}, {nb}\ns_mov_b32 s{s+3}, 0x00020000")
    a("""s_mul_i32 s74, s51, 160
s_add_u32 s74, s74, 512
s_and_b32 s75, s51, 1
s_lshl_b32 s72, s75, 5
s_add_u32 s72, s72, s74
s_add_u32 s73, s74, 128
s_cmp_lg_u32 s75, 0
s_cselect_b32 s73, s74, s73""")

def karg_wait(a):
    a("s_waitcnt lgkmcnt(0)")
    if OPT["x16"]:
        for (s, off) in ((S_X, 0), (S_QKV, 8), (S_G, 32), (S_U, 40), (S_WS, 72), (S_DBG, 64), (S_WD, 48), (S_WO, 16), (S_OUT, 56)):
            a(f"s_mov_b64 s[{s}:{s+1}], s[{76+off//4}:{77+off//4}]")

def nonce_load(a):
    a(f"s_load_dword s76, s[{S_WS}:{S_WS+1}], {FLG}")

def p2_scalars(a):
    a(f"""s_and_b32 s60, s2, 7
s_lshr_b32 s61, s2, 3
s_lshr_b32 s77, s61, 2
s_lshl_b32 s78, s60, 2
s_and_b32 s62, s61, 3
s_add_u32 s78, s78, s62
s_and_b32 s79, s77, 1
s_lshl_b32 s79, s79, 2
s_add_u32 s79, s79, s46
s_and_b32 s79, s79, 7
s_mul_i32 s60, s77, 144
s_mul_i32 s61, s79, 10
s_add_u32 s61, s61, 64
s_lshl_b32 s62, s79, 2
s_add_u32 s80, s60, s61
s_lshl_b32 s80, s80, 11
s_add_u32 s80, s80, {PK}
s_add_u32 s82, s60, s62
s_lshl_b32 s82, s82, 11
s_add_u32 s82, s82, {PK}
s_add_u32 s81, s82, {32*2048}
s_mul_i32 s60, s78, 288
s_add_u32 s84, s60, s61
s_lshl_b32 s84, s84, 10
s_add_u32 s84, s84, {OH}
s_add_u32 s86, s60, s62
s_lshl_b32 s86, s86, 10
s_add_u32 s86, s86, {OH}
s_add_u32 s85, s86, {32*1024}
s_lshr_b32 s60, s78, 1
s_lshl_b32 s60, s60, 4
s_add_u32 s88, s60, s79
s_lshl_b32 s88, s88, 7
s_add_u32 s88, s88, {FLG2}
s_add_u32 s87, s88, 1024""")

def w2_loads(vl16):
    out = []
    for i in range(18):
        if i < 10: base, k = 80, i
        elif i < 14: base, k = 81, i - 10
        else: base, k = 82, i - 14
        pre = []
        if k % 2 == 0: pre = [f"s_add_u32 s89, s{base}, {2048*k}"]
        r = W2R(i)
        for nt in range(2):
            out.append((i, pre + [f"buffer_load_dwordx4 v[{r+4*nt}:{r+4*nt+3}], v{vl16}, {srd(S_WS)}, s89 offen offset:{2048*(k%2) + 1024*nt} sc1"]))
            pre = []
    return out

def prod_setup_common(a):
    a("""v_lshrrev_b32 v58, 3, v0
s_lshl_b32 s3, s47, 3
v_add_u32 v56, s3, v58
v_and_b32 v57, 7, v0
v_bfe_u32 v59, v0, 4, 1
v_lshlrev_b32 v59, 2, v59
v_xor_b32 v57, v57, v59
s_and_b32 s3, s47, 1
s_lshl_b32 s3, s3, 1
v_xor_b32 v57, s3, v57
v_lshlrev_b32 v57, 4, v57
s_lshl_b32 s43, s47, 10
s_lshl_b32 s44, s47, 12
s_lshl_b32 s45, s47, 9
s_mov_b32 s53, 0x3f803f80""")
    a("""s_lshl_b32 s3, s50, 7
s_lshl_b32 s60, s47, 5
s_add_u32 s3, s3, s60
v_lshlrev_b32 v59, 1, v58
v_add_u32 v59, s3, v59
v_lshlrev_b32 v59, 10, v59
v_and_b32 v60, 7, v0
v_lshrrev_b32 v61, 4, v0
v_xor_b32 v60, v60, v61
v_lshlrev_b32 v60, 4, v60
v_add_u32 v6, v59, v60
v_xor_b32 v60, 64, v60
v_add_u32 v7, v59, v60
v_add_u32 v7, 0x4000, v7""")
    if OPT["rot"]:
        a("""s_and_b32 s3, s50, 7
s_mul_i32 s40, s3, 196608
s_mul_i32 s41, s3, 229376
s_lshl_b32 s42, s3, 7""")
    else:
        a("s_mov_b32 s40, 0\ns_mov_b32 s41, 0\ns_mov_b32 s42, 0")

def prod_late_setup(a, T):
    a(f"""v_lshrrev_b32 v58, 4, v0
v_bfe_u32 v59, v0, 2, 2
v_lshlrev_b32 v60, 3, v58
v_add_u32 v60, v60, v59
v_lshlrev_b32 v60, 7, v60
v_and_b32 v61, 3, v0
v_lshlrev_b32 v61, 3, v61
v_add_u32 v60, v60, v61
v_and_b32 v61, 2, v59
v_and_b32 v62, 1, v58
v_xor_b32 v61, v61, v62
v_xor_b32 v61, s47, v61
v_lshlrev_b32 v61, 5, v61
v_add_u32 v9, v60, v61
v_add_u32 v10, {3*WST}, v9""")
    a(f"""s_lshl_b32 s3, s50, 7
s_lshl_b32 s60, s47, 6
s_add_u32 s61, s3, s60
v_add_u32 v14, s61, v0
v_lshlrev_b32 v14, 3, v14
v_add_u32 v15, s60, v0
v_lshlrev_b32 v15, 3, v15
v_add_u32 v15, {RST}, v15
s_cmp_lt_u32 s47, 2
s_cbranch_scc1 psa_done{T}
v_and_b32 v58, 7, v0
v_bfe_u32 v59, v0, 3, 1
v_lshlrev_b32 v59, 4, v59
v_add_u32 v58, v58, v59
s_sub_u32 s3, s3, 24
v_add_u32 v14, s3, v58
v_lshlrev_b32 v14, 3, v14
v_and_b32 v15, 15, v0
v_lshlrev_b32 v15, 3, v15
v_add_u32 v15, {RST + 128*8}, v15
s_cmp_lg_u32 s50, 0
s_cbranch_scc1 psa_done{T}
v_mov_b32 v14, 0x80000000
psa_done{T}:""")
    p2_scalars(a)
    a(f"""s_lshl_b32 s3, s50, 8
s_add_u32 s3, s3, {FLG + 256}
s_lshl_b32 s60, s52, 8
s_add_u32 s60, s60, {FLG + 256*17}
s_lshl_b32 s61, s77, 8
s_add_u32 s61, s61, {FLG + 256*33}
v_lshlrev_b32 v58, 4, v0
v_mov_b32 v13, s3
v_add_u32 v59, s3, v58
v_cmp_gt_u32 vcc, 4, v0
v_cndmask_b32 v13, v13, v59, vcc
v_subrev_u32 v59, 4, v0
v_cmp_gt_u32 vcc, 4, v59
s_sub_u32 s60, s60, 64
v_add_u32 v59, s60, v58
v_cndmask_b32 v13, v13, v59, vcc
v_subrev_u32 v59, 8, v0
v_cmp_gt_u32 vcc, 8, v59
s_sub_u32 s61, s61, 128
v_add_u32 v59, s61, v58
v_cndmask_b32 v13, v13, v59, vcc""")
    if T == "A":
        a(f"""s_sub_u32 s61, s3, {256 - 48}
s_cmp_eq_u32 s50, 0
s_cselect_b32 s61, s3, s61
v_cmp_eq_u32 vcc, 16, v0
v_mov_b32 v59, s61
v_cndmask_b32 v13, v13, v59, vcc""")
    a(f"""s_lshl_b32 s61, s52, 2
s_add_u32 s3, s3, s61
s_lshl_b32 s61, s50, 2
s_add_u32 s60, s60, s61
s_add_u32 s60, s60, 64
s_and_b32 s61, s2, 7
s_lshl_b32 s61, s61, 8
s_lshr_b32 s62, s2, 3
s_lshl_b32 s62, s62, 2
s_add_u32 s61, s61, s62
s_add_u32 s61, s61, {FLG + 256*33}
v_mov_b32 v21, s3
v_mov_b32 v59, s60
v_cmp_eq_u32 vcc, 1, v0
v_cndmask_b32 v21, v21, v59, vcc
v_mov_b32 v59, s61
v_cmp_eq_u32 vcc, 2, v0
v_cndmask_b32 v21, v21, v59, vcc""")
    a(f"""v_lshrrev_b32 v58, 5, v0
v_lshlrev_b32 v58, 2, v58
v_bfe_u32 v59, v0, 4, 1
v_lshlrev_b32 v59, 3, v59
v_add_u32 v58, v58, v59
v_lshlrev_b32 v58, 10, v58
v_and_b32 v59, 15, v0
v_lshlrev_b32 v59, 3, v59
v_add_u32 v58, v58, v59
s_and_b32 s60, s2, 7
s_lshl_b32 s61, s60, 7
v_add_u32 v54, s61, v58
v_lshlrev_b32 v55, 4, v0
v_lshlrev_b32 v22, 4, v0
s_lshr_b32 s61, s2, 3
s_lshl_b32 s62, s61, 2
s_add_u32 s62, s62, s47
s_mul_i32 s60, s60, 144
s_add_u32 s92, s60, s62
s_lshl_b32 s92, s92, 11
s_add_u32 s92, s92, {PK}
s_add_u32 s93, s60, s61
s_add_u32 s93, s93, 128
s_lshl_b32 s93, s93, 11
s_add_u32 s93, s93, {PK}
s_add_u32 s91, s61, 96
s_lshl_b32 s91, s91, 14
s_cmp_lt_u32 s62, 32
s_cselect_b32 s{S_PK}, s{S_WO}, s{S_WD}
s_cselect_b32 s{S_PK+1}, s{S_WO+1}, s{S_WD+1}
s_cselect_b32 s{S_PK+2}, s{S_WO+2}, s{S_WD+2}
s_mov_b32 s{S_PK+3}, 0x00020000
s_cselect_b32 s3, 0, 32
s_sub_u32 s90, s62, s3
s_lshl_b32 s90, s90, 14
v_mov_b32 v53, v55
v_mov_b32 v52, v54
s_and_b32 s3, s61, 3
s_cmp_eq_u32 s3, s47
s_cselect_b32 s3, 1, 0
s_cmp_lt_u32 s61, 16
s_cselect_b32 s3, s3, 0
s_cmp_lg_u32 s3, 0
s_cbranch_scc1 pk_act{T}
v_mov_b32 v53, 0x80000000
v_mov_b32 v52, 0x80000000
pk_act{T}:""")
    a(f"""s_lshl_b32 s94, s52, 6
s_add_u32 s94, s94, s47
s_mul_i32 s94, s94, 320
s_add_u32 s94, s94, {CSP}
s_mul_i32 s95, s50, 1280
s_add_u32 s95, s95, s94""")

def pack_valu(a, raw, out):
    for nt in range(2):
        F = out + 4 * nt
        r = [raw + 2 * q + nt for q in range(4)]
        a(f"v_perm_b32 v{F}, v{r[1]}, v{r[0]}, s60\nv_perm_b32 v{F+2}, v{r[1]}, v{r[0]}, s61")
        a(f"v_perm_b32 v{F+1}, v{r[3]}, v{r[2]}, s60\nv_perm_b32 v{F+3}, v{r[3]}, v{r[2]}, s61")
    for nt in range(2):
        F = out + 4 * nt
        a(f"v_permlane16_swap_b32 v{F}, v{F+2}\nv_permlane16_swap_b32 v{F+1}, v{F+3}")

def producer(a, T, st):
    vm = VM()
    A_ = T == "A"
    if A_:
        a("""s_movk_i32 s60, 3072
v_mul_lo_u32 v58, v56, s60
s_lshl_b32 s3, s51, 7
v_add_u32 v58, s3, v58
v_add_u32 v2, v58, v57
s_movk_i32 s60, 3584
v_mul_lo_u32 v58, v56, s60
v_add_u32 v58, s3, v58
v_add_u32 v3, v58, v57
v_xor_b32 v57, 32, v57
v_add_u32 v4, v58, v57""")
        a(f"""s_lshr_b32 s3, s47, 1
s_lshl_b32 s60, s50, 7
s_add_u32 s3, s3, s60
s_sub_u32 s3, s3, 16
s_and_b32 s60, s47, 1
s_lshl_b32 s60, s60, 3
s_add_u32 s3, s3, s60
v_lshrrev_b32 v58, 3, v0
v_lshlrev_b32 v58, 1, v58
v_add_u32 v58, s3, v58
v_lshlrev_b32 v58, 10, v58
v_and_b32 v59, 7, v0
v_lshrrev_b32 v60, 4, v0
v_xor_b32 v59, v59, v60
s_lshl_b32 s60, s47, 1
v_xor_b32 v59, s60, v59
v_and_b32 v59, 7, v59
v_lshlrev_b32 v59, 4, v59
v_add_u32 v8, v58, v59
s_mov_b32 s58, -1
s_mov_b32 s59, 0
s_cmp_lg_u32 s50, 0
s_cbranch_scc1 pA_hok
v_mov_b32 v8, 0x80000000
pA_hok:""")
    else:
        a("""s_movk_i32 s60, 3584
v_mul_lo_u32 v58, v56, s60
s_lshl_b32 s3, s72, 1
v_add_u32 v59, s3, v58
v_add_u32 v2, v59, v57
v_xor_b32 v60, 32, v57
v_add_u32 v3, v59, v60
s_lshl_b32 s3, s73, 1
v_add_u32 v59, s3, v58
v_and_b32 v57, 48, v57
v_and_b32 v60, 48, v60
v_add_u32 v4, v59, v57
v_add_u32 v5, v59, v60
v_bfe_u32 v58, v0, 2, 1
v_bfe_u32 v59, v0, 4, 1
v_xor_b32 v58, v58, v59
v_cmp_eq_u32 vcc, 0, v58
s_mov_b64 s[54:55], vcc
v_cmp_eq_u32 vcc, 1, v58
s_mov_b64 s[56:57], vcc""")
    def W(s):
        base = (s % 5) * WST
        if A_:
            lst = [(2, S_QKV, 40, 0), (2, S_QKV, 40, 1024), (2, S_QKV, 40, 2048), (3, S_G, 41, 0), (4, S_U, 41, 0)]
        else:
            lst = [(2, S_G, 41, 0), (2, S_G, 41, 128), (3, S_U, 41, 0), (3, S_U, 41, 128)]
        for sig, (v, sr, so, imm) in enumerate(lst):
            a(f"s_add_u32 m0, s43, {base + sig*4096 - imm}")
            a(f"buffer_load_dwordx4 v{v}, {srd(sr)}, s{so} offen offset:{imm} lds"); vm.issue(("W", s))
        if not A_:
            a(f"s_add_u32 m0, s43, {base + 4*4096}\ns_mov_b64 exec, s[54:55]")
            a(f"buffer_load_dwordx4 v4, {srd(S_G)}, s41 offen lds"); vm.issue(("W", s))
            a("s_mov_b64 exec, s[56:57]")
            a(f"buffer_load_dwordx4 v5, {srd(S_U)}, s41 offen lds"); vm.issue(("W", s))
            a("s_mov_b64 exec, -1")
        if s < 15:
            if A_: a(f"s_add_u32 s40, s40, 98304\ns_cmp_eq_u32 s40, {16*98304}\ns_cselect_b32 s40, 0, s40")
            a(f"s_add_u32 s41, s41, 114688\ns_cmp_eq_u32 s41, {16*114688}\ns_cselect_b32 s41, 0, s41")
    def X(g):
        xs = XRING + (g % 3) * XST
        for par in range(2):
            for half in range(2):
                a(f"s_add_u32 m0, s44, {xs + 2048*par + 1024*half - 1024*par}")
                a(f"buffer_load_dwordx4 v{6+half}, {srd(S_X)}, s42 offen offset:{1024*par} lds"); vm.issue(("X", g))
        if A_:
            a(f"s_add_u32 m0, s45, {xs + 16384}\ns_mov_b64 exec, s[58:59]")
            a(f"buffer_load_dwordx4 v8, {srd(S_X)}, s42 offen lds"); vm.issue(("X", g))
            a("s_mov_b64 exec, -1")
        if g < 7: a("s_add_u32 s42, s42, 128\ns_and_b32 s42, s42, 1023")
    sched = {s: [] for s in range(-1, 16)}
    if OPT["ramp"] == 0:
        sched[-1] = [("W", 0), ("X", 0), ("W", 1), ("X", 1), ("W", 2), ("W", 3), ("X", 2), ("W", 4)]
        for s in range(1, 16):
            if s + 4 < 16: sched[s].append(("W", s + 4))
            if (s - 1) & 1 and (s - 2) // 2 + 3 < 8: sched[s].append(("X", (s - 2) // 2 + 3))
    else:
        if OPT["ramp"] == 1:
            sched[-1] = [("W", 0), ("X", 0), ("W", 1), ("X", 1)]
            sched[0] = [("W", 2)]; sched[1] = [("W", 3), ("X", 2)]; sched[2] = [("W", 4), ("X", 3)]; sched[3] = [("W", 5), ("W", 6)]
            sched[4] = [("W", 7), ("X", 4)]; sched[5] = [("W", 8), ("W", 9)]; nxt = 10; s0 = 6
        elif OPT["ramp"] == 2:
            sched[-1] = [("W", 0), ("X", 0), ("W", 1)]
            sched[0] = [("X", 1), ("W", 2)]; sched[1] = [("W", 3), ("X", 2)]; sched[2] = [("W", 4), ("X", 3)]; sched[3] = [("W", 5), ("W", 6)]
            sched[4] = [("W", 7), ("X", 4)]; sched[5] = [("W", 8), ("W", 9)]; nxt = 10; s0 = 6
        elif OPT["ramp"] == 3:
            sched[-1] = [("W", 0), ("X", 0), ("W", 1), ("X", 1), ("W", 2)]
            sched[0] = [("W", 3)]; sched[1] = [("W", 4), ("X", 2)]; sched[2] = [("W", 5), ("X", 3)]; sched[3] = [("W", 6), ("W", 7)]
            sched[4] = [("W", 8), ("X", 4)]; sched[5] = [("W", 9)]; nxt = 10; s0 = 6
        for s in range(s0, 16):
            if nxt < 16 and nxt <= s + 4: sched[s].append(("W", nxt)); nxt += 1
            if (s - 1) & 1 and 5 <= (s - 2) // 2 + 3 < 8: sched[s].append(("X", (s - 2) // 2 + 3))
    for s in range(-1, 16):
        for (k, i) in sched[s]:
            if k == "W": assert i < 5 or i - 5 <= s - 1, (s, k, i); assert i >= s + 1 or s < 0 or i > s, (s, i)
            else: assert i < 3 or 2 * (i - 3) + 1 <= s - 1, (s, k, i)
    def do(ops):
        for (k, i) in ops: (W if k == "W" else X)(i)
    karg_wait(a)
    st("karg")
    do(sched[-1])
    nonce_load(a)
    st("dma_issued")
    prod_late_setup(a, T)
    if A_:
        a(f"""v_and_b32 v58, 15, v0
v_lshrrev_b32 v59, 1, v58
v_lshrrev_b32 v60, 4, v0
v_xor_b32 v59, v59, v60
v_lshlrev_b32 v59, 4, v59
v_lshlrev_b32 v58, 7, v58
v_add_u32 v58, v58, v59
v_add_u32 v11, {XRING + 128*128}, v58
v_xor_b32 v12, 64, v11""")
        for r in range(24, 32): a(f"v_mov_b32 v{r}, 0")
    a(vm.wait(("W", 0), ("X", 0)))
    a("s_barrier")
    st("Pm1")
    HF = [76, 88]
    def halo_mfma(s):
        h = HF[s & 1]
        a(f"v_mfma_f32_16x16x32_bf16 v[24:27], v[{h}:{h+3}], v[{h+8}:{h+11}], v[24:27]")
        a(f"v_mfma_f32_16x16x32_bf16 v[28:31], v[{h+4}:{h+7}], v[{h+8}:{h+11}], v[28:31]")
    w2l = w2_loads(55)
    w2i = 0
    for s in range(16):
        slot = s % 5
        vb, off0 = (9, slot * WST) if slot < 3 else (10, (slot - 3) * WST)
        if A_ and s >= 1 and not OPT["nohalo"]: halo_mfma(s - 1)
        if s in (4, 5):
            raw = 32 if s == 4 else 40
            a(vm.wait(("pkraw", s - 4)))
            a("s_mov_b32 s60, 0x05040100\ns_mov_b32 s61, 0x07060302")
            pack_valu(a, raw, 60)
            dv = 55 if s == 4 else 53
            so = 92 if s == 4 else 93
            a(f"buffer_store_dwordx4 v[60:63], v{dv}, {srd(S_WS)}, s{so} offen sc1"); vm.issue("pub")
            a(f"buffer_store_dwordx4 v[64:67], v{dv}, {srd(S_WS)}, s{so} offen offset:1024 sc1"); vm.issue("pub")
        if s == 7:
            a(f"""s_cmp_lg_u32 s47, 0
s_cbranch_scc1 pf_skip{T}
s_waitcnt lgkmcnt(0)
s_add_u32 s76, s76, 1
s_mov_b64 exec, 7
v_mov_b32 v58, s76
s_sub_u32 s76, s76, 1
buffer_store_dword v58, v21, {srd(S_WS)}, 0 offen sc1
s_mov_b64 exec, -1
pf_skip{T}:""")
        if s == OPT["polls"]:
            a(f"""s_cmp_lg_u32 s47, 0
s_cbranch_scc1 pl_skip{T}
buffer_load_dwordx4 v[68:71], v13, {srd(S_WS)}, 0 offen sc1
pl_skip{T}:""")
            npoll0 = len(vm.q)
        do(sched[s])
        if s == 2:
            for q in range(4):
                a(f"buffer_load_dwordx2 v[{32+2*q}:{33+2*q}], v54, {srd(S_PK)}, s90 offen offset:{1024*q}"); vm.issue(("pkraw", 0))
            for q in range(4):
                a(f"buffer_load_dwordx2 v[{40+2*q}:{41+2*q}], v52, {srd(S_WD)}, s91 offen offset:{1024*q}"); vm.issue(("pkraw", 1))
        if A_ and not OPT["nohalo"]:
            h = HF[s & 1]
            for k, sig in enumerate((1, 2)):
                for i in range(2):
                    d = h + 4 * k + 2 * i
                    a(f"ds_read_b64_tr_b16 v[{d}:{d+1}], v{vb} offset:{off0 + sig*4096 + 512*i}")
            a(f"ds_read_b128 v[{h+8}:{h+11}], v{11 + (s & 1)} offset:{((s >> 1) % 3) * XST}")
        if s in (0, 1):
            a(f"s_lshr_b32 s3, s50, 3\ns_cmp_lg_u32 s3, {s}\ns_cbranch_scc1 cs_skip{T}{s}")
            for sig in range(5):
                for i in range(2):
                    d = 32 + 4 * sig + 2 * i
                    a(f"ds_read_b64_tr_b16 v[{d}:{d+1}], v{vb} offset:{off0 + sig*4096 + 512*i}")
            for r in range(16, 21): a(f"v_mov_b32 v{r}, 0")
            a("v_lshlrev_b32 v56, 2, v0")
            a("s_waitcnt lgkmcnt(0)")
            for d in range(4):
                for sig in range(5):
                    a(f"v_dot2c_f32_bf16 v{16+sig}, s53, v{32+4*sig+d}")
            a("""v_permlane32_swap_b32 v16, v18
v_permlane32_swap_b32 v17, v19
v_mov_b32 v58, v20
v_add_f32 v16, v16, v18
v_add_f32 v17, v17, v19
v_permlane32_swap_b32 v20, v58
v_add_f32 v20, v20, v58
v_permlane16_swap_b32 v16, v17
v_mov_b32 v58, v20
v_add_f32 v16, v16, v17
v_permlane16_swap_b32 v20, v58
v_add_f32 v20, v20, v58""")
            a(f"""buffer_store_dword v16, v56, {srd(S_WS)}, s95 offen sc1
s_mov_b64 exec, 0xffff
buffer_store_dword v20, v56, {srd(S_WS)}, s95 offen offset:256 sc1
s_mov_b64 exec, -1
cs_skip{T}{s}:""")
        if s == 11:
            a(f"""s_cmp_lg_u32 s47, 0
s_cbranch_scc1 pp_done{T}
s_add_u32 s61, s76, 1
s_mov_b32 s60, 0
s_waitcnt vmcnt({len(vm.q) - npoll0})
pp_spin{T}:
v_xor_b32 v58, s61, v68
v_xor_b32 v59, s61, v69
v_xor_b32 v60, s61, v70
v_xor_b32 v61, s61, v71
v_or_b32 v58, v58, v59
v_or3_b32 v58, v58, v60, v61
v_cmp_ne_u32 vcc, 0, v58
s_cbranch_vccz pp_done{T}
s_add_u32 s60, s60, 1
s_cmp_ge_u32 s60, 0x8000
s_cbranch_scc1 pp_done{T}
s_sleep 4
buffer_load_dwordx4 v[68:71], v13, {srd(S_WS)}, 0 offen sc1
s_waitcnt vmcnt(0)
s_branch pp_spin{T}
pp_done{T}:""")
        if s == 12:
            a(f"buffer_load_dwordx2 v[56:57], v14, {srd(S_WS)}, 0 offen sc1"); vm.issue("stats")
            a("v_lshlrev_b32 v58, 2, v0\nv_lshrrev_b32 v59, 4, v0\nv_mul_u32_u24 v59, 1280, v59\nv_and_b32 v60, 15, v0\nv_lshlrev_b32 v60, 2, v60\nv_add_u32 v59, v59, v60")
            for tq in range(16):
                if tq % 3 == 0: a(f"s_add_u32 s3, s94, {1280*tq}")
                a(f"buffer_load_dword v{32+tq}, v58, {srd(S_WS)}, s3 offen offset:{1280*(tq%3)} sc1"); vm.issue("csp")
            for q in range(4):
                a(f"s_add_u32 s3, s94, {5120*q}")
                a(f"buffer_load_dword v{48+q}, v59, {srd(S_WS)}, s3 offen offset:256 sc1"); vm.issue("csp")
        if OPT["fuse"] and s >= OPT["w2s"]:
            n = {12: 4, 13: 12, 14: 10, 15: 10}[s] if OPT["w2s"] == 12 else 36 // (16 - OPT["w2s"]) + 1
            for _ in range(n):
                if w2i < len(w2l):
                    for x in w2l[w2i][1]: a(x)
                    vm.issue(("w2", w2l[w2i][0])); w2i += 1
        if s == 13:
            a(vm.wait("stats"))
            a("ds_write_b64 v15, v[56:57]")
        if s == 14:
            a(vm.wait("csp"))
            for k in range(4): a(f"v_pk_add_f32 v[{32+2*k}:{33+2*k}], v[{32+2*k}:{33+2*k}], v[{40+2*k}:{41+2*k}]")
            a("v_pk_add_f32 v[48:49], v[48:49], v[50:51]")
            for k in range(2): a(f"v_pk_add_f32 v[{32+2*k}:{33+2*k}], v[{32+2*k}:{33+2*k}], v[{36+2*k}:{37+2*k}]")
            a("v_add_f32 v20, v48, v49\nv_pk_add_f32 v[32:33], v[32:33], v[34:35]\nv_mov_b32 v58, v20")
            a("v_add_f32 v16, v32, v33\nv_permlane32_swap_b32 v20, v58\nv_add_f32 v20, v20, v58\nv_mov_b32 v58, v20\nv_permlane16_swap_b32 v20, v58\nv_add_f32 v20, v20, v58")
            for (x, t) in ((16, 60), (20, 66)):
                a(f"""v_cvt_pk_bf16_f32 v{t}, v{x}, v{x}
v_and_b32 v{t+2}, 0xffff0000, v{t}
v_sub_f32 v{x}, v{x}, v{t+2}
v_cvt_pk_bf16_f32 v{t+3}, v{x}, v{x}
v_and_b32 v{t+2}, 0xffff0000, v{t+3}
v_sub_f32 v{x}, v{x}, v{t+2}
v_cvt_pk_bf16_f32 v{t+1}, v{x}, v{x}
v_and_b32 v{t}, 0xffff, v{t}
v_or_b32 v{t}, v{t}, v{t+2}
v_and_b32 v{t+1}, 0xffff, v{t+1}""")
            a(f"""v_and_b32 v58, 15, v0
v_lshlrev_b32 v58, 3, v58
s_lshl_b32 s3, s47, 7
s_add_u32 s3, s3, {CST}
v_add_u32 v58, s3, v58
v_lshrrev_b32 v59, 4, v0
v_lshlrev_b32 v59, 9, v59
v_add_u32 v59, v59, v58
ds_write_b64 v59, v[60:61]
ds_write_b64 v58, v[66:67] offset:2048""")
        need = []
        if s + 1 < 16: need.append(("W", s + 1))
        if (s & 1) and (s + 1) // 2 < 8: need.append(("X", (s + 1) // 2))
        if s == 6: need.append("pub")
        w = vm.wait(*need) if need else None
        if w: a(w)
        if A_ or s in (13, 14): a("s_waitcnt lgkmcnt(0)")
        if s in (6, 12): st(f"pre{s}")
        a("s_barrier")
        if s in (0, 3, 5, 6, 7, 11, 12): st(f"P{s}")
    st("P15")
    if OPT["fuse"]:
        while w2i < len(w2l):
            for x in w2l[w2i][1]: a(x)
            w2i += 1
    if A_:
        if not OPT["nohalo"]: halo_mfma(15)
        a(f"""ds_read_b64 v[60:61], v58 offset:512
ds_read_b64 v[62:63], v58 offset:1024
v_and_b32 v59, 15, v0
v_lshlrev_b32 v59, 3, v59
v_add_u32 v59, {RST + 128*8}, v59
ds_read_b64 v[64:65], v59
v_cmp_gt_u32 vcc, 16, v0
v_bfe_u32 v68, v0, 4, 1
v_mul_u32_u24 v68, 2560, v68
v_bfe_u32 v69, v0, 5, 1
v_bfe_u32 v70, v0, 3, 1
v_and_b32 v71, 7, v0
s_mul_i32 s3, s47, {REG2}
s_waitcnt lgkmcnt(0)
v_cndmask_b32 v66, 0, v64, vcc
v_and_b32 v67, 0xffff, v66
v_mfma_f32_16x16x16_bf16 v[24:27], v[60:61], v[66:67], v[24:27]
v_mfma_f32_16x16x16_bf16 v[28:31], v[62:63], v[66:67], v[28:31]
v_lshlrev_b32 v72, 3, v69
v_mul_u32_u24 v73, 1280, v70
v_lshlrev_b32 v74, 4, v71
v_add_u32 v72, v72, v68
v_add_u32 v73, v73, v74
v_add_u32 v72, v72, v73
v_add_u32 v72, s3, v72
v_mul_u32_u24 v73, 1280, v69
v_mul_u32_u24 v74, 640, v70
v_lshlrev_b32 v75, 3, v71
v_add_u32 v73, v73, v68
v_add_u32 v74, v74, v75
v_add_u32 v73, v73, v74
v_add_u32 v73, s3, v73""")
        for q in range(8): a(f"v_mul_f32 v{24+q}, v{24+q}, v65")
        a(f"""v_cvt_pk_bf16_f32 v60, v24, v25
v_cvt_pk_bf16_f32 v61, v26, v27
v_cvt_pk_bf16_f32 v62, v28, v29
v_cvt_pk_bf16_f32 v63, v30, v31
ds_write_b64 v72, v[60:61] offset:{KOFF}
ds_write_b64 v73, v[62:63] offset:{VOFF}
s_waitcnt lgkmcnt(0)
s_branch attn""")
    else:
        a("s_branch pub" if OPT["fuse"] else "s_branch p1_done")

def cons_setup(a):
    a("""s_lshr_b32 s49, s47, 1
s_and_b32 s47, s47, 1""")
    a("s_cmp_lg_u32 s48, 0\ns_cbranch_scc1 cs_B")
    a(f"""s_lshl_b32 s83, s49, 6
s_mov_b32 s84, 32
s_add_u32 s85, s83, 4096
s_mov_b32 s86, 32
s_add_u32 s87, s83, 8192
s_mov_b32 s88, 32
s_add_u32 s89, s83, {3*4096}
s_mov_b32 s90, {4096+32}
s_add_u32 s91, s83, {3*4096+32}
s_mov_b32 s92, {4096-32}
s_lshl_b32 s66, s51, 2
s_lshl_b32 s3, s49, 1
s_add_u32 s66, s66, s3
s_add_u32 s66, s66, 32
s_add_u32 s67, s66, 1
s_branch cs_D
cs_B:
s_lshr_b32 s60, s72, 4
s_add_u32 s60, s60, 32
s_lshr_b32 s61, s73, 4
s_add_u32 s61, s61, 32
s_cmp_lg_u32 s49, 0
s_cbranch_scc1 cs_B1""")
    def tiles(lst):
        for j, (sa, ca, sb, cb) in enumerate(lst):
            t0 = sa * 4096 + 32 * ca; t1 = sb * 4096 + 32 * cb
            a(f"s_mov_b32 s{83+2*j}, {t0}\ns_mov_b32 s{84+2*j}, {t1 - t0}")
    tiles([(0,0,2,1),(0,1,2,0),(0,2,2,3),(0,3,2,2),(1,0,3,1)])
    a("s_mov_b32 s63, s60\ns_add_u32 s64, s60, 1\ns_add_u32 s65, s60, 2\ns_add_u32 s66, s60, 3\ns_add_u32 s67, s60, 4\ns_branch cs_D\ncs_B1:")
    tiles([(1,1,3,0),(1,2,3,3),(1,3,3,2),(4,0,4,3),(4,1,4,2)])
    a("s_add_u32 s63, s60, 5\ns_add_u32 s64, s60, 6\ns_add_u32 s65, s60, 7\ns_mov_b32 s66, s61\ns_add_u32 s67, s61, 1\ncs_D:")
    a(f"""v_lshrrev_b32 v32, 5, v0
v_bfe_u32 v33, v0, 2, 2
v_lshlrev_b32 v34, 3, v32
v_add_u32 v34, v34, v33
v_lshlrev_b32 v34, 7, v34
v_and_b32 v35, 3, v0
v_lshlrev_b32 v35, 3, v35
v_add_u32 v34, v34, v35
v_and_b32 v35, 2, v33
v_xor_b32 v35, v35, v32
v_lshlrev_b32 v35, 5, v35
v_bfe_u32 v36, v0, 4, 1
v_and_b32 v37, 15, v0
v_lshlrev_b32 v37, 3, v37
v_add_u32 v37, {CST}, v37""")
    for j in range(5):
        a(f"""v_mul_lo_u32 v38, v36, s{84+2*j}
v_add_u32 v38, s{83+2*j}, v38
v_xor_b32 v39, v38, v35
v_add_u32 v{VT[j]}, v39, v34
v_add_u32 v{VTH[j]}, {4*WST}, v{VT[j]}
v_lshrrev_b32 v39, 12, v38
v_lshlrev_b32 v39, 9, v39
v_and_b32 v38, 0x60, v38
v_lshlrev_b32 v38, 2, v38
v_add_u32 v38, v38, v39
v_add_u32 v{VC[j]}, v38, v37""")
    a(f"""v_and_b32 v33, 31, v0
s_lshl_b32 s3, s47, 6
v_add_u32 v33, s3, v33
v_lshlrev_b32 v{VR}, 3, v33
v_add_u32 v{VR}, {RST}, v{VR}
v_bfe_u32 v34, v33, 1, 3
v_xor_b32 v34, v34, v32
v_lshlrev_b32 v34, 4, v34
v_lshlrev_b32 v33, 7, v33
v_add_u32 v33, v33, v34
v_add_u32 v{VX[0]}, {XRING}, v33
v_xor_b32 v{VX[1]}, 32, v{VX[0]}
v_xor_b32 v{VX[2]}, 64, v{VX[0]}
v_xor_b32 v{VX[3]}, 96, v{VX[0]}
v_lshlrev_b32 v{VL16}, 4, v0""")

def stats_groups():
    G = []
    def allred(r, t):
        for m in ("quad_perm:[1,0,3,2]", "quad_perm:[2,3,0,1]", "row_half_mirror", "row_mirror"):
            G.append([f"v_add_f32_dpp v{r}, v{r}, v{r} {m} {DPPM}"])
        for sw in ("16", "32"):
            G.append([f"v_mov_b32 v{t}, v{r}"])
            G.append([f"v_permlane{sw}_swap_b32 v{r}, v{t}"])
            G.append([f"v_add_f32 v{r}, v{r}, v{t}"])
    for r in range(2):
        R = 24 + 4 * r
        u = []
        for i in range(4): u += [f"v_lshlrev_b32 v{88+i}, 16, v{R+i}", f"v_and_b32 v{R+i}, 0xffff0000, v{R+i}"]
        u += ["v_pk_add_f32 v[92:93], v[88:89], v[90:91]", f"v_pk_add_f32 v[94:95], v[{R}:{R+1}], v[{R+2}:{R+3}]",
              "v_pk_add_f32 v[92:93], v[92:93], v[94:95]", "v_add_f32 v92, v92, v93"]
        for k in range(0, len(u), 3): G.append(u[k:k + 3])
        allred(92, 94)
        G.append(["v_mul_f32 v92, 0x3b000000, v92"])
        u = []
        for pr in (88, 90, R, R + 2):
            u.append(f"v_pk_add_f32 v[{pr}:{pr+1}], v[{pr}:{pr+1}], v[92:93] op_sel:[0,0] op_sel_hi:[1,0] neg_lo:[0,1] neg_hi:[0,1]")
        u.append(f"v_readfirstlane_b32 s{96+2*r}, v92")
        u.append("v_pk_mul_f32 v[94:95], v[88:89], v[88:89]")
        for pr in (90, R, R + 2): u.append(f"v_pk_fma_f32 v[94:95], v[{pr}:{pr+1}], v[{pr}:{pr+1}], v[94:95]")
        u.append("v_add_f32 v94, v94, v95")
        for k in range(0, len(u), 2): G.append(u[k:k + 2])
        allred(94, 93)
        G.append([f"v_readfirstlane_b32 s{97+2*r}, v94"])
    fin = """v_cmp_eq_u32 vcc, 1, v0
v_mov_b32 v88, s96
v_mov_b32 v90, s98
v_mov_b32 v89, s97
v_mov_b32 v91, s99
v_cndmask_b32 v88, v88, v90, vcc
v_cndmask_b32 v89, v89, v91, vcc
v_mul_f32 v89, 0x3b000000, v89
v_cvt_pk_bf16_f32 v88, v88, v88
v_cvt_pk_bf16_f32 v89, v89, v89
v_xor_b32 v88, 0x80008000, v88
v_and_b32 v89, 0xffff0000, v89
v_add_f32 v89, 0x3727c5ac, v89
v_cvt_pk_bf16_f32 v89, v89, v89
v_and_b32 v89, 0xffff0000, v89
v_sqrt_f32 v89, v89
v_lshlrev_b32 v90, 7, v0
v_cvt_pk_bf16_f32 v89, v89, v89
v_and_b32 v89, 0xffff0000, v89
v_rcp_f32 v89, v89""".split("\n")
    for k in range(0, len(fin), 2): G.append(fin[k:k + 2])
    G.append(["s_mov_b64 exec, 3", f"buffer_store_dwordx2 v[88:89], v90, {srd(S_WS)}, s45 offen sc1", "s_mov_b64 exec, -1"])
    return G

def cons_reads(m):
    st = m & 1; s = m >> 1; half = m & 1; g = m >> 2; xs = m & 3; slot = s % 5
    def fa(j):
        v, o = (VT[j], slot * WST) if slot < 4 else (VTH[j], 0)
        return [f"ds_read_b64_tr_b16 v[{FA[st]+4*j+2*i}:{FA[st]+4*j+2*i+1}], v{v} offset:{o + 2048*half + 512*i}" for i in range(2)]
    def fb(rt):
        return [f"ds_read_b128 v[{FB[st]+4*rt}:{FB[st]+4*rt+3}], v{VX[xs]} offset:{(g % 3)*XST + 4096*rt}"]
    return fb(0) + fa(0) + fb(1) + fa(1) + fa(2) + fa(3) + fa(4)

def table_reads():
    r = [f"ds_read_b64 v[{32+2*j}:{33+2*j}], v{VC[j]}" for j in range(5)]
    r += [f"ds_read_b64 v[{42+2*rt}:{43+2*rt}], v{VR} offset:{256*rt}" for rt in range(2)]
    return r

def ffn_tile(rt, j):
    b = ACC(rt, j); L = []
    for q in range(4): L.append(f"v_pk_mul_f32 v[{b+2*q}:{b+2*q+1}], v[{b+2*q}:{b+2*q+1}], v[{b+8+2*q}:{b+9+2*q}]")
    for q in range(4): L.append(f"v_pk_mul_f32 v[{b+2*q}:{b+2*q+1}], v[{b+2*q}:{b+2*q+1}], v[50:51] op_sel:[0,{rt}] op_sel_hi:[1,{rt}]")
    for q in range(4): L.append(f"v_cvt_pk_bf16_f32 v{b+8+q}, v{b+2*q}, v{b+2*q+1}")
    sc = " sc1" if OPT["fuse"] else ""
    L += [f"s_add_u32 s3, s{60+rt}, s{63+j}", "s_lshl_b32 s3, s3, 10", f"s_add_u32 s3, s3, {OH}",
          f"buffer_store_dwordx4 v[{b+8}:{b+11}], v{VL16}, {srd(S_WS)}, s3 offen{sc}"]
    return L

def code_prefetch(a):
    a("""s_getpc_b64 s[60:61]
pf_base:
s_lshl_b32 s3, s46, 14
v_lshlrev_b32 v88, 7, v0
v_add_u32 v88, s3, v88
v_add_u32 v90, 0x2000, v88
v_min_u32 v88, k1_done - pf_base, v88
v_min_u32 v90, k1_done - pf_base, v90
v_mov_b32 v89, s61
v_mov_b32 v91, s61
v_add_co_u32 v88, vcc, s60, v88
v_addc_co_u32 v89, vcc, 0, v89, vcc
v_add_co_u32 v90, vcc, s60, v90
v_addc_co_u32 v91, vcc, 0, v91, vcc
global_load_dword v92, v[88:89], off
global_load_dword v93, v[90:91], off""")

def consumer(a, st):
    if OPT["pf"]: code_prefetch(a)
    a("""s_lshl_b32 s60, s50, 7
s_lshl_b32 s61, s52, 3
s_add_u32 s60, s60, s61
s_lshl_b32 s61, s47, 1
s_add_u32 s60, s60, s61
v_lshlrev_b32 v32, 4, v0
s_lshr_b32 s45, s60, 5
s_lshl_b32 s45, s45, 5
s_and_b32 s61, s60, 31
s_lshr_b32 s61, s61, 1
s_add_u32 s45, s45, s61
s_lshl_b32 s45, s45, 3
s_lshl_b32 s44, s60, 10""")
    karg_wait(a)
    a(f"buffer_load_dwordx4 v[24:27], v32, {srd(S_X)}, s44 offen\nbuffer_load_dwordx4 v[28:31], v32, {srd(S_X)}, s44 offen offset:1024")
    nonce_load(a)
    cons_setup(a)
    p2_scalars(a)
    st("setup")
    a("s_barrier")
    st("Pm1")
    if OPT["prio"]: a(f"s_setprio {OPT['prio']}")
    for x in cons_reads(0): a(x)
    G = stats_groups(); gi = 0
    store_step = None
    for n in range(32):
        cur = n & 1
        rd = cons_reads(n + 1) if n < 31 else table_reads()
        mf = []
        for j in range(5):
            for rt in range(2):
                b = ACC(rt, j)
                c = f"v[{b}:{b+15}]" if n else "0"
                mf.append(f"v_mfma_f32_32x32x16_bf16 v[{b}:{b+15}], v[{FA[cur]+4*j}:{FA[cur]+4*j+3}], v[{FB[cur]+4*rt}:{FB[cur]+4*rt+3}], {c}")
        a("s_waitcnt lgkmcnt(0)")
        if n == 1: a("s_waitcnt vmcnt(0)")
        k = 0
        if n & 1:
            if n == 13:
                assert store_step is not None and store_step <= 11, store_step
                a("s_waitcnt vmcnt(0)")
            for _ in range(OPT["nb"]): a(mf[k]); k += 1
            a("s_barrier")
        else:
            a(mf[k]); k += 1
        per = OPT['per']
        i = 0
        while k < 10:
            for x in rd[i:i + per]: a(x)
            i += per
            if n >= 1 and gi < len(G):
                for x in G[gi]: a(x)
                gi += 1
                if gi == len(G): store_step = n
            a(mf[k]); k += 1
        for x in rd[i:]: a(x)
        if n in (1, 7, 15, 23): st(f"s{n}")
    assert gi == len(G)
    st("loop_end")
    if OPT["prio"]: a("s_setprio 0")
    a("""s_waitcnt lgkmcnt(0)
v_cmp_gt_u32 vcc, 32, v0
v_cndmask_b32 v46, 0, v42, vcc
v_cndmask_b32 v48, 0, v44, vcc
v_and_b32 v47, 0xffff, v46
v_and_b32 v49, 0xffff, v48
v_mul_f32 v50, v43, v43
v_mul_f32 v51, v45, v45
s_lshl_b32 s60, s50, 2
s_lshl_b32 s3, s47, 1
s_add_u32 s60, s60, s3
s_mul_i32 s60, s60, 144
s_add_u32 s61, s60, 144""")
    for j in range(5):
        for rt in range(2):
            b = ACC(rt, j)
            a(f"v_mfma_f32_32x32x8_bf16 v[{b}:{b+15}], v[{32+2*j}:{33+2*j}], v[{46+2*rt}:{47+2*rt}], v[{b}:{b+15}]")
    a("s_cmp_lg_u32 s48, 0\ns_cbranch_scc1 ep_B")
    a(f"""v_lshrrev_b32 v24, 5, v0
v_mul_u32_u24 v24, 2560, v24
v_bfe_u32 v25, v0, 4, 1
v_and_b32 v26, 15, v0
s_mul_i32 s3, s49, {2*REG2}
v_mul_u32_u24 v27, 1280, v25
v_lshlrev_b32 v28, 4, v26
v_add_u32 v27, v27, v24
v_add_u32 v27, v27, v28
s_lshl_b32 s62, s47, 9
s_add_u32 s62, s62, s3
s_add_u32 s62, s62, 128
v_add_u32 v27, s62, v27
v_mul_u32_u24 v28, 640, v25
v_lshlrev_b32 v29, 3, v26
v_add_u32 v28, v28, v24
v_add_u32 v28, v28, v29
s_lshl_b32 s62, s47, 8
s_add_u32 s62, s62, s3
s_add_u32 s62, s62, {VOFF + 64}
v_add_u32 v28, s62, v28""")
    w2l = w2_loads(VL16) if OPT["fuse"] else []
    w2i = [0]
    def w2_upto(freed_tiles, n):
        for _ in range(n):
            if w2i[0] < len(w2l) and (w2l[w2i[0]][0] >> 1) < freed_tiles:
                for x in w2l[w2i[0]][1]: a(x)
                w2i[0] += 1
    nt_done = 0
    for j in range(3):
        for rt in range(2):
            b = ACC(rt, j)
            for q in range(8):
                a(f"v_pk_mul_f32 v[{b+2*q}:{b+2*q+1}], v[{b+2*q}:{b+2*q+1}], v[{42+2*rt}:{43+2*rt}] op_sel:[0,1] op_sel_hi:[1,1]")
            for q in range(8): a(f"v_cvt_pk_bf16_f32 v{b+q}, v{b+2*q}, v{b+2*q+1}")
            for hh in range(2):
                if j < 2:
                    a(f"ds_write_b128 v27, v[{b+4*hh}:{b+4*hh+3}] offset:{(QOFF, KOFF)[j] + REG2*hh + 256*rt}")
                else:
                    for mm in range(2):
                        a(f"ds_write_b64 v28, v[{b+4*hh+2*mm}:{b+4*hh+2*mm+1}] offset:{REG2*hh + 1280*mm + 128*rt}")
            nt_done += 1
            w2_upto(nt_done - 1, 2)
    for j in (3, 4):
        for rt in range(2):
            for x in ffn_tile(rt, j): a(x)
            nt_done += 1
            w2_upto(nt_done - 1, 2)
    a("s_waitcnt lgkmcnt(0)")
    st("staged")
    w2_upto(9, OPT.get("w2a", 8))
    return w2l, w2i

def attention(a, st, tail_loads):
    Q = 24; K = 32; V = 56; S = [80, 84, 88]; T = 92; PP = 24
    VA = 20; VB = 21
    tl = list(tail_loads or [])
    cnt = [0]
    def tail(n):
        if not tl: return
        cnt[0] += 1
        a(f"s_cmp_lt_u32 s46, 4\ns_cbranch_scc0 at_tl{cnt[0]}")
        for _ in range(n):
            if tl:
                for x in tl.pop(0)[1]: a(x)
        a(f"at_tl{cnt[0]}:")
    a(f"""attn:
s_barrier
s_and_b32 s47, s46, 3
s_lshr_b32 s49, s46, 2
v_lshrrev_b32 v1, 5, v0
s_lshl_b32 s3, s49, 1
v_add_u32 v1, s3, v1
v_lshlrev_b32 v{VA}, 4, v1
v_and_b32 v{T}, 15, v0
v_add_u32 v{VA}, v{VA}, v{T}
v_bfe_u32 v{T+1}, v0, 4, 1
v_mul_u32_u24 v{T+2}, 1280, v{T+1}
v_lshlrev_b32 v{VB}, 4, v{VA}
v_add_u32 v{VB}, v{VB}, v{T+2}
s_mul_i32 s3, s47, {REG2}
v_add_u32 v{VB}, s3, v{VB}""")
    a(f"ds_read_b128 v[{Q}:{Q+3}], v{VB} offset:{QOFF + 128}\nds_read_b128 v[{Q+4}:{Q+7}], v{VB} offset:{QOFF + 128 + 2560}")
    for kb in range(3):
        a(f"ds_read_b128 v[{K+8*kb}:{K+8*kb+3}], v{VB} offset:{KOFF + 64*kb}\nds_read_b128 v[{K+8*kb+4}:{K+8*kb+7}], v{VB} offset:{KOFF + 64*kb + 2560}")
    a(f"""v_lshlrev_b32 v1, 4, v1
v_and_b32 v{T}, 3, v0
v_lshlrev_b32 v{T}, 2, v{T}
v_add_u32 v1, v1, v{T}
v_bfe_u32 v{T}, v0, 2, 2
v_add_u32 v1, v1, v{T}
v_lshlrev_b32 v1, 3, v1
v_mul_u32_u24 v{T}, 640, v{T+1}
v_add_u32 v1, v1, v{T}
s_add_u32 s3, s3, {VOFF}
v_add_u32 v1, s3, v1""")
    for kb in range(3):
        for m in range(4):
            d = V + 8 * kb + 2 * m
            a(f"ds_read_b64_tr_b16 v[{d}:{d+1}], v1 offset:{1280*m + 32*kb}")
    a(f"""v_mov_b32 v{T}, 0
v_mov_b32 v{T+1}, 0
s_cmp_lg_u32 s50, 0
s_cbranch_scc1 at_nomask
v_mov_b32 v{T+2}, 0xf149f2ca
v_cmp_gt_u32 vcc, 8, v{VA}
v_cndmask_b32 v{T}, 0, v{T+2}, vcc
v_cmp_gt_u32 vcc, 4, v{VA}
v_cndmask_b32 v{T+1}, 0, v{T+2}, vcc
at_nomask:""")
    for i in range(4): a(f"v_mov_b32 v{S[0]+i}, v{T}\nv_mov_b32 v{S[1]+i}, v{T+1}")
    tail(OPT["tl0"])
    a("s_waitcnt lgkmcnt(12)")
    for ds in range(4):
        for kb in range(3):
            c = f"v[{S[kb]}:{S[kb]+3}]" if not (kb == 2 and ds == 0) else "0"
            a(f"v_mfma_f32_4x4x4_16b_bf16 v[{S[kb]}:{S[kb]+3}], v[{K+8*kb+2*ds}:{K+8*kb+2*ds+1}], v[{Q+2*ds}:{Q+2*ds+1}], {c}")
    a("""s_mov_b32 s62, 0x11111111
s_mov_b32 s63, 0x11111111
s_mov_b32 s64, 0x33333333
s_mov_b32 s65, 0x33333333
s_mov_b32 s66, 0x77777777
s_mov_b32 s67, 0x77777777
s_mov_b32 s61, 0x3eb8aa3b""")
    tail(OPT["tl1"])
    a(f"v_cndmask_b32 v{S[2]+1}, v{S[2]+1}, v{S[0]+1}, s[62:63]")
    a(f"v_cndmask_b32 v{S[2]+2}, v{S[2]+2}, v{S[0]+2}, s[64:65]")
    a(f"v_cndmask_b32 v{S[2]+3}, v{S[2]+3}, v{S[0]+3}, s[66:67]")
    p = [S[2] + i for i in range(4)] + [S[1] + i for i in range(4)]
    t0, t1, t2, t3 = T, T + 1, T + 2, T + 3
    a(f"v_max3_f32 v{t0}, v{p[0]}, v{p[1]}, v{p[2]}\nv_max3_f32 v{t1}, v{p[3]}, v{p[4]}, v{p[5]}")
    a(f"v_max3_f32 v{t0}, v{t0}, v{p[6]}, v{p[7]}\nv_max_f32 v{t0}, v{t0}, v{t1}\nv_mul_f32 v{t0}, s61, v{t0}")
    for x in p: a(f"v_fma_f32 v{x}, s61, v{x}, -v{t0}")
    for x in p: a(f"v_exp_f32 v{x}, v{x}")
    tail(OPT["tl2"])
    a(f"v_add_f32 v{t1}, v{p[0]}, v{p[1]}\nv_add_f32 v{t2}, v{p[2]}, v{p[3]}\nv_add_f32 v{t3}, v{p[4]}, v{p[5]}\nv_add_f32 v{t0}, v{p[6]}, v{p[7]}")
    a(f"v_add_f32 v{t1}, v{t1}, v{t2}\nv_add_f32 v{t0}, v{t0}, v{t3}\nv_add_f32 v{t0}, v{t0}, v{t1}\nv_rcp_f32 v{t0}, v{t0}")
    for x in p: a(f"v_mul_f32 v{x}, v{x}, v{t0}")
    P0, P1, P2, P3, P4, P5 = [PP + i for i in range(6)]
    a(f"""v_cvt_pk_bf16_f32 v{P0}, v{p[0]}, v{p[1]}
v_cvt_pk_bf16_f32 v{P1}, v{p[2]}, v{p[3]}
v_cvt_pk_bf16_f32 v{P2}, v{p[4]}, v{p[5]}
v_cvt_pk_bf16_f32 v{P3}, v{p[6]}, v{p[7]}
v_mov_b32 v{t0}, 0xffff0000
v_cndmask_b32 v{t1}, 0, v{t0}, s[62:63]
v_cndmask_b32 v{t2}, 0, v{t0}, s[66:67]
v_mov_b32 v{t0}, 0xffff
v_cndmask_b32 v{t3}, 0, v{t0}, s[64:65]
v_or_b32 v{t2}, v{t2}, v{t3}
v_and_b32 v{P4}, v{P0}, v{t1}
v_and_b32 v{P5}, v{P1}, v{t2}
v_xor_b32 v{P0}, v{P0}, v{P4}
v_xor_b32 v{P1}, v{P1}, v{P5}
s_waitcnt lgkmcnt(0)""")
    Pk = [P4, P2, P0]
    tail(99)
    O = [K, K + 4, K + 8, K + 12]
    for kb in range(3):
        for m in range(4):
            c = f"v[{O[m]}:{O[m]+3}]" if kb else "0"
            d = V + 8 * kb + 2 * m
            a(f"v_mfma_f32_4x4x4_16b_bf16 v[{O[m]}:{O[m]+3}], v[{d}:{d+1}], v[{Pk[kb]}:{Pk[kb]+1}], {c}")
    Qo = 48
    for m in range(4):
        a(f"v_cvt_pk_bf16_f32 v{Qo+2*m}, v{O[m]}, v{O[m]+1}\nv_cvt_pk_bf16_f32 v{Qo+2*m+1}, v{O[m]+2}, v{O[m]+3}")
    sc = " sc1" if OPT["fuse"] else ""
    a(f"""v_lshrrev_b32 v{t0}, 5, v0
s_mov_b32 s3, {OH_TILE}
v_mul_lo_u32 v{t0}, v{t0}, s3
v_and_b32 v{t1}, 31, v0
v_lshlrev_b32 v{t1}, 4, v{t1}
v_add_u32 v{t0}, v{t0}, v{t1}
s_lshl_b32 s3, s50, 2
s_lshl_b32 s61, s49, 1
s_add_u32 s3, s3, s61
s_mul_i32 s3, s3, 144
s_lshl_b32 s61, s51, 2
s_add_u32 s3, s3, s61
s_add_u32 s3, s3, s47
s_lshl_b32 s3, s3, 10
s_add_u32 s3, s3, {OH}
buffer_store_dwordx4 v[{Qo}:{Qo+3}], v{t0}, {srd(S_WS)}, s3 offen{sc}
buffer_store_dwordx4 v[{Qo+4}:{Qo+7}], v{t0}, {srd(S_WS)}, s3 offen offset:512{sc}""")
    if OPT["fuse"]:
        st("attn_done")
        a("s_waitcnt vmcnt(0)")
        st("drainedA")
        a("s_branch pub")
    else:
        a("s_branch p1_done")

RW = 20480; RT = 5120; RQ = 1280; RH = 640
def phase2(a, st):
    ws = srd(S_WS)
    a(f"""pub:
s_barrier
s_cmp_lg_u32 s46, 4
s_cbranch_scc1 p2_go
s_mov_b64 exec, 1
s_add_u32 s61, s76, 1
v_mov_b32 v20, s61
s_lshl_b32 s3, s50, 4
s_add_u32 s3, s3, s52
s_lshl_b32 s3, s3, 7
s_add_u32 s3, s3, {FLG2}
buffer_store_dword v20, off, {ws}, s3 sc1
s_mov_b64 exec, -1
p2_go:""")
    st("pub")
    a(f"""buffer_load_dword v20, off, {ws}, s87 sc1
s_add_u32 s76, s76, 1
v_lshlrev_b32 v22, 4, v0
v_add_u32 v21, {OH_TILE}, v22
s_mov_b32 s60, 0""")
    def spin(tag, sreg, first_wait):
        a(first_wait)
        a(f"""p2_spin{tag}:
v_cmp_eq_u32 vcc, s76, v20
s_cbranch_vccnz p2_ok{tag}
s_add_u32 s60, s60, 1
s_cmp_ge_u32 s60, 0x8000
s_cbranch_scc1 p2_ok{tag}
s_sleep 2
buffer_load_dword v20, off, {ws}, s{sreg} sc1
s_waitcnt vmcnt(0)
s_branch p2_spin{tag}
p2_ok{tag}:""")
    spin("B", 87, "s_waitcnt vmcnt(0)")
    st("pollB")
    if OPT["p2prio"]: a(f"s_setprio {OPT['p2prio']}")
    vm = VM()
    free = list(OPT.get("ring0", [96, 104, 88, 12, 2]))
    slot = {}
    nxt = [0]
    lastso = [None]
    def issue(limit):
        while nxt[0] < limit and free:
            i = nxt[0]; nxt[0] += 1
            if i < 10: base, k = 84, i
            elif i < 14: base, k = 85, i - 10
            else: base, k = 86, i - 14
            key = (base, k >> 2)
            if lastso[0] != key:
                a(f"s_add_u32 s89, s{base}, {4096 * (k >> 2)}"); lastso[0] = key
            r = free.pop(0); slot[i] = r
            for rt in range(2):
                a(f"buffer_load_dwordx4 v[{r+4*rt}:{r+4*rt+3}], v{22-rt}, {ws}, s89 offen offset:{1024*(k&3)} sc1"); vm.issue(("L", i))
    issue(10)
    RES = None
    okA = False
    for i in range(18):
        a(vm.wait(("L", i)))
        if i == OPT["chkA"]:
            a("s_mov_b32 s60, 0")
            spin("A", 88, "s_nop 0")
            st("pollA")
            okA = True
            issue(18)
        w = W2R(i); o = slot[i]
        for rt in range(2):
            for nt in range(2):
                c = ACC2 + 16 * (2 * rt + nt)
                cc = f"v[{c}:{c+15}]" if i else "0"
                a(f"v_mfma_f32_32x32x16_bf16 v[{c}:{c+15}], v[{w+4*nt}:{w+4*nt+3}], v[{o+4*rt}:{o+4*rt+3}], {cc}")
        free += [o, w]
        if i == 0:
            a(f"buffer_load_dword v20, off, {ws}, s88 sc1"); vm.issue("pollA")
        issue(18 if okA else 10)
        if nxt[0] == 18 and RES is None and free:
            RES = free.pop(0)
            a(f"""s_and_b32 s60, s46, 3
s_lshl_b32 s60, s60, 3
v_and_b32 v10, 7, v0
v_add_u32 v10, s60, v10
v_and_b32 v11, 15, v10
v_lshlrev_b32 v11, 1, v11
v_lshrrev_b32 v1, 4, v10
v_add_u32 v11, v11, v1
s_lshr_b32 s61, s46, 2
s_lshl_b32 s61, s61, 5
s_lshl_b32 s62, s78, 6
s_add_u32 s61, s61, s62
v_add_u32 v11, s61, v11
v_lshlrev_b32 v11, 10, v11
v_bfe_u32 v1, v0, 3, 2
v_lshlrev_b32 v1, 5, v1
v_add_u32 v11, v11, v1
v_lshrrev_b32 v1, 5, v0
v_lshlrev_b32 v1, 4, v1
v_add_u32 v11, v11, v1
s_lshl_b32 s62, s77, 7
v_add_u32 v11, s62, v11
buffer_load_dwordx4 v[{RES}:{RES+3}], v11, {srd(S_X)}, 0 offen""")
            vm.issue("res")
            a(f"""v_lshlrev_b32 v10, 4, v10
v_lshrrev_b32 v1, 5, v0
v_mul_u32_u24 v1, {4*RW}, v1
v_add_u32 v10, v10, v1
v_bfe_u32 v1, v0, 4, 1
v_mul_u32_u24 v1, {RQ}, v1
v_add_u32 v10, v10, v1
v_bfe_u32 v1, v0, 3, 1
v_mul_u32_u24 v1, {RH}, v1
v_add_u32 v10, v10, v1
s_lshr_b32 s61, s46, 2
s_mul_i32 s61, s61, {2*RT}
v_add_u32 v10, s61, v10""")
            a(f"""v_and_b32 v20, 31, v0
v_lshlrev_b32 v20, 4, v20
v_lshrrev_b32 v1, 5, v0
v_mul_u32_u24 v1, {RH}, v1
v_add_u32 v20, v20, v1
s_mul_i32 s61, s46, {RW}
v_add_u32 v20, s61, v20""")
        if i in (0, 4, 9, 13): st(f"q{i}")
    assert nxt[0] == 18 and RES is not None
    st("p2_loop")
    if OPT["p2prio"]: a("s_setprio 0")
    for rt in range(2):
        for nt in range(2):
            c = ACC2 + 16 * (2 * rt + nt)
            for q in range(4):
                a(f"ds_write_b128 v20, v[{c+4*q}:{c+4*q+3}] offset:{(2*rt+nt)*RT + q*RQ}")
    a(vm.wait("res"))
    a("s_waitcnt lgkmcnt(0)")
    for i in range(4):
        a(f"v_lshlrev_b32 v{24+2*i}, 16, v{RES+i}\nv_and_b32 v{25+2*i}, 0xffff0000, v{RES+i}")
    a("s_barrier")
    st("red_w")
    a(f"v_add_u32 v1, {2*RW}, v10")
    for sidx in range(4):
        for c in range(4):
            nt, hb = c >> 1, c & 1
            base = 10 if sidx < 2 else 1
            off = (sidx & 1) * RW + nt * RT + 2 * hb * RQ
            d = 96 + 16 * sidx + 4 * c
            a(f"ds_read_b128 v[{d}:{d+3}], v{base} offset:{off}")
    a("s_waitcnt lgkmcnt(8)")
    for k in range(8): a(f"v_pk_add_f32 v[{96+2*k}:{97+2*k}], v[{96+2*k}:{97+2*k}], v[{112+2*k}:{113+2*k}]")
    a("s_waitcnt lgkmcnt(0)")
    for k in range(8): a(f"v_pk_add_f32 v[{128+2*k}:{129+2*k}], v[{128+2*k}:{129+2*k}], v[{144+2*k}:{145+2*k}]")
    for k in range(8): a(f"v_pk_add_f32 v[{96+2*k}:{97+2*k}], v[{96+2*k}:{97+2*k}], v[{128+2*k}:{129+2*k}]")
    for c in range(4):
        for r in range(2): a(f"v_permlane32_swap_b32 v{96+4*c+r}, v{96+4*c+r+2}")
    for r in range(2):
        for c in range(4):
            a(f"v_add_f32 v{96+4*c+r}, v{96+4*c+r}, v{96+4*c+r+2}")
    for r in range(2):
        for c in range(4):
            a(f"v_add_f32 v{24+4*r+c}, v{24+4*r+c}, v{96+4*c+r}")
    for k in range(4): a(f"v_cvt_pk_bf16_f32 v{32+k}, v{24+2*k}, v{25+2*k}")
    a(f"buffer_store_dwordx4 v[32:35], v11, {srd(S_OUT)}, 0 offen")
    a(f"""s_or_b32 s3, s2, s46
s_cmp_lg_u32 s3, 0
s_cbranch_scc1 p2_noep
s_mov_b64 exec, 1
v_mov_b32 v20, s76
s_mov_b32 s3, {FLG}
buffer_store_dword v20, off, {ws}, s3
s_mov_b64 exec, -1
p2_noep:""")

def gen_k1(P, name="k1_kernel"):
    a = A()
    a("s_cmp_ge_u32 s2, 256\ns_cbranch_scc1 k1_done")
    stc = Stamps(a, VSTAMP, 1); stp = Stamps(a, VSTAMP, 1)
    if gen1.PROF:
        stc("real0", True); stc("start")
        stp.names = list(stc.names); stp.n = stc.n
    prologue(a)
    a("s_cmp_lt_u32 s46, 4\ns_cbranch_scc1 cons")
    prod_setup_common(a)
    a("s_cmp_lg_u32 s48, 0\ns_cbranch_scc1 prodB")
    n0 = stp.n; nm0 = list(stp.names)
    producer(a, "A", stp)
    a("prodB:")
    stp.n = n0; stp.names = list(nm0)
    producer(a, "B", stp)
    a("cons:")
    w2l, w2i = consumer(a, stc)
    sta = Stamps(a, VSTAMP, 1); sta.n = 16; sta.names = [None] * 16
    attention(a, sta, w2l[w2i[0]:] if OPT["fuse"] else None)
    a("ep_B:\ns_nop 3")
    k = 0; nd = 0
    for j in range(5):
        for rt in range(2):
            for x in ffn_tile(rt, j): a(x)
            nd += 1
            for _ in range(2):
                if OPT["fuse"] and k < len(w2l) and (w2l[k][0] >> 1) < nd - 1:
                    for x in w2l[k][1]: a(x)
                    k += 1
    if OPT["fuse"]:
        sta.n = 16; sta.names = [None] * 16
        sta("attn_done")
        a("s_waitcnt vmcnt(0)")
        sta("drainedA")
        a("s_barrier")
        while k < len(w2l):
            for x in w2l[k][1]: a(x)
            k += 1
        a("s_branch p2_go")
        st2 = Stamps(a, VSTAMP, 1); st2.n = 18; st2.names = list(sta.names) if gen1.PROF else []
        phase2(a, st2)
        if gen1.PROF:
            for S_ in (stc, stp):
                S_.names = S_.names + ["-"] * (16 - len(S_.names)) + st2.names[16:]
    a("p1_done:")
    if gen1.PROF:
        a(f"s_memtime s[100:101]\ns_waitcnt lgkmcnt(0)\nv_writelane_b32 v{VSTAMP}, s100, 30")
    a("s_waitcnt vmcnt(0)")
    if gen1.PROF:
        a(f"s_memtime s[100:101]\ns_waitcnt lgkmcnt(0)\nv_writelane_b32 v{VSTAMP}, s100, 31")
        a(f"s_memrealtime s[100:101]\ns_waitcnt lgkmcnt(0)\nv_writelane_b32 v{VSTAMP}, s100, 32")
        stc.dump(46, 24)
        print("CONS", stc.names, file=sys.stderr); print("PROD", stp.names, file=sys.stderr)
        open("last.names", "w").write(repr({"cons": stc.names, "prod": stp.names}))
    a("k1_done:\ns_endpgm")
    gen1.finish(P, name, a, 256, LDS1)

if __name__ == "__main__":
    if len(sys.argv) > 2 and sys.argv[2] == "prof": gen1.PROF = True
    P = Prog()
    if OPT["fuse"]:
        gen_k1(P, NAME + "_kernel")
        open(sys.argv[1], "w").write(P.render(single=True))
    else:
        gen_k1(P)
        gen1.gen_k2(P)
        open(sys.argv[1], "w").write(P.render())
```

```python
import sys; sys.path.insert(0, "work")
from asmlib import *
import hazard, gen1
from gen1 import Stamps, DPPM
import os

OPT = dict(fuse=0, nb=2, prio=3, per=2, fill=3, ramp=1, pf=1, rot=1, kpre=8, fa=5, pollA=3, nohalo=0, w2s=12, x16=1,
           polls=11, tl0=4, tl1=4, tl2=4, w2a=4, chkA=5, p2prio=0)
for kv in os.environ.get("OPT", "").split(","):
    if "=" in kv:
        k, v = kv.split("="); OPT[k] = int(v)

STATS = 0
OH = 65536
OH_TILE = 144 * 1024
CSP = OH + 64 * OH_TILE
PK = CSP + 16 * 16 * 4 * 320
WS_USED = PK + 8 * 144 * 2048
FLG = 16384
FLG2 = FLG + 12288
XB = 2048 * 1024
WQKV_B = 512 * 3072
WG_B = 512 * 3584
WO_B = 512 * 1024
WD_B = 1792 * 1024

WST = 20480
XRING = 102400; XST = 18432
TAB = 157696
CST = TAB; RST = TAB + 2560
LDS1 = 163840
REG2 = 36864
QOFF = 20480; KOFF = 25600; VOFF = 30720

S_X, S_QKV, S_G, S_U, S_WS, S_DBG, S_WD, S_WO, S_OUT = 4, 8, 12, 16, 20, 24, 28, 32, 36
S_PK = 68
def srd(n): return f"s[{n}:{n+3}]"

class VM:
    def __init__(self): self.q = []
    def issue(self, tag): self.q.append(tag)
    def wait(self, *tags):
        idx = [i for i, t in enumerate(self.q) if t in tags]
        if not idx: return None
        n = len(self.q) - 1 - max(idx)
        assert n <= 63, n
        return f"s_waitcnt vmcnt({n})"

VT = [2, 3, 4, 5, 6]; VTH = [7, 8, 9, 10, 11]; VX = [12, 13, 14, 15]; VC = [16, 17, 18, 19, 20]; VR = 21; VL16 = 22; VSTAMP = 23
FA = [32, 60]; FB = [52, 80]
def ACC(rt, j): return 96 + 80 * rt + 16 * j
W2BASE = [176, 112, 192, 128, 208, 144, 224, 160, 240]
def W2R(i): return W2BASE[i >> 1] + 8 * (i & 1)
ACC2 = 24
RING0 = [96, 104, 88, 12]

def prologue(a):
    if OPT["x16"]:
        a("s_load_dwordx16 s[76:91], s[0:1], 0\ns_load_dwordx4 s[92:95], s[0:1], 64")
    else:
        for (s, off) in ((S_X, 0), (S_QKV, 8), (S_G, 32), (S_U, 40), (S_WS, 72), (S_DBG, 64), (S_WD, 48), (S_WO, 16), (S_OUT, 56)):
            a(f"s_load_dwordx2 s[{s}:{s+1}], s[0:1], {off}")
    a("""v_lshrrev_b32 v1, 6, v0
v_and_b32 v0, 63, v0
s_and_b32 s60, s2, 7
s_lshr_b32 s61, s2, 3
v_readfirstlane_b32 s46, v1
s_lshr_b32 s50, s60, 2
s_lshl_b32 s50, s50, 3
s_and_b32 s62, s61, 7
s_add_u32 s50, s50, s62
s_and_b32 s52, s60, 3
s_lshl_b32 s52, s52, 2
s_lshr_b32 s62, s61, 3
s_add_u32 s52, s52, s62
s_lshr_b32 s48, s52, 3
s_and_b32 s51, s52, 7
s_and_b32 s47, s46, 3""")
    for (s, nb) in ((S_X, XB), (S_QKV, WQKV_B), (S_G, WG_B), (S_U, WG_B), (S_WS, WS_USED), (S_DBG, 256), (S_WD, WD_B), (S_WO, WO_B), (S_OUT, XB)):
        a(f"s_mov_b32 s{s+2}, {nb}\ns_mov_b32 s{s+3}, 0x00020000")
    a("""s_mul_i32 s74, s51, 160
s_add_u32 s74, s74, 512
s_and_b32 s75, s51, 1
s_lshl_b32 s72, s75, 5
s_add_u32 s72, s72, s74
s_add_u32 s73, s74, 128
s_cmp_lg_u32 s75, 0
s_cselect_b32 s73, s74, s73""")

def karg_wait(a):
    a("s_waitcnt lgkmcnt(0)")
    if OPT["x16"]:
        for (s, off) in ((S_X, 0), (S_QKV, 8), (S_G, 32), (S_U, 40), (S_WS, 72), (S_DBG, 64), (S_WD, 48), (S_WO, 16), (S_OUT, 56)):
            a(f"s_mov_b64 s[{s}:{s+1}], s[{76+off//4}:{77+off//4}]")

def nonce_load(a):
    a(f"s_load_dword s76, s[{S_WS}:{S_WS+1}], {FLG}")

def p2_scalars(a):
    a(f"""s_and_b32 s60, s2, 7
s_lshr_b32 s61, s2, 3
s_lshr_b32 s77, s61, 2
s_lshl_b32 s78, s60, 2
s_and_b32 s62, s61, 3
s_add_u32 s78, s78, s62
s_and_b32 s79, s77, 1
s_lshl_b32 s79, s79, 2
s_add_u32 s79, s79, s46
s_and_b32 s79, s79, 7
s_mul_i32 s60, s77, 144
s_mul_i32 s61, s79, 10
s_add_u32 s61, s61, 64
s_lshl_b32 s62, s79, 2
s_add_u32 s80, s60, s61
s_lshl_b32 s80, s80, 11
s_add_u32 s80, s80, {PK}
s_add_u32 s82, s60, s62
s_lshl_b32 s82, s82, 11
s_add_u32 s82, s82, {PK}
s_add_u32 s81, s82, {32*2048}
s_mul_i32 s60, s78, 288
s_add_u32 s84, s60, s61
s_lshl_b32 s84, s84, 10
s_add_u32 s84, s84, {OH}
s_add_u32 s86, s60, s62
s_lshl_b32 s86, s86, 10
s_add_u32 s86, s86, {OH}
s_add_u32 s85, s86, {32*1024}
s_lshr_b32 s60, s78, 1
s_lshl_b32 s60, s60, 4
s_add_u32 s88, s60, s79
s_lshl_b32 s88, s88, 7
s_add_u32 s88, s88, {FLG2}
s_add_u32 s87, s88, 1024""")

def w2_loads(vl16):
    out = []
    for i in range(18):
        if i < 10: base, k = 80, i
        elif i < 14: base, k = 81, i - 10
        else: base, k = 82, i - 14
        pre = []
        if k % 2 == 0: pre = [f"s_add_u32 s89, s{base}, {2048*k}"]
        r = W2R(i)
        for nt in range(2):
            out.append((i, pre + [f"buffer_load_dwordx4 v[{r+4*nt}:{r+4*nt+3}], v{vl16}, {srd(S_WS)}, s89 offen offset:{2048*(k%2) + 1024*nt} sc1"]))
            pre = []
    return out

def prod_setup_common(a):
    a("""v_lshrrev_b32 v58, 3, v0
s_lshl_b32 s3, s47, 3
v_add_u32 v56, s3, v58
v_and_b32 v57, 7, v0
v_bfe_u32 v59, v0, 4, 1
v_lshlrev_b32 v59, 2, v59
v_xor_b32 v57, v57, v59
s_and_b32 s3, s47, 1
s_lshl_b32 s3, s3, 1
v_xor_b32 v57, s3, v57
v_lshlrev_b32 v57, 4, v57
s_lshl_b32 s43, s47, 10
s_lshl_b32 s44, s47, 12
s_lshl_b32 s45, s47, 9
s_mov_b32 s53, 0x3f803f80""")
    a("""s_lshl_b32 s3, s50, 7
s_lshl_b32 s60, s47, 5
s_add_u32 s3, s3, s60
v_lshlrev_b32 v59, 1, v58
v_add_u32 v59, s3, v59
v_lshlrev_b32 v59, 10, v59
v_and_b32 v60, 7, v0
v_lshrrev_b32 v61, 4, v0
v_xor_b32 v60, v60, v61
v_lshlrev_b32 v60, 4, v60
v_add_u32 v6, v59, v60
v_xor_b32 v60, 64, v60
v_add_u32 v7, v59, v60
v_add_u32 v7, 0x4000, v7""")
    if OPT["rot"]:
        a("""s_and_b32 s3, s50, 7
s_mul_i32 s40, s3, 196608
s_mul_i32 s41, s3, 229376
s_lshl_b32 s42, s3, 7""")
    else:
        a("s_mov_b32 s40, 0\ns_mov_b32 s41, 0\ns_mov_b32 s42, 0")

def prod_late_setup(a, T):
    a(f"""v_lshrrev_b32 v58, 4, v0
v_bfe_u32 v59, v0, 2, 2
v_lshlrev_b32 v60, 3, v58
v_add_u32 v60, v60, v59
v_lshlrev_b32 v60, 7, v60
v_and_b32 v61, 3, v0
v_lshlrev_b32 v61, 3, v61
v_add_u32 v60, v60, v61
v_and_b32 v61, 2, v59
v_and_b32 v62, 1, v58
v_xor_b32 v61, v61, v62
v_xor_b32 v61, s47, v61
v_lshlrev_b32 v61, 5, v61
v_add_u32 v9, v60, v61
v_add_u32 v10, {3*WST}, v9""")
    a(f"""s_lshl_b32 s3, s50, 7
s_lshl_b32 s60, s47, 6
s_add_u32 s61, s3, s60
v_add_u32 v14, s61, v0
v_lshlrev_b32 v14, 3, v14
v_add_u32 v15, s60, v0
v_lshlrev_b32 v15, 3, v15
v_add_u32 v15, {RST}, v15
s_cmp_lt_u32 s47, 2
s_cbranch_scc1 psa_done{T}
v_and_b32 v58, 7, v0
v_bfe_u32 v59, v0, 3, 1
v_lshlrev_b32 v59, 4, v59
v_add_u32 v58, v58, v59
s_sub_u32 s3, s3, 24
v_add_u32 v14, s3, v58
v_lshlrev_b32 v14, 3, v14
v_and_b32 v15, 15, v0
v_lshlrev_b32 v15, 3, v15
v_add_u32 v15, {RST + 128*8}, v15
s_cmp_lg_u32 s50, 0
s_cbranch_scc1 psa_done{T}
v_mov_b32 v14, 0x80000000
psa_done{T}:""")
    p2_scalars(a)
    a(f"""s_lshl_b32 s3, s50, 8
s_add_u32 s3, s3, {FLG + 256}
s_lshl_b32 s60, s52, 8
s_add_u32 s60, s60, {FLG + 256*17}
s_lshl_b32 s61, s77, 8
s_add_u32 s61, s61, {FLG + 256*33}
v_lshlrev_b32 v58, 4, v0
v_mov_b32 v13, s3
v_add_u32 v59, s3, v58
v_cmp_gt_u32 vcc, 4, v0
v_cndmask_b32 v13, v13, v59, vcc
v_subrev_u32 v59, 4, v0
v_cmp_gt_u32 vcc, 4, v59
s_sub_u32 s60, s60, 64
v_add_u32 v59, s60, v58
v_cndmask_b32 v13, v13, v59, vcc
v_subrev_u32 v59, 8, v0
v_cmp_gt_u32 vcc, 8, v59
s_sub_u32 s61, s61, 128
v_add_u32 v59, s61, v58
v_cndmask_b32 v13, v13, v59, vcc""")
    if T == "A":
        a(f"""s_sub_u32 s61, s3, {256 - 48}
s_cmp_eq_u32 s50, 0
s_cselect_b32 s61, s3, s61
v_cmp_eq_u32 vcc, 16, v0
v_mov_b32 v59, s61
v_cndmask_b32 v13, v13, v59, vcc""")
    a(f"""s_lshl_b32 s61, s52, 2
s_add_u32 s3, s3, s61
s_lshl_b32 s61, s50, 2
s_add_u32 s60, s60, s61
s_add_u32 s60, s60, 64
s_and_b32 s61, s2, 7
s_lshl_b32 s61, s61, 8
s_lshr_b32 s62, s2, 3
s_lshl_b32 s62, s62, 2
s_add_u32 s61, s61, s62
s_add_u32 s61, s61, {FLG + 256*33}
v_mov_b32 v21, s3
v_mov_b32 v59, s60
v_cmp_eq_u32 vcc, 1, v0
v_cndmask_b32 v21, v21, v59, vcc
v_mov_b32 v59, s61
v_cmp_eq_u32 vcc, 2, v0
v_cndmask_b32 v21, v21, v59, vcc""")
    a(f"""v_lshrrev_b32 v58, 5, v0
v_lshlrev_b32 v58, 2, v58
v_bfe_u32 v59, v0, 4, 1
v_lshlrev_b32 v59, 3, v59
v_add_u32 v58, v58, v59
v_lshlrev_b32 v58, 10, v58
v_and_b32 v59, 15, v0
v_lshlrev_b32 v59, 3, v59
v_add_u32 v58, v58, v59
s_and_b32 s60, s2, 7
s_lshl_b32 s61, s60, 7
v_add_u32 v54, s61, v58
v_lshlrev_b32 v55, 4, v0
v_lshlrev_b32 v22, 4, v0
s_lshr_b32 s61, s2, 3
s_lshl_b32 s62, s61, 2
s_add_u32 s62, s62, s47
s_mul_i32 s60, s60, 144
s_add_u32 s92, s60, s62
s_lshl_b32 s92, s92, 11
s_add_u32 s92, s92, {PK}
s_add_u32 s93, s60, s61
s_add_u32 s93, s93, 128
s_lshl_b32 s93, s93, 11
s_add_u32 s93, s93, {PK}
s_add_u32 s91, s61, 96
s_lshl_b32 s91, s91, 14
s_cmp_lt_u32 s62, 32
s_cselect_b32 s{S_PK}, s{S_WO}, s{S_WD}
s_cselect_b32 s{S_PK+1}, s{S_WO+1}, s{S_WD+1}
s_cselect_b32 s{S_PK+2}, s{S_WO+2}, s{S_WD+2}
s_mov_b32 s{S_PK+3}, 0x00020000
s_cselect_b32 s3, 0, 32
s_sub_u32 s90, s62, s3
s_lshl_b32 s90, s90, 14
v_mov_b32 v53, v55
v_mov_b32 v52, v54
s_and_b32 s3, s61, 3
s_cmp_eq_u32 s3, s47
s_cselect_b32 s3, 1, 0
s_cmp_lt_u32 s61, 16
s_cselect_b32 s3, s3, 0
s_cmp_lg_u32 s3, 0
s_cbranch_scc1 pk_act{T}
v_mov_b32 v53, 0x80000000
v_mov_b32 v52, 0x80000000
pk_act{T}:""")
    a(f"""s_lshl_b32 s94, s52, 6
s_add_u32 s94, s94, s47
s_mul_i32 s94, s94, 320
s_add_u32 s94, s94, {CSP}
s_mul_i32 s95, s50, 1280
s_add_u32 s95, s95, s94""")

def pack_valu(a, raw, out):
    for nt in range(2):
        F = out + 4 * nt
        r = [raw + 2 * q + nt for q in range(4)]
        a(f"v_perm_b32 v{F}, v{r[1]}, v{r[0]}, s60\nv_perm_b32 v{F+2}, v{r[1]}, v{r[0]}, s61")
        a(f"v_perm_b32 v{F+1}, v{r[3]}, v{r[2]}, s60\nv_perm_b32 v{F+3}, v{r[3]}, v{r[2]}, s61")
    for nt in range(2):
        F = out + 4 * nt
        a(f"v_permlane16_swap_b32 v{F}, v{F+2}\nv_permlane16_swap_b32 v{F+1}, v{F+3}")

def producer(a, T, st):
    vm = VM()
    A_ = T == "A"
    if A_:
        a("""s_movk_i32 s60, 3072
v_mul_lo_u32 v58, v56, s60
s_lshl_b32 s3, s51, 7
v_add_u32 v58, s3, v58
v_add_u32 v2, v58, v57
s_movk_i32 s60, 3584
v_mul_lo_u32 v58, v56, s60
v_add_u32 v58, s3, v58
v_add_u32 v3, v58, v57
v_xor_b32 v57, 32, v57
v_add_u32 v4, v58, v57""")
        a(f"""s_lshr_b32 s3, s47, 1
s_lshl_b32 s60, s50, 7
s_add_u32 s3, s3, s60
s_sub_u32 s3, s3, 16
s_and_b32 s60, s47, 1
s_lshl_b32 s60, s60, 3
s_add_u32 s3, s3, s60
v_lshrrev_b32 v58, 3, v0
v_lshlrev_b32 v58, 1, v58
v_add_u32 v58, s3, v58
v_lshlrev_b32 v58, 10, v58
v_and_b32 v59, 7, v0
v_lshrrev_b32 v60, 4, v0
v_xor_b32 v59, v59, v60
s_lshl_b32 s60, s47, 1
v_xor_b32 v59, s60, v59
v_and_b32 v59, 7, v59
v_lshlrev_b32 v59, 4, v59
v_add_u32 v8, v58, v59
s_mov_b32 s58, -1
s_mov_b32 s59, 0
s_cmp_lg_u32 s50, 0
s_cbranch_scc1 pA_hok
v_mov_b32 v8, 0x80000000
pA_hok:""")
    else:
        a("""s_movk_i32 s60, 3584
v_mul_lo_u32 v58, v56, s60
s_lshl_b32 s3, s72, 1
v_add_u32 v59, s3, v58
v_add_u32 v2, v59, v57
v_xor_b32 v60, 32, v57
v_add_u32 v3, v59, v60
s_lshl_b32 s3, s73, 1
v_add_u32 v59, s3, v58
v_and_b32 v57, 48, v57
v_and_b32 v60, 48, v60
v_add_u32 v4, v59, v57
v_add_u32 v5, v59, v60
v_bfe_u32 v58, v0, 2, 1
v_bfe_u32 v59, v0, 4, 1
v_xor_b32 v58, v58, v59
v_cmp_eq_u32 vcc, 0, v58
s_mov_b64 s[54:55], vcc
v_cmp_eq_u32 vcc, 1, v58
s_mov_b64 s[56:57], vcc""")
    def W(s):
        base = (s % 5) * WST
        if A_:
            lst = [(2, S_QKV, 40, 0), (2, S_QKV, 40, 1024), (2, S_QKV, 40, 2048), (3, S_G, 41, 0), (4, S_U, 41, 0)]
        else:
            lst = [(2, S_G, 41, 0), (2, S_G, 41, 128), (3, S_U, 41, 0), (3, S_U, 41, 128)]
        for sig, (v, sr, so, imm) in enumerate(lst):
            a(f"s_add_u32 m0, s43, {base + sig*4096 - imm}")
            a(f"buffer_load_dwordx4 v{v}, {srd(sr)}, s{so} offen offset:{imm} lds"); vm.issue(("W", s))
        if not A_:
            a(f"s_add_u32 m0, s43, {base + 4*4096}\ns_mov_b64 exec, s[54:55]")
            a(f"buffer_load_dwordx4 v4, {srd(S_G)}, s41 offen lds"); vm.issue(("W", s))
            a("s_mov_b64 exec, s[56:57]")
            a(f"buffer_load_dwordx4 v5, {srd(S_U)}, s41 offen lds"); vm.issue(("W", s))
            a("s_mov_b64 exec, -1")
        if s < 15:
            if A_: a(f"s_add_u32 s40, s40, 98304\ns_cmp_eq_u32 s40, {16*98304}\ns_cselect_b32 s40, 0, s40")
            a(f"s_add_u32 s41, s41, 114688\ns_cmp_eq_u32 s41, {16*114688}\ns_cselect_b32 s41, 0, s41")
    def X(g):
        xs = XRING + (g % 3) * XST
        for par in range(2):
            for half in range(2):
                a(f"s_add_u32 m0, s44, {xs + 2048*par + 1024*half - 1024*par}")
                a(f"buffer_load_dwordx4 v{6+half}, {srd(S_X)}, s42 offen offset:{1024*par} lds"); vm.issue(("X", g))
        if A_:
            a(f"s_add_u32 m0, s45, {xs + 16384}\ns_mov_b64 exec, s[58:59]")
            a(f"buffer_load_dwordx4 v8, {srd(S_X)}, s42 offen lds"); vm.issue(("X", g))
            a("s_mov_b64 exec, -1")
        if g < 7: a("s_add_u32 s42, s42, 128\ns_and_b32 s42, s42, 1023")
    sched = {s: [] for s in range(-1, 16)}
    if OPT["ramp"] == 0:
        sched[-1] = [("W", 0), ("X", 0), ("W", 1), ("X", 1), ("W", 2), ("W", 3), ("X", 2), ("W", 4)]
        for s in range(1, 16):
            if s + 4 < 16: sched[s].append(("W", s + 4))
            if (s - 1) & 1 and (s - 2) // 2 + 3 < 8: sched[s].append(("X", (s - 2) // 2 + 3))
    else:
        if OPT["ramp"] == 1:
            sched[-1] = [("W", 0), ("X", 0), ("W", 1), ("X", 1)]
            sched[0] = [("W", 2)]; sched[1] = [("W", 3), ("X", 2)]; sched[2] = [("W", 4), ("X", 3)]; sched[3] = [("W", 5), ("W", 6)]
            sched[4] = [("W", 7), ("X", 4)]; sched[5] = [("W", 8), ("W", 9)]; nxt = 10; s0 = 6
        elif OPT["ramp"] == 2:
            sched[-1] = [("W", 0), ("X", 0), ("W", 1)]
            sched[0] = [("X", 1), ("W", 2)]; sched[1] = [("W", 3), ("X", 2)]; sched[2] = [("W", 4), ("X", 3)]; sched[3] = [("W", 5), ("W", 6)]
            sched[4] = [("W", 7), ("X", 4)]; sched[5] = [("W", 8), ("W", 9)]; nxt = 10; s0 = 6
        elif OPT["ramp"] == 3:
            sched[-1] = [("W", 0), ("X", 0), ("W", 1), ("X", 1), ("W", 2)]
            sched[0] = [("W", 3)]; sched[1] = [("W", 4), ("X", 2)]; sched[2] = [("W", 5), ("X", 3)]; sched[3] = [("W", 6), ("W", 7)]
            sched[4] = [("W", 8), ("X", 4)]; sched[5] = [("W", 9)]; nxt = 10; s0 = 6
        for s in range(s0, 16):
            if nxt < 16 and nxt <= s + 4: sched[s].append(("W", nxt)); nxt += 1
            if (s - 1) & 1 and 5 <= (s - 2) // 2 + 3 < 8: sched[s].append(("X", (s - 2) // 2 + 3))
    for s in range(-1, 16):
        for (k, i) in sched[s]:
            if k == "W": assert i < 5 or i - 5 <= s - 1, (s, k, i); assert i >= s + 1 or s < 0 or i > s, (s, i)
            else: assert i < 3 or 2 * (i - 3) + 1 <= s - 1, (s, k, i)
    def do(ops):
        for (k, i) in ops: (W if k == "W" else X)(i)
    karg_wait(a)
    st("karg")
    do(sched[-1])
    nonce_load(a)
    st("dma_issued")
    prod_late_setup(a, T)
    if A_:
        a(f"""v_and_b32 v58, 15, v0
v_lshrrev_b32 v59, 1, v58
v_lshrrev_b32 v60, 4, v0
v_xor_b32 v59, v59, v60
v_lshlrev_b32 v59, 4, v59
v_lshlrev_b32 v58, 7, v58
v_add_u32 v58, v58, v59
v_add_u32 v11, {XRING + 128*128}, v58
v_xor_b32 v12, 64, v11""")
        for r in range(24, 32): a(f"v_mov_b32 v{r}, 0")
    a(vm.wait(("W", 0), ("X", 0)))
    a("s_barrier")
    st("Pm1")
    HF = [76, 88]
    def halo_mfma(s):
        h = HF[s & 1]
        a(f"v_mfma_f32_16x16x32_bf16 v[24:27], v[{h}:{h+3}], v[{h+8}:{h+11}], v[24:27]")
        a(f"v_mfma_f32_16x16x32_bf16 v[28:31], v[{h+4}:{h+7}], v[{h+8}:{h+11}], v[28:31]")
    w2l = w2_loads(55)
    w2i = 0
    for s in range(16):
        slot = s % 5
        vb, off0 = (9, slot * WST) if slot < 3 else (10, (slot - 3) * WST)
        if A_ and s >= 1 and not OPT["nohalo"]: halo_mfma(s - 1)
        if s in (4, 5):
            raw = 32 if s == 4 else 40
            a(vm.wait(("pkraw", s - 4)))
            a("s_mov_b32 s60, 0x05040100\ns_mov_b32 s61, 0x07060302")
            pack_valu(a, raw, 60)
            dv = 55 if s == 4 else 53
            so = 92 if s == 4 else 93
            a(f"buffer_store_dwordx4 v[60:63], v{dv}, {srd(S_WS)}, s{so} offen sc1"); vm.issue("pub")
            a(f"buffer_store_dwordx4 v[64:67], v{dv}, {srd(S_WS)}, s{so} offen offset:1024 sc1"); vm.issue("pub")
        if s == 7:
            a(f"""s_cmp_lg_u32 s47, 0
s_cbranch_scc1 pf_skip{T}
s_waitcnt lgkmcnt(0)
s_add_u32 s76, s76, 1
s_mov_b64 exec, 7
v_mov_b32 v58, s76
s_sub_u32 s76, s76, 1
buffer_store_dword v58, v21, {srd(S_WS)}, 0 offen sc1
s_mov_b64 exec, -1
pf_skip{T}:""")
        if s == OPT["polls"]:
            a(f"""s_cmp_lg_u32 s47, 0
s_cbranch_scc1 pl_skip{T}
buffer_load_dwordx4 v[68:71], v13, {srd(S_WS)}, 0 offen sc1
pl_skip{T}:""")
            npoll0 = len(vm.q)
        do(sched[s])
        if s == 2:
            for q in range(4):
                a(f"buffer_load_dwordx2 v[{32+2*q}:{33+2*q}], v54, {srd(S_PK)}, s90 offen offset:{1024*q}"); vm.issue(("pkraw", 0))
            for q in range(4):
                a(f"buffer_load_dwordx2 v[{40+2*q}:{41+2*q}], v52, {srd(S_WD)}, s91 offen offset:{1024*q}"); vm.issue(("pkraw", 1))
        if A_ and not OPT["nohalo"]:
            h = HF[s & 1]
            for k, sig in enumerate((1, 2)):
                for i in range(2):
                    d = h + 4 * k + 2 * i
                    a(f"ds_read_b64_tr_b16 v[{d}:{d+1}], v{vb} offset:{off0 + sig*4096 + 512*i}")
            a(f"ds_read_b128 v[{h+8}:{h+11}], v{11 + (s & 1)} offset:{((s >> 1) % 3) * XST}")
        if s in (0, 1):
            a(f"s_lshr_b32 s3, s50, 3\ns_cmp_lg_u32 s3, {s}\ns_cbranch_scc1 cs_skip{T}{s}")
            for sig in range(5):
                for i in range(2):
                    d = 32 + 4 * sig + 2 * i
                    a(f"ds_read_b64_tr_b16 v[{d}:{d+1}], v{vb} offset:{off0 + sig*4096 + 512*i}")
            for r in range(16, 21): a(f"v_mov_b32 v{r}, 0")
            a("v_lshlrev_b32 v56, 2, v0")
            a("s_waitcnt lgkmcnt(0)")
            for d in range(4):
                for sig in range(5):
                    a(f"v_dot2c_f32_bf16 v{16+sig}, s53, v{32+4*sig+d}")
            a("""v_permlane32_swap_b32 v16, v18
v_permlane32_swap_b32 v17, v19
v_mov_b32 v58, v20
v_add_f32 v16, v16, v18
v_add_f32 v17, v17, v19
v_permlane32_swap_b32 v20, v58
v_add_f32 v20, v20, v58
v_permlane16_swap_b32 v16, v17
v_mov_b32 v58, v20
v_add_f32 v16, v16, v17
v_permlane16_swap_b32 v20, v58
v_add_f32 v20, v20, v58""")
            a(f"""buffer_store_dword v16, v56, {srd(S_WS)}, s95 offen sc1
s_mov_b64 exec, 0xffff
buffer_store_dword v20, v56, {srd(S_WS)}, s95 offen offset:256 sc1
s_mov_b64 exec, -1
cs_skip{T}{s}:""")
        if s == 11:
            a(f"""s_cmp_lg_u32 s47, 0
s_cbranch_scc1 pp_done{T}
s_add_u32 s61, s76, 1
s_mov_b32 s60, 0
s_waitcnt vmcnt({len(vm.q) - npoll0})
pp_spin{T}:
v_xor_b32 v58, s61, v68
v_xor_b32 v59, s61, v69
v_xor_b32 v60, s61, v70
v_xor_b32 v61, s61, v71
v_or_b32 v58, v58, v59
v_or3_b32 v58, v58, v60, v61
v_cmp_ne_u32 vcc, 0, v58
s_cbranch_vccz pp_done{T}
s_add_u32 s60, s60, 1
s_cmp_ge_u32 s60, 0x8000
s_cbranch_scc1 pp_done{T}
s_sleep 4
buffer_load_dwordx4 v[68:71], v13, {srd(S_WS)}, 0 offen sc1
s_waitcnt vmcnt(0)
s_branch pp_spin{T}
pp_done{T}:""")
        if s == 12:
            a(f"buffer_load_dwordx2 v[56:57], v14, {srd(S_WS)}, 0 offen sc1"); vm.issue("stats")
            a("v_lshlrev_b32 v58, 2, v0\nv_lshrrev_b32 v59, 4, v0\nv_mul_u32_u24 v59, 1280, v59\nv_and_b32 v60, 15, v0\nv_lshlrev_b32 v60, 2, v60\nv_add_u32 v59, v59, v60")
            for tq in range(16):
                if tq % 3 == 0: a(f"s_add_u32 s3, s94, {1280*tq}")
                a(f"buffer_load_dword v{32+tq}, v58, {srd(S_WS)}, s3 offen offset:{1280*(tq%3)} sc1"); vm.issue("csp")
            for q in range(4):
                a(f"s_add_u32 s3, s94, {5120*q}")
                a(f"buffer_load_dword v{48+q}, v59, {srd(S_WS)}, s3 offen offset:256 sc1"); vm.issue("csp")
        if OPT["fuse"] and s >= OPT["w2s"]:
            n = {12: 4, 13: 12, 14: 10, 15: 10}[s] if OPT["w2s"] == 12 else 36 // (16 - OPT["w2s"]) + 1
            for _ in range(n):
                if w2i < len(w2l):
                    for x in w2l[w2i][1]: a(x)
                    vm.issue(("w2", w2l[w2i][0])); w2i += 1
        if s == 13:
            a(vm.wait("stats"))
            a("ds_write_b64 v15, v[56:57]")
        if s == 14:
            a(vm.wait("csp"))
            for k in range(4): a(f"v_pk_add_f32 v[{32+2*k}:{33+2*k}], v[{32+2*k}:{33+2*k}], v[{40+2*k}:{41+2*k}]")
            a("v_pk_add_f32 v[48:49], v[48:49], v[50:51]")
            for k in range(2): a(f"v_pk_add_f32 v[{32+2*k}:{33+2*k}], v[{32+2*k}:{33+2*k}], v[{36+2*k}:{37+2*k}]")
            a("v_add_f32 v20, v48, v49\nv_pk_add_f32 v[32:33], v[32:33], v[34:35]\nv_mov_b32 v58, v20")
            a("v_add_f32 v16, v32, v33\nv_permlane32_swap_b32 v20, v58\nv_add_f32 v20, v20, v58\nv_mov_b32 v58, v20\nv_permlane16_swap_b32 v20, v58\nv_add_f32 v20, v20, v58")
            for (x, t) in ((16, 60), (20, 66)):
                a(f"""v_cvt_pk_bf16_f32 v{t}, v{x}, v{x}
v_and_b32 v{t+2}, 0xffff0000, v{t}
v_sub_f32 v{x}, v{x}, v{t+2}
v_cvt_pk_bf16_f32 v{t+3}, v{x}, v{x}
v_and_b32 v{t+2}, 0xffff0000, v{t+3}
v_sub_f32 v{x}, v{x}, v{t+2}
v_cvt_pk_bf16_f32 v{t+1}, v{x}, v{x}
v_and_b32 v{t}, 0xffff, v{t}
v_or_b32 v{t}, v{t}, v{t+2}
v_and_b32 v{t+1}, 0xffff, v{t+1}""")
            a(f"""v_and_b32 v58, 15, v0
v_lshlrev_b32 v58, 3, v58
s_lshl_b32 s3, s47, 7
s_add_u32 s3, s3, {CST}
v_add_u32 v58, s3, v58
v_lshrrev_b32 v59, 4, v0
v_lshlrev_b32 v59, 9, v59
v_add_u32 v59, v59, v58
ds_write_b64 v59, v[60:61]
ds_write_b64 v58, v[66:67] offset:2048""")
        need = []
        if s + 1 < 16: need.append(("W", s + 1))
        if (s & 1) and (s + 1) // 2 < 8: need.append(("X", (s + 1) // 2))
        if s == 6: need.append("pub")
        w = vm.wait(*need) if need else None
        if w: a(w)
        if A_ or s in (13, 14): a("s_waitcnt lgkmcnt(0)")
        if s in (6, 12): st(f"pre{s}")
        a("s_barrier")
        if s in (0, 3, 5, 6, 7, 11, 12): st(f"P{s}")
    st("P15")
    if OPT["fuse"]:
        while w2i < len(w2l):
            for x in w2l[w2i][1]: a(x)
            w2i += 1
    if A_:
        if not OPT["nohalo"]: halo_mfma(15)
        a(f"""ds_read_b64 v[60:61], v58 offset:512
ds_read_b64 v[62:63], v58 offset:1024
v_and_b32 v59, 15, v0
v_lshlrev_b32 v59, 3, v59
v_add_u32 v59, {RST + 128*8}, v59
ds_read_b64 v[64:65], v59
v_cmp_gt_u32 vcc, 16, v0
v_bfe_u32 v68, v0, 4, 1
v_mul_u32_u24 v68, 2560, v68
v_bfe_u32 v69, v0, 5, 1
v_bfe_u32 v70, v0, 3, 1
v_and_b32 v71, 7, v0
s_mul_i32 s3, s47, {REG2}
s_waitcnt lgkmcnt(0)
v_cndmask_b32 v66, 0, v64, vcc
v_and_b32 v67, 0xffff, v66
v_mfma_f32_16x16x16_bf16 v[24:27], v[60:61], v[66:67], v[24:27]
v_mfma_f32_16x16x16_bf16 v[28:31], v[62:63], v[66:67], v[28:31]
v_lshlrev_b32 v72, 3, v69
v_mul_u32_u24 v73, 1280, v70
v_lshlrev_b32 v74, 4, v71
v_add_u32 v72, v72, v68
v_add_u32 v73, v73, v74
v_add_u32 v72, v72, v73
v_add_u32 v72, s3, v72
v_mul_u32_u24 v73, 1280, v69
v_mul_u32_u24 v74, 640, v70
v_lshlrev_b32 v75, 3, v71
v_add_u32 v73, v73, v68
v_add_u32 v74, v74, v75
v_add_u32 v73, v73, v74
v_add_u32 v73, s3, v73""")
        for q in range(8): a(f"v_mul_f32 v{24+q}, v{24+q}, v65")
        a(f"""v_cvt_pk_bf16_f32 v60, v24, v25
v_cvt_pk_bf16_f32 v61, v26, v27
v_cvt_pk_bf16_f32 v62, v28, v29
v_cvt_pk_bf16_f32 v63, v30, v31
ds_write_b64 v72, v[60:61] offset:{KOFF}
ds_write_b64 v73, v[62:63] offset:{VOFF}
s_waitcnt lgkmcnt(0)
s_branch attn""")
    else:
        a("s_branch pub" if OPT["fuse"] else "s_branch p1_done")

def cons_setup(a):
    a("""s_lshr_b32 s49, s47, 1
s_and_b32 s47, s47, 1""")
    a("s_cmp_lg_u32 s48, 0\ns_cbranch_scc1 cs_B")
    a(f"""s_lshl_b32 s83, s49, 6
s_mov_b32 s84, 32
s_add_u32 s85, s83, 4096
s_mov_b32 s86, 32
s_add_u32 s87, s83, 8192
s_mov_b32 s88, 32
s_add_u32 s89, s83, {3*4096}
s_mov_b32 s90, {4096+32}
s_add_u32 s91, s83, {3*4096+32}
s_mov_b32 s92, {4096-32}
s_lshl_b32 s66, s51, 2
s_lshl_b32 s3, s49, 1
s_add_u32 s66, s66, s3
s_add_u32 s66, s66, 32
s_add_u32 s67, s66, 1
s_branch cs_D
cs_B:
s_lshr_b32 s60, s72, 4
s_add_u32 s60, s60, 32
s_lshr_b32 s61, s73, 4
s_add_u32 s61, s61, 32
s_cmp_lg_u32 s49, 0
s_cbranch_scc1 cs_B1""")
    def tiles(lst):
        for j, (sa, ca, sb, cb) in enumerate(lst):
            t0 = sa * 4096 + 32 * ca; t1 = sb * 4096 + 32 * cb
            a(f"s_mov_b32 s{83+2*j}, {t0}\ns_mov_b32 s{84+2*j}, {t1 - t0}")
    tiles([(0,0,2,1),(0,1,2,0),(0,2,2,3),(0,3,2,2),(1,0,3,1)])
    a("s_mov_b32 s63, s60\ns_add_u32 s64, s60, 1\ns_add_u32 s65, s60, 2\ns_add_u32 s66, s60, 3\ns_add_u32 s67, s60, 4\ns_branch cs_D\ncs_B1:")
    tiles([(1,1,3,0),(1,2,3,3),(1,3,3,2),(4,0,4,3),(4,1,4,2)])
    a("s_add_u32 s63, s60, 5\ns_add_u32 s64, s60, 6\ns_add_u32 s65, s60, 7\ns_mov_b32 s66, s61\ns_add_u32 s67, s61, 1\ncs_D:")
    a(f"""v_lshrrev_b32 v32, 5, v0
v_bfe_u32 v33, v0, 2, 2
v_lshlrev_b32 v34, 3, v32
v_add_u32 v34, v34, v33
v_lshlrev_b32 v34, 7, v34
v_and_b32 v35, 3, v0
v_lshlrev_b32 v35, 3, v35
v_add_u32 v34, v34, v35
v_and_b32 v35, 2, v33
v_xor_b32 v35, v35, v32
v_lshlrev_b32 v35, 5, v35
v_bfe_u32 v36, v0, 4, 1
v_and_b32 v37, 15, v0
v_lshlrev_b32 v37, 3, v37
v_add_u32 v37, {CST}, v37""")
    for j in range(5):
        a(f"""v_mul_lo_u32 v38, v36, s{84+2*j}
v_add_u32 v38, s{83+2*j}, v38
v_xor_b32 v39, v38, v35
v_add_u32 v{VT[j]}, v39, v34
v_add_u32 v{VTH[j]}, {4*WST}, v{VT[j]}
v_lshrrev_b32 v39, 12, v38
v_lshlrev_b32 v39, 9, v39
v_and_b32 v38, 0x60, v38
v_lshlrev_b32 v38, 2, v38
v_add_u32 v38, v38, v39
v_add_u32 v{VC[j]}, v38, v37""")
    a(f"""v_and_b32 v33, 31, v0
s_lshl_b32 s3, s47, 6
v_add_u32 v33, s3, v33
v_lshlrev_b32 v{VR}, 3, v33
v_add_u32 v{VR}, {RST}, v{VR}
v_bfe_u32 v34, v33, 1, 3
v_xor_b32 v34, v34, v32
v_lshlrev_b32 v34, 4, v34
v_lshlrev_b32 v33, 7, v33
v_add_u32 v33, v33, v34
v_add_u32 v{VX[0]}, {XRING}, v33
v_xor_b32 v{VX[1]}, 32, v{VX[0]}
v_xor_b32 v{VX[2]}, 64, v{VX[0]}
v_xor_b32 v{VX[3]}, 96, v{VX[0]}
v_lshlrev_b32 v{VL16}, 4, v0""")

def stats_groups():
    G = []
    def allred(r, t):
        for m in ("quad_perm:[1,0,3,2]", "quad_perm:[2,3,0,1]", "row_half_mirror", "row_mirror"):
            G.append([f"v_add_f32_dpp v{r}, v{r}, v{r} {m} {DPPM}"])
        for sw in ("16", "32"):
            G.append([f"v_mov_b32 v{t}, v{r}"])
            G.append([f"v_permlane{sw}_swap_b32 v{r}, v{t}"])
            G.append([f"v_add_f32 v{r}, v{r}, v{t}"])
    for r in range(2):
        R = 24 + 4 * r
        u = []
        for i in range(4): u += [f"v_lshlrev_b32 v{88+i}, 16, v{R+i}", f"v_and_b32 v{R+i}, 0xffff0000, v{R+i}"]
        u += ["v_pk_add_f32 v[92:93], v[88:89], v[90:91]", f"v_pk_add_f32 v[94:95], v[{R}:{R+1}], v[{R+2}:{R+3}]",
              "v_pk_add_f32 v[92:93], v[92:93], v[94:95]", "v_add_f32 v92, v92, v93"]
        for k in range(0, len(u), 3): G.append(u[k:k + 3])
        allred(92, 94)
        G.append(["v_mul_f32 v92, 0x3b000000, v92"])
        u = []
        for pr in (88, 90, R, R + 2):
            u.append(f"v_pk_add_f32 v[{pr}:{pr+1}], v[{pr}:{pr+1}], v[92:93] op_sel:[0,0] op_sel_hi:[1,0] neg_lo:[0,1] neg_hi:[0,1]")
        u.append(f"v_readfirstlane_b32 s{96+2*r}, v92")
        u.append("v_pk_mul_f32 v[94:95], v[88:89], v[88:89]")
        for pr in (90, R, R + 2): u.append(f"v_pk_fma_f32 v[94:95], v[{pr}:{pr+1}], v[{pr}:{pr+1}], v[94:95]")
        u.append("v_add_f32 v94, v94, v95")
        for k in range(0, len(u), 2): G.append(u[k:k + 2])
        allred(94, 93)
        G.append([f"v_readfirstlane_b32 s{97+2*r}, v94"])
    fin = """v_cmp_eq_u32 vcc, 1, v0
v_mov_b32 v88, s96
v_mov_b32 v90, s98
v_mov_b32 v89, s97
v_mov_b32 v91, s99
v_cndmask_b32 v88, v88, v90, vcc
v_cndmask_b32 v89, v89, v91, vcc
v_mul_f32 v89, 0x3b000000, v89
v_cvt_pk_bf16_f32 v88, v88, v88
v_cvt_pk_bf16_f32 v89, v89, v89
v_xor_b32 v88, 0x80008000, v88
v_and_b32 v89, 0xffff0000, v89
v_add_f32 v89, 0x3727c5ac, v89
v_cvt_pk_bf16_f32 v89, v89, v89
v_and_b32 v89, 0xffff0000, v89
v_sqrt_f32 v89, v89
v_lshlrev_b32 v90, 7, v0
v_cvt_pk_bf16_f32 v89, v89, v89
v_and_b32 v89, 0xffff0000, v89
v_rcp_f32 v89, v89""".split("\n")
    for k in range(0, len(fin), 2): G.append(fin[k:k + 2])
    G.append(["s_mov_b64 exec, 3", f"buffer_store_dwordx2 v[88:89], v90, {srd(S_WS)}, s45 offen sc1", "s_mov_b64 exec, -1"])
    return G

def cons_reads(m):
    st = m & 1; s = m >> 1; half = m & 1; g = m >> 2; xs = m & 3; slot = s % 5
    def fa(j):
        v, o = (VT[j], slot * WST) if slot < 4 else (VTH[j], 0)
        return [f"ds_read_b64_tr_b16 v[{FA[st]+4*j+2*i}:{FA[st]+4*j+2*i+1}], v{v} offset:{o + 2048*half + 512*i}" for i in range(2)]
    def fb(rt):
        return [f"ds_read_b128 v[{FB[st]+4*rt}:{FB[st]+4*rt+3}], v{VX[xs]} offset:{(g % 3)*XST + 4096*rt}"]
    return fb(0) + fa(0) + fb(1) + fa(1) + fa(2) + fa(3) + fa(4)

def table_reads():
    r = [f"ds_read_b64 v[{32+2*j}:{33+2*j}], v{VC[j]}" for j in range(5)]
    r += [f"ds_read_b64 v[{42+2*rt}:{43+2*rt}], v{VR} offset:{256*rt}" for rt in range(2)]
    return r

def ffn_tile(rt, j):
    b = ACC(rt, j); L = []
    for q in range(4): L.append(f"v_pk_mul_f32 v[{b+2*q}:{b+2*q+1}], v[{b+2*q}:{b+2*q+1}], v[{b+8+2*q}:{b+9+2*q}]")
    for q in range(4): L.append(f"v_pk_mul_f32 v[{b+2*q}:{b+2*q+1}], v[{b+2*q}:{b+2*q+1}], v[50:51] op_sel:[0,{rt}] op_sel_hi:[1,{rt}]")
    for q in range(4): L.append(f"v_cvt_pk_bf16_f32 v{b+8+q}, v{b+2*q}, v{b+2*q+1}")
    sc = " sc1" if OPT["fuse"] else ""
    L += [f"s_add_u32 s3, s{60+rt}, s{63+j}", "s_lshl_b32 s3, s3, 10", f"s_add_u32 s3, s3, {OH}",
          f"buffer_store_dwordx4 v[{b+8}:{b+11}], v{VL16}, {srd(S_WS)}, s3 offen{sc}"]
    return L

def code_prefetch(a):
    a("""s_getpc_b64 s[60:61]
pf_base:
s_lshl_b32 s3, s46, 14
v_lshlrev_b32 v88, 7, v0
v_add_u32 v88, s3, v88
v_add_u32 v90, 0x2000, v88
v_min_u32 v88, k1_done - pf_base, v88
v_min_u32 v90, k1_done - pf_base, v90
v_mov_b32 v89, s61
v_mov_b32 v91, s61
v_add_co_u32 v88, vcc, s60, v88
v_addc_co_u32 v89, vcc, 0, v89, vcc
v_add_co_u32 v90, vcc, s60, v90
v_addc_co_u32 v91, vcc, 0, v91, vcc
global_load_dword v92, v[88:89], off
global_load_dword v93, v[90:91], off""")

def consumer(a, st):
    if OPT["pf"]: code_prefetch(a)
    a("""s_lshl_b32 s60, s50, 7
s_lshl_b32 s61, s52, 3
s_add_u32 s60, s60, s61
s_lshl_b32 s61, s47, 1
s_add_u32 s60, s60, s61
v_lshlrev_b32 v32, 4, v0
s_lshr_b32 s45, s60, 5
s_lshl_b32 s45, s45, 5
s_and_b32 s61, s60, 31
s_lshr_b32 s61, s61, 1
s_add_u32 s45, s45, s61
s_lshl_b32 s45, s45, 3
s_lshl_b32 s44, s60, 10""")
    karg_wait(a)
    a(f"buffer_load_dwordx4 v[24:27], v32, {srd(S_X)}, s44 offen\nbuffer_load_dwordx4 v[28:31], v32, {srd(S_X)}, s44 offen offset:1024")
    nonce_load(a)
    cons_setup(a)
    p2_scalars(a)
    st("setup")
    a("s_barrier")
    st("Pm1")
    if OPT["prio"]: a(f"s_setprio {OPT['prio']}")
    for x in cons_reads(0): a(x)
    G = stats_groups(); gi = 0
    store_step = None
    for n in range(32):
        cur = n & 1
        rd = cons_reads(n + 1) if n < 31 else table_reads()
        mf = []
        for j in range(5):
            for rt in range(2):
                b = ACC(rt, j)
                c = f"v[{b}:{b+15}]" if n else "0"
                mf.append(f"v_mfma_f32_32x32x16_bf16 v[{b}:{b+15}], v[{FA[cur]+4*j}:{FA[cur]+4*j+3}], v[{FB[cur]+4*rt}:{FB[cur]+4*rt+3}], {c}")
        a("s_waitcnt lgkmcnt(0)")
        if n == 1: a("s_waitcnt vmcnt(0)")
        k = 0
        if n & 1:
            if n == 13:
                assert store_step is not None and store_step <= 11, store_step
                a("s_waitcnt vmcnt(0)")
            for _ in range(OPT["nb"]): a(mf[k]); k += 1
            a("s_barrier")
        else:
            a(mf[k]); k += 1
        per = OPT['per']
        i = 0
        while k < 10:
            for x in rd[i:i + per]: a(x)
            i += per
            if n >= 1 and gi < len(G):
                for x in G[gi]: a(x)
                gi += 1
                if gi == len(G): store_step = n
            a(mf[k]); k += 1
        for x in rd[i:]: a(x)
        if n in (1, 7, 15, 23): st(f"s{n}")
    assert gi == len(G)
    st("loop_end")
    if OPT["prio"]: a("s_setprio 0")
    a("""s_waitcnt lgkmcnt(0)
v_cmp_gt_u32 vcc, 32, v0
v_cndmask_b32 v46, 0, v42, vcc
v_cndmask_b32 v48, 0, v44, vcc
v_and_b32 v47, 0xffff, v46
v_and_b32 v49, 0xffff, v48
v_mul_f32 v50, v43, v43
v_mul_f32 v51, v45, v45
s_lshl_b32 s60, s50, 2
s_lshl_b32 s3, s47, 1
s_add_u32 s60, s60, s3
s_mul_i32 s60, s60, 144
s_add_u32 s61, s60, 144""")
    for j in range(5):
        for rt in range(2):
            b = ACC(rt, j)
            a(f"v_mfma_f32_32x32x8_bf16 v[{b}:{b+15}], v[{32+2*j}:{33+2*j}], v[{46+2*rt}:{47+2*rt}], v[{b}:{b+15}]")
    a("s_cmp_lg_u32 s48, 0\ns_cbranch_scc1 ep_B")
    a(f"""v_lshrrev_b32 v24, 5, v0
v_mul_u32_u24 v24, 2560, v24
v_bfe_u32 v25, v0, 4, 1
v_and_b32 v26, 15, v0
s_mul_i32 s3, s49, {2*REG2}
v_mul_u32_u24 v27, 1280, v25
v_lshlrev_b32 v28, 4, v26
v_add_u32 v27, v27, v24
v_add_u32 v27, v27, v28
s_lshl_b32 s62, s47, 9
s_add_u32 s62, s62, s3
s_add_u32 s62, s62, 128
v_add_u32 v27, s62, v27
v_mul_u32_u24 v28, 640, v25
v_lshlrev_b32 v29, 3, v26
v_add_u32 v28, v28, v24
v_add_u32 v28, v28, v29
s_lshl_b32 s62, s47, 8
s_add_u32 s62, s62, s3
s_add_u32 s62, s62, {VOFF + 64}
v_add_u32 v28, s62, v28""")
    w2l = w2_loads(VL16) if OPT["fuse"] else []
    w2i = [0]
    def w2_upto(freed_tiles, n):
        for _ in range(n):
            if w2i[0] < len(w2l) and (w2l[w2i[0]][0] >> 1) < freed_tiles:
                for x in w2l[w2i[0]][1]: a(x)
                w2i[0] += 1
    nt_done = 0
    for j in range(3):
        for rt in range(2):
            b = ACC(rt, j)
            for q in range(8):
                a(f"v_pk_mul_f32 v[{b+2*q}:{b+2*q+1}], v[{b+2*q}:{b+2*q+1}], v[{42+2*rt}:{43+2*rt}] op_sel:[0,1] op_sel_hi:[1,1]")
            for q in range(8): a(f"v_cvt_pk_bf16_f32 v{b+q}, v{b+2*q}, v{b+2*q+1}")
            for hh in range(2):
                if j < 2:
                    a(f"ds_write_b128 v27, v[{b+4*hh}:{b+4*hh+3}] offset:{(QOFF, KOFF)[j] + REG2*hh + 256*rt}")
                else:
                    for mm in range(2):
                        a(f"ds_write_b64 v28, v[{b+4*hh+2*mm}:{b+4*hh+2*mm+1}] offset:{REG2*hh + 1280*mm + 128*rt}")
            nt_done += 1
            w2_upto(nt_done - 1, 2)
    for j in (3, 4):
        for rt in range(2):
            for x in ffn_tile(rt, j): a(x)
            nt_done += 1
            w2_upto(nt_done - 1, 2)
    a("s_waitcnt lgkmcnt(0)")
    st("staged")
    w2_upto(9, OPT.get("w2a", 8))
    return w2l, w2i

def attention(a, st, tail_loads):
    Q = 24; K = 32; V = 56; S = [80, 84, 88]; T = 92; PP = 24
    VA = 20; VB = 21
    tl = list(tail_loads or [])
    cnt = [0]
    def tail(n):
        if not tl: return
        cnt[0] += 1
        a(f"s_cmp_lt_u32 s46, 4\ns_cbranch_scc0 at_tl{cnt[0]}")
        for _ in range(n):
            if tl:
                for x in tl.pop(0)[1]: a(x)
        a(f"at_tl{cnt[0]}:")
    a(f"""attn:
s_barrier
s_and_b32 s47, s46, 3
s_lshr_b32 s49, s46, 2
v_lshrrev_b32 v1, 5, v0
s_lshl_b32 s3, s49, 1
v_add_u32 v1, s3, v1
v_lshlrev_b32 v{VA}, 4, v1
v_and_b32 v{T}, 15, v0
v_add_u32 v{VA}, v{VA}, v{T}
v_bfe_u32 v{T+1}, v0, 4, 1
v_mul_u32_u24 v{T+2}, 1280, v{T+1}
v_lshlrev_b32 v{VB}, 4, v{VA}
v_add_u32 v{VB}, v{VB}, v{T+2}
s_mul_i32 s3, s47, {REG2}
v_add_u32 v{VB}, s3, v{VB}""")
    a(f"ds_read_b128 v[{Q}:{Q+3}], v{VB} offset:{QOFF + 128}\nds_read_b128 v[{Q+4}:{Q+7}], v{VB} offset:{QOFF + 128 + 2560}")
    for kb in range(3):
        a(f"ds_read_b128 v[{K+8*kb}:{K+8*kb+3}], v{VB} offset:{KOFF + 64*kb}\nds_read_b128 v[{K+8*kb+4}:{K+8*kb+7}], v{VB} offset:{KOFF + 64*kb + 2560}")
    a(f"""v_lshlrev_b32 v1, 4, v1
v_and_b32 v{T}, 3, v0
v_lshlrev_b32 v{T}, 2, v{T}
v_add_u32 v1, v1, v{T}
v_bfe_u32 v{T}, v0, 2, 2
v_add_u32 v1, v1, v{T}
v_lshlrev_b32 v1, 3, v1
v_mul_u32_u24 v{T}, 640, v{T+1}
v_add_u32 v1, v1, v{T}
s_add_u32 s3, s3, {VOFF}
v_add_u32 v1, s3, v1""")
    for kb in range(3):
        for m in range(4):
            d = V + 8 * kb + 2 * m
            a(f"ds_read_b64_tr_b16 v[{d}:{d+1}], v1 offset:{1280*m + 32*kb}")
    a(f"""v_mov_b32 v{T}, 0
v_mov_b32 v{T+1}, 0
s_cmp_lg_u32 s50, 0
s_cbranch_scc1 at_nomask
v_mov_b32 v{T+2}, 0xf149f2ca
v_cmp_gt_u32 vcc, 8, v{VA}
v_cndmask_b32 v{T}, 0, v{T+2}, vcc
v_cmp_gt_u32 vcc, 4, v{VA}
v_cndmask_b32 v{T+1}, 0, v{T+2}, vcc
at_nomask:""")
    for i in range(4): a(f"v_mov_b32 v{S[0]+i}, v{T}\nv_mov_b32 v{S[1]+i}, v{T+1}")
    tail(OPT["tl0"])
    a("s_waitcnt lgkmcnt(12)")
    for ds in range(4):
        for kb in range(3):
            c = f"v[{S[kb]}:{S[kb]+3}]" if not (kb == 2 and ds == 0) else "0"
            a(f"v_mfma_f32_4x4x4_16b_bf16 v[{S[kb]}:{S[kb]+3}], v[{K+8*kb+2*ds}:{K+8*kb+2*ds+1}], v[{Q+2*ds}:{Q+2*ds+1}], {c}")
    a("""s_mov_b32 s62, 0x11111111
s_mov_b32 s63, 0x11111111
s_mov_b32 s64, 0x33333333
s_mov_b32 s65, 0x33333333
s_mov_b32 s66, 0x77777777
s_mov_b32 s67, 0x77777777
s_mov_b32 s61, 0x3eb8aa3b""")
    tail(OPT["tl1"])
    a(f"v_cndmask_b32 v{S[2]+1}, v{S[2]+1}, v{S[0]+1}, s[62:63]")
    a(f"v_cndmask_b32 v{S[2]+2}, v{S[2]+2}, v{S[0]+2}, s[64:65]")
    a(f"v_cndmask_b32 v{S[2]+3}, v{S[2]+3}, v{S[0]+3}, s[66:67]")
    p = [S[2] + i for i in range(4)] + [S[1] + i for i in range(4)]
    t0, t1, t2, t3 = T, T + 1, T + 2, T + 3
    a(f"v_max3_f32 v{t0}, v{p[0]}, v{p[1]}, v{p[2]}\nv_max3_f32 v{t1}, v{p[3]}, v{p[4]}, v{p[5]}")
    a(f"v_max3_f32 v{t0}, v{t0}, v{p[6]}, v{p[7]}\nv_max_f32 v{t0}, v{t0}, v{t1}\nv_mul_f32 v{t0}, s61, v{t0}")
    for x in p: a(f"v_fma_f32 v{x}, s61, v{x}, -v{t0}")
    for x in p: a(f"v_exp_f32 v{x}, v{x}")
    tail(OPT["tl2"])
    a(f"v_add_f32 v{t1}, v{p[0]}, v{p[1]}\nv_add_f32 v{t2}, v{p[2]}, v{p[3]}\nv_add_f32 v{t3}, v{p[4]}, v{p[5]}\nv_add_f32 v{t0}, v{p[6]}, v{p[7]}")
    a(f"v_add_f32 v{t1}, v{t1}, v{t2}\nv_add_f32 v{t0}, v{t0}, v{t3}\nv_add_f32 v{t0}, v{t0}, v{t1}\nv_rcp_f32 v{t0}, v{t0}")
    for x in p: a(f"v_mul_f32 v{x}, v{x}, v{t0}")
    P0, P1, P2, P3, P4, P5 = [PP + i for i in range(6)]
    a(f"""v_cvt_pk_bf16_f32 v{P0}, v{p[0]}, v{p[1]}
v_cvt_pk_bf16_f32 v{P1}, v{p[2]}, v{p[3]}
v_cvt_pk_bf16_f32 v{P2}, v{p[4]}, v{p[5]}
v_cvt_pk_bf16_f32 v{P3}, v{p[6]}, v{p[7]}
v_mov_b32 v{t0}, 0xffff0000
v_cndmask_b32 v{t1}, 0, v{t0}, s[62:63]
v_cndmask_b32 v{t2}, 0, v{t0}, s[66:67]
v_mov_b32 v{t0}, 0xffff
v_cndmask_b32 v{t3}, 0, v{t0}, s[64:65]
v_or_b32 v{t2}, v{t2}, v{t3}
v_and_b32 v{P4}, v{P0}, v{t1}
v_and_b32 v{P5}, v{P1}, v{t2}
v_xor_b32 v{P0}, v{P0}, v{P4}
v_xor_b32 v{P1}, v{P1}, v{P5}
s_waitcnt lgkmcnt(0)""")
    Pk = [P4, P2, P0]
    tail(99)
    O = [K, K + 4, K + 8, K + 12]
    for kb in range(3):
        for m in range(4):
            c = f"v[{O[m]}:{O[m]+3}]" if kb else "0"
            d = V + 8 * kb + 2 * m
            a(f"v_mfma_f32_4x4x4_16b_bf16 v[{O[m]}:{O[m]+3}], v[{d}:{d+1}], v[{Pk[kb]}:{Pk[kb]+1}], {c}")
    Qo = 48
    for m in range(4):
        a(f"v_cvt_pk_bf16_f32 v{Qo+2*m}, v{O[m]}, v{O[m]+1}\nv_cvt_pk_bf16_f32 v{Qo+2*m+1}, v{O[m]+2}, v{O[m]+3}")
    sc = " sc1" if OPT["fuse"] else ""
    a(f"""v_lshrrev_b32 v{t0}, 5, v0
s_mov_b32 s3, {OH_TILE}
v_mul_lo_u32 v{t0}, v{t0}, s3
v_and_b32 v{t1}, 31, v0
v_lshlrev_b32 v{t1}, 4, v{t1}
v_add_u32 v{t0}, v{t0}, v{t1}
s_lshl_b32 s3, s50, 2
s_lshl_b32 s61, s49, 1
s_add_u32 s3, s3, s61
s_mul_i32 s3, s3, 144
s_lshl_b32 s61, s51, 2
s_add_u32 s3, s3, s61
s_add_u32 s3, s3, s47
s_lshl_b32 s3, s3, 10
s_add_u32 s3, s3, {OH}
buffer_store_dwordx4 v[{Qo}:{Qo+3}], v{t0}, {srd(S_WS)}, s3 offen{sc}
buffer_store_dwordx4 v[{Qo+4}:{Qo+7}], v{t0}, {srd(S_WS)}, s3 offen offset:512{sc}""")
    if OPT["fuse"]:
        st("attn_done")
        a("s_waitcnt vmcnt(0)")
        st("drainedA")
        a("s_branch pub")
    else:
        a("s_branch p1_done")

RW = 20480; RT = 5120; RQ = 1280; RH = 640
def phase2(a, st):
    ws = srd(S_WS)
    a(f"""pub:
s_barrier
s_cmp_lg_u32 s46, 4
s_cbranch_scc1 p2_go
s_mov_b64 exec, 1
s_add_u32 s61, s76, 1
v_mov_b32 v20, s61
s_lshl_b32 s3, s50, 4
s_add_u32 s3, s3, s52
s_lshl_b32 s3, s3, 7
s_add_u32 s3, s3, {FLG2}
buffer_store_dword v20, off, {ws}, s3 sc1
s_mov_b64 exec, -1
p2_go:""")
    st("pub")
    a(f"""buffer_load_dword v20, off, {ws}, s87 sc1
s_add_u32 s76, s76, 1
v_lshlrev_b32 v22, 4, v0
v_add_u32 v21, {OH_TILE}, v22
s_mov_b32 s60, 0""")
    def spin(tag, sreg, first_wait):
        a(first_wait)
        a(f"""p2_spin{tag}:
v_cmp_eq_u32 vcc, s76, v20
s_cbranch_vccnz p2_ok{tag}
s_add_u32 s60, s60, 1
s_cmp_ge_u32 s60, 0x8000
s_cbranch_scc1 p2_ok{tag}
s_sleep 2
buffer_load_dword v20, off, {ws}, s{sreg} sc1
s_waitcnt vmcnt(0)
s_branch p2_spin{tag}
p2_ok{tag}:""")
    spin("B", 87, "s_waitcnt vmcnt(0)")
    st("pollB")
    if OPT["p2prio"]: a(f"s_setprio {OPT['p2prio']}")
    vm = VM()
    free = list(OPT.get("ring0", [96, 104, 88, 12, 2]))
    slot = {}
    nxt = [0]
    lastso = [None]
    def issue(limit):
        while nxt[0] < limit and free:
            i = nxt[0]; nxt[0] += 1
            if i < 10: base, k = 84, i
            elif i < 14: base, k = 85, i - 10
            else: base, k = 86, i - 14
            key = (base, k >> 2)
            if lastso[0] != key:
                a(f"s_add_u32 s89, s{base}, {4096 * (k >> 2)}"); lastso[0] = key
            r = free.pop(0); slot[i] = r
            for rt in range(2):
                a(f"buffer_load_dwordx4 v[{r+4*rt}:{r+4*rt+3}], v{22-rt}, {ws}, s89 offen offset:{1024*(k&3)} sc1"); vm.issue(("L", i))
    issue(10)
    RES = None
    okA = False
    for i in range(18):
        a(vm.wait(("L", i)))
        if i == OPT["chkA"]:
            a("s_mov_b32 s60, 0")
            spin("A", 88, "s_nop 0")
            st("pollA")
            okA = True
            issue(18)
        w = W2R(i); o = slot[i]
        for rt in range(2):
            for nt in range(2):
                c = ACC2 + 16 * (2 * rt + nt)
                cc = f"v[{c}:{c+15}]" if i else "0"
                a(f"v_mfma_f32_32x32x16_bf16 v[{c}:{c+15}], v[{w+4*nt}:{w+4*nt+3}], v[{o+4*rt}:{o+4*rt+3}], {cc}")
        free += [o, w]
        if i == 0:
            a(f"buffer_load_dword v20, off, {ws}, s88 sc1"); vm.issue("pollA")
        issue(18 if okA else 10)
        if nxt[0] == 18 and RES is None and free:
            RES = free.pop(0)
            a(f"""s_and_b32 s60, s46, 3
s_lshl_b32 s60, s60, 3
v_and_b32 v10, 7, v0
v_add_u32 v10, s60, v10
v_and_b32 v11, 15, v10
v_lshlrev_b32 v11, 1, v11
v_lshrrev_b32 v1, 4, v10
v_add_u32 v11, v11, v1
s_lshr_b32 s61, s46, 2
s_lshl_b32 s61, s61, 5
s_lshl_b32 s62, s78, 6
s_add_u32 s61, s61, s62
v_add_u32 v11, s61, v11
v_lshlrev_b32 v11, 10, v11
v_bfe_u32 v1, v0, 3, 2
v_lshlrev_b32 v1, 5, v1
v_add_u32 v11, v11, v1
v_lshrrev_b32 v1, 5, v0
v_lshlrev_b32 v1, 4, v1
v_add_u32 v11, v11, v1
s_lshl_b32 s62, s77, 7
v_add_u32 v11, s62, v11
buffer_load_dwordx4 v[{RES}:{RES+3}], v11, {srd(S_X)}, 0 offen""")
            vm.issue("res")
            a(f"""v_lshlrev_b32 v10, 4, v10
v_lshrrev_b32 v1, 5, v0
v_mul_u32_u24 v1, {4*RW}, v1
v_add_u32 v10, v10, v1
v_bfe_u32 v1, v0, 4, 1
v_mul_u32_u24 v1, {RQ}, v1
v_add_u32 v10, v10, v1
v_bfe_u32 v1, v0, 3, 1
v_mul_u32_u24 v1, {RH}, v1
v_add_u32 v10, v10, v1
s_lshr_b32 s61, s46, 2
s_mul_i32 s61, s61, {2*RT}
v_add_u32 v10, s61, v10""")
            a(f"""v_and_b32 v20, 31, v0
v_lshlrev_b32 v20, 4, v20
v_lshrrev_b32 v1, 5, v0
v_mul_u32_u24 v1, {RH}, v1
v_add_u32 v20, v20, v1
s_mul_i32 s61, s46, {RW}
v_add_u32 v20, s61, v20""")
        if i in (0, 4, 9, 13): st(f"q{i}")
    assert nxt[0] == 18 and RES is not None
    st("p2_loop")
    if OPT["p2prio"]: a("s_setprio 0")
    for rt in range(2):
        for nt in range(2):
            c = ACC2 + 16 * (2 * rt + nt)
            for q in range(4):
                a(f"ds_write_b128 v20, v[{c+4*q}:{c+4*q+3}] offset:{(2*rt+nt)*RT + q*RQ}")
    a(vm.wait("res"))
    a("s_waitcnt lgkmcnt(0)")
    for i in range(4):
        a(f"v_lshlrev_b32 v{24+2*i}, 16, v{RES+i}\nv_and_b32 v{25+2*i}, 0xffff0000, v{RES+i}")
    a("s_barrier")
    st("red_w")
    a(f"v_add_u32 v1, {2*RW}, v10")
    for sidx in range(4):
        for c in range(4):
            nt, hb = c >> 1, c & 1
            base = 10 if sidx < 2 else 1
            off = (sidx & 1) * RW + nt * RT + 2 * hb * RQ
            d = 96 + 16 * sidx + 4 * c
            a(f"ds_read_b128 v[{d}:{d+3}], v{base} offset:{off}")
    a("s_waitcnt lgkmcnt(8)")
    for k in range(8): a(f"v_pk_add_f32 v[{96+2*k}:{97+2*k}], v[{96+2*k}:{97+2*k}], v[{112+2*k}:{113+2*k}]")
    a("s_waitcnt lgkmcnt(0)")
    for k in range(8): a(f"v_pk_add_f32 v[{128+2*k}:{129+2*k}], v[{128+2*k}:{129+2*k}], v[{144+2*k}:{145+2*k}]")
    for k in range(8): a(f"v_pk_add_f32 v[{96+2*k}:{97+2*k}], v[{96+2*k}:{97+2*k}], v[{128+2*k}:{129+2*k}]")
    for c in range(4):
        for r in range(2): a(f"v_permlane32_swap_b32 v{96+4*c+r}, v{96+4*c+r+2}")
    for r in range(2):
        for c in range(4):
            a(f"v_add_f32 v{96+4*c+r}, v{96+4*c+r}, v{96+4*c+r+2}")
    for r in range(2):
        for c in range(4):
            a(f"v_add_f32 v{24+4*r+c}, v{24+4*r+c}, v{96+4*c+r}")
    for k in range(4): a(f"v_cvt_pk_bf16_f32 v{32+k}, v{24+2*k}, v{25+2*k}")
    a(f"buffer_store_dwordx4 v[32:35], v11, {srd(S_OUT)}, 0 offen")
    a(f"""s_or_b32 s3, s2, s46
s_cmp_lg_u32 s3, 0
s_cbranch_scc1 p2_noep
s_mov_b64 exec, 1
v_mov_b32 v20, s76
s_mov_b32 s3, {FLG}
buffer_store_dword v20, off, {ws}, s3
s_mov_b64 exec, -1
p2_noep:""")

DBG_NAMES = ["nstart", "start", "karg", "Pm1", "P3", "P7", "P11", "P15", "attn_done", "pub", "pollB", "pollA", "p2_loop", "red_w", "end", "dma_issued"]
class DStamps:
    def __init__(self, a): self.a = a; self.n = 0; self.names = []
    def __call__(self, name, real=False):
        if name in DBG_NAMES:
            self.a(f"s_memrealtime s[100:101]\ns_waitcnt lgkmcnt(0)\nv_writelane_b32 v{VSTAMP}, s100, {DBG_NAMES.index(name)}")
    def dump(self, w, t): pass

def gen_k1(P, name="k1_kernel"):
    a = A()
    a("s_cmp_ge_u32 s2, 256\ns_cbranch_scc1 k1_done")
    global Stamps
    if OPT.get("dbgp"):
        Stamps = lambda a_, v, k: DStamps(a_)
        a(f"v_mov_b32 v{VSTAMP}, 0")
        a(f"s_memrealtime s[100:101]\ns_waitcnt lgkmcnt(0)\nv_writelane_b32 v{VSTAMP}, s100, 1\ns_not_b32 s100, s100\nv_writelane_b32 v{VSTAMP}, s100, 0")
    stc = Stamps(a, VSTAMP, 1); stp = Stamps(a, VSTAMP, 1)
    if gen1.PROF:
        stc("real0", True); stc("start")
        stp.names = list(stc.names); stp.n = stc.n
    prologue(a)
    a("s_cmp_lt_u32 s46, 4\ns_cbranch_scc1 cons")
    prod_setup_common(a)
    a("s_cmp_lg_u32 s48, 0\ns_cbranch_scc1 prodB")
    n0 = stp.n; nm0 = list(stp.names)
    producer(a, "A", stp)
    a("prodB:")
    stp.n = n0; stp.names = list(nm0)
    producer(a, "B", stp)
    a("cons:")
    w2l, w2i = consumer(a, stc)
    sta = Stamps(a, VSTAMP, 1); sta.n = 16; sta.names = [None] * 16
    attention(a, sta, w2l[w2i[0]:] if OPT["fuse"] else None)
    a("ep_B:\ns_nop 3")
    k = 0; nd = 0
    for j in range(5):
        for rt in range(2):
            for x in ffn_tile(rt, j): a(x)
            nd += 1
            for _ in range(2):
                if OPT["fuse"] and k < len(w2l) and (w2l[k][0] >> 1) < nd - 1:
                    for x in w2l[k][1]: a(x)
                    k += 1
    if OPT["fuse"]:
        sta.n = 16; sta.names = [None] * 16
        sta("attn_done")
        a("s_waitcnt vmcnt(0)")
        sta("drainedA")
        a("s_barrier")
        while k < len(w2l):
            for x in w2l[k][1]: a(x)
            k += 1
        a("s_branch p2_go")
        st2 = Stamps(a, VSTAMP, 1); st2.n = 18; st2.names = list(sta.names) if gen1.PROF else []
        phase2(a, st2)
        if gen1.PROF:
            for S_ in (stc, stp):
                S_.names = S_.names + ["-"] * (16 - len(S_.names)) + st2.names[16:]
    a("p1_done:")
    if gen1.PROF:
        a(f"s_memtime s[100:101]\ns_waitcnt lgkmcnt(0)\nv_writelane_b32 v{VSTAMP}, s100, 30")
    a("s_waitcnt vmcnt(0)")
    if OPT.get("dbgp"):
        stc("end")
        a(f"""s_cmp_lg_u32 s46, {OPT['dbgp']}
s_cbranch_scc1 k1_done
s_mov_b64 exec, 0xffff
v_lshlrev_b32 v24, 2, v0
buffer_atomic_umax v{VSTAMP}, v24, {srd(S_DBG)}, 0 offen
s_waitcnt vmcnt(0)""")
    if gen1.PROF:
        a(f"s_memtime s[100:101]\ns_waitcnt lgkmcnt(0)\nv_writelane_b32 v{VSTAMP}, s100, 31")
        a(f"s_memrealtime s[100:101]\ns_waitcnt lgkmcnt(0)\nv_writelane_b32 v{VSTAMP}, s100, 32")
        stc.dump(46, 24)
        print("CONS", stc.names, file=sys.stderr); print("PROD", stp.names, file=sys.stderr)
        open("last.names", "w").write(repr({"cons": stc.names, "prod": stp.names}))
    a("k1_done:\ns_endpgm")
    gen1.finish(P, name, a, 256, LDS1)

if __name__ == "__main__":
    if len(sys.argv) > 2 and sys.argv[2] == "prof": gen1.PROF = True
    P = Prog()
    if OPT["fuse"]:
        gen_k1(P, NAME + "_kernel")
        open(sys.argv[1], "w").write(P.render(single=True))
    else:
        gen_k1(P)
        gen1.gen_k2(P)
        open(sys.argv[1], "w").write(P.render())
```

```python
import sys; sys.path.insert(0, "work")
from asmlib import *
import hazard, gen1
from gen1 import Stamps, DPPM
import os

OPT = dict(fuse=1, nb=1, prio=2, per=2, ramp=1, pf=1, rot=8, nohalo=0, x16=1, amap=1,
           pprio=3, tl0=4, tl1=4, tl2=4, w2a=4, chkA=5, p2prio=0, pkl=0, pks=2, fs=7, stg=5, gpoll=10, w2r=3, slp=0)
for kv in os.environ.get("OPT", "").split(","):
    if "=" in kv:
        k, v = kv.split("="); OPT[k] = int(v)

STATS = 0
OH = 65536
OH_TILE = 144 * 1024
CSP = OH + 64 * OH_TILE
PK = CSP + 16 * 16 * 4 * 320
WS_USED = PK + 8 * 144 * 2048
FLG = 16384
FLG2 = FLG + 12288
XB = 2048 * 1024
WQKV_B = 512 * 3072
WG_B = 512 * 3584
WO_B = 512 * 1024
WD_B = 1792 * 1024

WST = 20480
XRING = 102400; XST = 18432
TAB = 157696
CST = TAB; RST = TAB + 2560
STG = RST + 1152
SYN = STG + 64
DUM = SYN + 64
SPIN = 0x20000
LDS1 = 163840
REG2 = 36864
QOFF = 20480; KOFF = 25600; VOFF = 30720

S_X, S_QKV, S_G, S_U, S_WS, S_DBG, S_WD, S_WO, S_OUT = 4, 8, 12, 16, 20, 24, 28, 32, 36
S_PK = 68
def srd(n): return f"s[{n}:{n+3}]"

class VM:
    def __init__(self): self.q = []
    def issue(self, tag): self.q.append(tag)
    def wait(self, *tags):
        idx = [i for i, t in enumerate(self.q) if t in tags]
        if not idx: return None
        n = len(self.q) - 1 - max(idx)
        assert n <= 63, n
        return f"s_waitcnt vmcnt({n})"

VT = [2, 3, 4, 5, 6]; VFA, VF, VDA, VDV = 7, 8, 9, 10; VX = [12, 13, 14, 15]; VC = [16, 17, 18, 19, 20]; VR = 21; VL16 = 22; VSTAMP = 23
FA = [32, 60]; FB = [52, 80]
def ACC(rt, j): return 96 + 80 * rt + 16 * j
W2BASE = [176, 112, 192, 128, 208, 144, 224, 160, 240]
def W2R(i): return W2BASE[i >> 1] + 8 * (i & 1)
ACC2 = 24
RING0 = [96, 104, 88, 12]

def prologue(a):
    if OPT["x16"]:
        a("s_load_dwordx16 s[76:91], s[0:1], 0\ns_load_dwordx4 s[92:95], s[0:1], 64")
    else:
        for (s, off) in ((S_X, 0), (S_QKV, 8), (S_G, 32), (S_U, 40), (S_WS, 72), (S_DBG, 64), (S_WD, 48), (S_WO, 16), (S_OUT, 56)):
            a(f"s_load_dwordx2 s[{s}:{s+1}], s[0:1], {off}")
    a("""v_lshrrev_b32 v1, 6, v0
v_and_b32 v0, 63, v0
s_and_b32 s60, s2, 7
s_lshr_b32 s61, s2, 3
v_readfirstlane_b32 s46, v1
s_lshr_b32 s50, s60, 2
s_lshl_b32 s50, s50, 3
s_and_b32 s62, s61, 7
s_add_u32 s50, s50, s62
s_and_b32 s47, s46, 3""")
    if OPT["amap"]:
        a("""s_and_b32 s51, s60, 3
s_lshl_b32 s51, s51, 1
s_bfe_u32 s62, s61, 0x10003
s_add_u32 s51, s51, s62
s_lshr_b32 s48, s61, 4
s_lshl_b32 s52, s48, 3
s_add_u32 s52, s52, s51""")
    else:
        a("""s_and_b32 s52, s60, 3
s_lshl_b32 s52, s52, 2
s_lshr_b32 s62, s61, 3
s_add_u32 s52, s52, s62
s_lshr_b32 s48, s52, 3
s_and_b32 s51, s52, 7""")
    a(f"""s_cmp_lg_u32 s46, 0
s_cbranch_scc1 syn_skip
v_lshlrev_b32 v2, 2, v0
v_add_u32 v2, {SYN}, v2
v_mov_b32 v3, 0
s_mov_b64 exec, 0xffff
ds_write_b32 v2, v3
s_mov_b64 exec, -1
syn_skip:""")
    for (s, nb) in ((S_X, XB), (S_QKV, WQKV_B), (S_G, WG_B), (S_U, WG_B), (S_WS, WS_USED), (S_DBG, 256), (S_WD, WD_B), (S_WO, WO_B), (S_OUT, XB)):
        a(f"s_mov_b32 s{s+2}, {nb}\ns_mov_b32 s{s+3}, 0x00020000")
    a("""s_mul_i32 s74, s51, 160
s_add_u32 s74, s74, 512
s_and_b32 s75, s51, 1
s_lshl_b32 s72, s75, 5
s_add_u32 s72, s72, s74
s_add_u32 s73, s74, 128
s_cmp_lg_u32 s75, 0
s_cselect_b32 s73, s74, s73""")

def karg_wait(a):
    a("s_waitcnt lgkmcnt(0)")
    if OPT["x16"]:
        for (s, off) in ((S_X, 0), (S_QKV, 8), (S_G, 32), (S_U, 40), (S_WS, 72), (S_DBG, 64), (S_WD, 48), (S_WO, 16), (S_OUT, 56)):
            a(f"s_mov_b64 s[{s}:{s+1}], s[{76+off//4}:{77+off//4}]")

def nonce_load(a):
    a(f"s_load_dword s76, s[{S_WS}:{S_WS+1}], {FLG}")

def p2_scalars(a):
    a(f"""s_and_b32 s60, s2, 7
s_lshr_b32 s61, s2, 3
s_lshr_b32 s77, s61, 2
s_lshl_b32 s78, s60, 2
s_and_b32 s62, s61, 3
s_add_u32 s78, s78, s62
s_and_b32 s79, s77, 1
s_lshl_b32 s79, s79, 2
s_add_u32 s79, s79, s46
s_and_b32 s79, s79, 7
s_mul_i32 s60, s77, 144
s_mul_i32 s61, s79, 10
s_add_u32 s61, s61, 64
s_lshl_b32 s62, s79, 2
s_add_u32 s80, s60, s61
s_lshl_b32 s80, s80, 11
s_add_u32 s80, s80, {PK}
s_add_u32 s82, s60, s62
s_lshl_b32 s82, s82, 11
s_add_u32 s82, s82, {PK}
s_add_u32 s81, s82, {32*2048}
s_mul_i32 s60, s78, 288
s_add_u32 s84, s60, s61
s_lshl_b32 s84, s84, 10
s_add_u32 s84, s84, {OH}
s_add_u32 s86, s60, s62
s_lshl_b32 s86, s86, 10
s_add_u32 s86, s86, {OH}
s_add_u32 s85, s86, {32*1024}
s_lshr_b32 s60, s78, 1
s_lshl_b32 s60, s60, 4
s_add_u32 s88, s60, s79
s_lshl_b32 s88, s88, 7
s_add_u32 s88, s88, {FLG2}
s_add_u32 s87, s88, 1024""")

def w2_loads(vl16):
    out = []
    for i in range(18):
        if i < 10: base, k = 80, i
        elif i < 14: base, k = 81, i - 10
        else: base, k = 82, i - 14
        pre = []
        if k % 2 == 0: pre = [f"s_add_u32 s89, s{base}, {2048*k}"]
        r = W2R(i)
        for nt in range(2):
            out.append((i, pre + [f"buffer_load_dwordx4 v[{r+4*nt}:{r+4*nt+3}], v{vl16}, {srd(S_WS)}, s89 offen offset:{2048*(k%2) + 1024*nt} sc1"]))
            pre = []
    return out

def prod_setup_common(a):
    a("""v_lshrrev_b32 v58, 3, v0
s_lshl_b32 s3, s47, 3
v_add_u32 v56, s3, v58
v_and_b32 v57, 7, v0
v_bfe_u32 v59, v0, 4, 1
v_lshlrev_b32 v59, 2, v59
v_xor_b32 v57, v57, v59
s_and_b32 s3, s47, 1
s_lshl_b32 s3, s3, 1
v_xor_b32 v57, s3, v57
v_lshlrev_b32 v57, 4, v57
s_lshl_b32 s43, s47, 10
s_lshl_b32 s44, s47, 12
s_lshl_b32 s45, s47, 9
s_mov_b32 s53, 0x3f803f80""")
    a("""s_lshl_b32 s3, s50, 7
s_lshl_b32 s60, s47, 5
s_add_u32 s3, s3, s60
v_lshlrev_b32 v59, 1, v58
v_add_u32 v59, s3, v59
v_lshlrev_b32 v59, 10, v59
v_and_b32 v60, 7, v0
v_lshrrev_b32 v61, 4, v0
v_xor_b32 v60, v60, v61
v_lshlrev_b32 v60, 4, v60
v_add_u32 v6, v59, v60
v_xor_b32 v60, 64, v60
v_add_u32 v7, v59, v60
v_add_u32 v7, 0x4000, v7""")
    R = OPT["rot"]
    if R > 1:
        a(f"""s_and_b32 s3, s50, {R-1}
s_mul_i32 s3, s3, {8//R}
s_mul_i32 s40, s3, 196608
s_mul_i32 s41, s3, 229376
s_lshl_b32 s42, s3, 7""")
    else:
        a("s_mov_b32 s40, 0\ns_mov_b32 s41, 0\ns_mov_b32 s42, 0")

def prod_late_setup(a, T):
    a(f"""v_lshrrev_b32 v58, 4, v0
v_bfe_u32 v59, v0, 2, 2
v_lshlrev_b32 v60, 3, v58
v_add_u32 v60, v60, v59
v_lshlrev_b32 v60, 7, v60
v_and_b32 v61, 3, v0
v_lshlrev_b32 v61, 3, v61
v_add_u32 v60, v60, v61
v_and_b32 v61, 2, v59
v_and_b32 v62, 1, v58
v_xor_b32 v61, v61, v62
v_xor_b32 v61, s47, v61
v_lshlrev_b32 v61, 5, v61
v_add_u32 v9, v60, v61
v_add_u32 v10, {3*WST}, v9""")
    a(f"""s_lshl_b32 s3, s50, 7
s_lshl_b32 s60, s47, 6
s_add_u32 s61, s3, s60
v_add_u32 v14, s61, v0
v_lshlrev_b32 v14, 3, v14
v_add_u32 v15, s60, v0
v_lshlrev_b32 v15, 3, v15
v_add_u32 v15, {RST}, v15
s_cmp_lt_u32 s47, 2
s_cbranch_scc1 psa_done{T}
v_and_b32 v58, 7, v0
v_bfe_u32 v59, v0, 3, 1
v_lshlrev_b32 v59, 4, v59
v_add_u32 v58, v58, v59
s_sub_u32 s3, s3, 24
v_add_u32 v14, s3, v58
v_lshlrev_b32 v14, 3, v14
v_and_b32 v15, 15, v0
v_lshlrev_b32 v15, 3, v15
v_add_u32 v15, {RST + 128*8}, v15
s_cmp_lg_u32 s50, 0
s_cbranch_scc1 psa_done{T}
v_mov_b32 v14, 0x80000000
psa_done{T}:""")
    p2_scalars(a)
    a(f"""s_lshl_b32 s3, s50, 8
s_add_u32 s3, s3, {FLG + 256}
s_lshl_b32 s60, s52, 8
s_add_u32 s60, s60, {FLG + 256*17}
s_lshl_b32 s61, s77, 8
s_add_u32 s61, s61, {FLG + 256*33}
v_lshlrev_b32 v58, 4, v0
v_mov_b32 v13, s3
v_add_u32 v59, s3, v58
v_cmp_gt_u32 vcc, 4, v0
v_cndmask_b32 v13, v13, v59, vcc
v_subrev_u32 v59, 4, v0
v_cmp_gt_u32 vcc, 4, v59
s_sub_u32 s60, s60, 64
v_add_u32 v59, s60, v58
v_cndmask_b32 v13, v13, v59, vcc
v_subrev_u32 v59, 8, v0
v_cmp_gt_u32 vcc, 8, v59
s_sub_u32 s61, s61, 128
v_add_u32 v59, s61, v58
v_cndmask_b32 v13, v13, v59, vcc""")
    if T == "A":
        a(f"""s_sub_u32 s61, s3, {256 - 48}
s_cmp_eq_u32 s50, 0
s_cselect_b32 s61, s3, s61
v_cmp_eq_u32 vcc, 16, v0
v_mov_b32 v59, s61
v_cndmask_b32 v13, v13, v59, vcc""")
    a(f"""s_lshl_b32 s61, s52, 2
s_add_u32 s3, s3, s61
s_lshl_b32 s61, s50, 2
s_add_u32 s60, s60, s61
s_add_u32 s60, s60, 64
s_and_b32 s61, s2, 7
s_lshl_b32 s61, s61, 8
s_lshr_b32 s62, s2, 3
s_lshl_b32 s62, s62, 2
s_add_u32 s61, s61, s62
s_add_u32 s61, s61, {FLG + 256*33}
v_mov_b32 v21, s3
v_mov_b32 v59, s60
v_cmp_eq_u32 vcc, 1, v0
v_cndmask_b32 v21, v21, v59, vcc
v_mov_b32 v59, s61
v_cmp_eq_u32 vcc, 2, v0
v_cndmask_b32 v21, v21, v59, vcc""")
    a(f"""v_lshrrev_b32 v58, 5, v0
v_lshlrev_b32 v58, 2, v58
v_bfe_u32 v59, v0, 4, 1
v_lshlrev_b32 v59, 3, v59
v_add_u32 v58, v58, v59
v_lshlrev_b32 v58, 10, v58
v_and_b32 v59, 15, v0
v_lshlrev_b32 v59, 3, v59
v_add_u32 v58, v58, v59
s_and_b32 s60, s2, 7
s_lshl_b32 s61, s60, 7
v_add_u32 v54, s61, v58
v_lshlrev_b32 v55, 4, v0
v_lshlrev_b32 v22, 4, v0
s_lshr_b32 s61, s2, 3
s_lshl_b32 s62, s61, 2
s_add_u32 s62, s62, s47
s_mul_i32 s60, s60, 144
s_add_u32 s92, s60, s62
s_lshl_b32 s92, s92, 11
s_add_u32 s92, s92, {PK}
s_add_u32 s93, s60, s61
s_add_u32 s93, s93, 128
s_lshl_b32 s93, s93, 11
s_add_u32 s93, s93, {PK}
s_add_u32 s91, s61, 96
s_lshl_b32 s91, s91, 14
s_cmp_lt_u32 s62, 32
s_cselect_b32 s{S_PK}, s{S_WO}, s{S_WD}
s_cselect_b32 s{S_PK+1}, s{S_WO+1}, s{S_WD+1}
s_cselect_b32 s{S_PK+2}, s{S_WO+2}, s{S_WD+2}
s_mov_b32 s{S_PK+3}, 0x00020000
s_cselect_b32 s3, 0, 32
s_sub_u32 s90, s62, s3
s_lshl_b32 s90, s90, 14
v_mov_b32 v53, v55
v_mov_b32 v52, v54
s_and_b32 s3, s61, 3
s_cmp_eq_u32 s3, s47
s_cselect_b32 s3, 1, 0
s_cmp_lt_u32 s61, 16
s_cselect_b32 s3, s3, 0
s_cmp_lg_u32 s3, 0
s_cbranch_scc1 pk_act{T}
v_mov_b32 v53, 0x80000000
v_mov_b32 v52, 0x80000000
pk_act{T}:""")
    a(f"""s_lshl_b32 s94, s52, 6
s_add_u32 s94, s94, s47
s_mul_i32 s94, s94, 320
s_add_u32 s94, s94, {CSP}
s_mul_i32 s95, s50, 1280
s_add_u32 s95, s95, s94""")

def pack_valu(a, raw, out):
    for nt in range(2):
        F = out + 4 * nt
        r = [raw + 2 * q + nt for q in range(4)]
        a(f"v_perm_b32 v{F}, v{r[1]}, v{r[0]}, s60\nv_perm_b32 v{F+2}, v{r[1]}, v{r[0]}, s61")
        a(f"v_perm_b32 v{F+1}, v{r[3]}, v{r[2]}, s60\nv_perm_b32 v{F+3}, v{r[3]}, v{r[2]}, s61")
    for nt in range(2):
        F = out + 4 * nt
        a(f"v_permlane16_swap_b32 v{F}, v{F+2}\nv_permlane16_swap_b32 v{F+1}, v{F+3}")

def producer(a, T, st):
    vm = VM()
    A_ = T == "A"
    if A_:
        a("""s_movk_i32 s60, 3072
v_mul_lo_u32 v58, v56, s60
s_lshl_b32 s3, s51, 7
v_add_u32 v58, s3, v58
v_add_u32 v2, v58, v57
s_movk_i32 s60, 3584
v_mul_lo_u32 v58, v56, s60
v_add_u32 v58, s3, v58
v_add_u32 v3, v58, v57
v_xor_b32 v57, 32, v57
v_add_u32 v4, v58, v57""")
        a(f"""s_lshr_b32 s3, s47, 1
s_lshl_b32 s60, s50, 7
s_add_u32 s3, s3, s60
s_sub_u32 s3, s3, 16
s_and_b32 s60, s47, 1
s_lshl_b32 s60, s60, 3
s_add_u32 s3, s3, s60
v_lshrrev_b32 v58, 3, v0
v_lshlrev_b32 v58, 1, v58
v_add_u32 v58, s3, v58
v_lshlrev_b32 v58, 10, v58
v_and_b32 v59, 7, v0
v_lshrrev_b32 v60, 4, v0
v_xor_b32 v59, v59, v60
s_lshl_b32 s60, s47, 1
v_xor_b32 v59, s60, v59
v_and_b32 v59, 7, v59
v_lshlrev_b32 v59, 4, v59
v_add_u32 v8, v58, v59
s_mov_b32 s58, -1
s_mov_b32 s59, 0
s_cmp_lg_u32 s50, 0
s_cbranch_scc1 pA_hok
v_mov_b32 v8, 0x80000000
pA_hok:""")
    else:
        a("""s_movk_i32 s60, 3584
v_mul_lo_u32 v58, v56, s60
s_lshl_b32 s3, s72, 1
v_add_u32 v59, s3, v58
v_add_u32 v2, v59, v57
v_xor_b32 v60, 32, v57
v_add_u32 v3, v59, v60
s_lshl_b32 s3, s73, 1
v_add_u32 v59, s3, v58
v_and_b32 v57, 48, v57
v_and_b32 v60, 48, v60
v_add_u32 v4, v59, v57
v_add_u32 v5, v59, v60
v_bfe_u32 v58, v0, 2, 1
v_bfe_u32 v59, v0, 4, 1
v_xor_b32 v58, v58, v59
v_cmp_eq_u32 vcc, 0, v58
s_mov_b64 s[54:55], vcc
v_cmp_eq_u32 vcc, 1, v58
s_mov_b64 s[56:57], vcc""")
    def W(s):
        if OPT.get("xnodma") and s >= 5:
            issued.add(("W", s)); return
        base = (s % 5) * WST
        if A_:
            lst = [(2, S_QKV, 40, 0), (2, S_QKV, 40, 1024), (2, S_QKV, 40, 2048), (3, S_G, 41, 0), (4, S_U, 41, 0)]
        else:
            lst = [(2, S_G, 41, 0), (2, S_G, 41, 128), (3, S_U, 41, 0), (3, S_U, 41, 128)]
        for sig, (v, sr, so, imm) in enumerate(lst):
            a(f"s_add_u32 m0, s43, {base + sig*4096 - imm}")
            a(f"buffer_load_dwordx4 v{v}, {srd(sr)}, s{so} offen offset:{imm} lds"); vm.issue(("W", s))
        if not A_:
            a(f"s_add_u32 m0, s43, {base + 4*4096}\ns_mov_b64 exec, s[54:55]")
            a(f"buffer_load_dwordx4 v4, {srd(S_G)}, s41 offen lds"); vm.issue(("W", s))
            a("s_mov_b64 exec, s[56:57]")
            a(f"buffer_load_dwordx4 v5, {srd(S_U)}, s41 offen lds"); vm.issue(("W", s))
            a("s_mov_b64 exec, -1")
        if s < 15:
            if A_: a(f"s_add_u32 s40, s40, 98304\ns_cmp_eq_u32 s40, {16*98304}\ns_cselect_b32 s40, 0, s40")
            a(f"s_add_u32 s41, s41, 114688\ns_cmp_eq_u32 s41, {16*114688}\ns_cselect_b32 s41, 0, s41")
        issued.add(("W", s))
    def X(g):
        if OPT.get("xnodma") and g >= 3:
            issued.add(("X", g)); return
        xs = XRING + (g % 3) * XST
        for par in range(2):
            for half in range(2):
                a(f"s_add_u32 m0, s44, {xs + 2048*par + 1024*half - 1024*par}")
                a(f"buffer_load_dwordx4 v{6+half}, {srd(S_X)}, s42 offen offset:{1024*par} lds"); vm.issue(("X", g))
        if A_:
            a(f"s_add_u32 m0, s45, {xs + 16384}\ns_mov_b64 exec, s[58:59]")
            a(f"buffer_load_dwordx4 v8, {srd(S_X)}, s42 offen lds"); vm.issue(("X", g))
            a("s_mov_b64 exec, -1")
        if g < 7: a("s_add_u32 s42, s42, 128\ns_and_b32 s42, s42, 1023")
        issued.add(("X", g))
    issued = set()
    state = dict(sig=0, free=0, land=0, vis=0, lab=0)
    VSY, VSW, VPV, VTHR, VS1, VS2 = 101, 102, 104, 105, 106, 107
    def lab():
        state["lab"] += 1; return f"pq{T}{state['lab']}"
    def SIG(n):
        assert n == state["sig"] + 1, n
        state["sig"] = n
        if n <= 16:
            assert ("W", n - 1) in issued and ("X", (n - 1) >> 1) in issued, n
            w = vm.wait(("W", n - 1), ("X", (n - 1) >> 1))
            if w: a(w)
        a(f"v_mov_b32 v{VS1}, {n}\nds_write_b32 v{VSW}, v{VS1}")
    def POLL(land, done):
        if OPT.get("xnopoll") and done < 16:
            state["land"] = max(state["land"], land); state["free"] = max(state["free"], done); return
        if land <= state["land"] and done <= state["free"]: return
        state["land"] = max(state["land"], land); state["free"] = max(state["free"], done)
        L = lab()
        a(f"v_cndmask_b32 v{VTHR}, {done}, {land}, s[98:99]")
        a(f"""s_mov_b32 s63, 0
{L}:
ds_read_b32 v{VPV}, v{VSY}
s_waitcnt lgkmcnt(0)
v_cmp_gt_u32 vcc, v{VTHR}, v{VPV}
s_cbranch_vccz {L}x""")
        if OPT["slp"]: a(f"s_sleep {OPT['slp']}")
        a(f"""s_add_u32 s63, s63, 1
s_cmp_lt_u32 s63, {SPIN}
s_cbranch_scc1 {L}
{L}x:""")
    def IW(i):
        if i >= 5: assert state["free"] >= i - 4, (i, state)
        W(i)
    def IX(g):
        if g >= 3: assert state["free"] >= 2 * g - 4, (g, state)
        X(g)
    HF = [76, 88]
    NCS = 16 // OPT["rot"] if OPT["rot"] > 1 else 2
    lgR = {1: 3, 2: 1, 4: 2, 8: 3}[OPT["rot"]]
    def halo_mfma(s):
        h = HF[s & 1]
        a(f"v_mfma_f32_16x16x32_bf16 v[24:27], v[{h}:{h+3}], v[{h+8}:{h+11}], v[24:27]")
        a(f"v_mfma_f32_16x16x32_bf16 v[28:31], v[{h+4}:{h+7}], v[{h+8}:{h+11}], v[28:31]")
    def slot_addr(s):
        slot = s % 5
        return (9, slot * WST) if slot < 3 else (10, (slot - 3) * WST)
    def VRD(h):
        assert state["land"] >= h + 1, (h, state)
        vb, off0 = slot_addr(h)
        if A_ and not OPT["nohalo"]:
            hf = HF[h & 1]
            for k, sig in enumerate((1, 2)):
                for i in range(2):
                    d = hf + 4 * k + 2 * i
                    a(f"ds_read_b64_tr_b16 v[{d}:{d+1}], v{vb} offset:{off0 + sig*4096 + 512*i}")
            a(f"ds_read_b128 v[{hf+8}:{hf+11}], v{11 + (h & 1)} offset:{((h >> 1) % 3) * XST}")
        if h < NCS:
            a(f"s_lshr_b32 s3, s50, {lgR}\ns_cmp_lg_u32 s3, {h}\ns_cbranch_scc1 cs_skip{T}{h}")
            for sig in range(5):
                for i in range(2):
                    d = 32 + 4 * sig + 2 * i
                    a(f"ds_read_b64_tr_b16 v[{d}:{d+1}], v{vb} offset:{off0 + sig*4096 + 512*i}")
            for r in range(16, 21): a(f"v_mov_b32 v{r}, 0")
            a("v_lshlrev_b32 v56, 2, v0")
            a("s_waitcnt lgkmcnt(0)")
            for d in range(4):
                for sig in range(5):
                    a(f"v_dot2c_f32_bf16 v{16+sig}, s53, v{32+4*sig+d}")
            a("""v_permlane32_swap_b32 v16, v18
v_permlane32_swap_b32 v17, v19
v_mov_b32 v58, v20
v_add_f32 v16, v16, v18
v_add_f32 v17, v17, v19
v_permlane32_swap_b32 v20, v58
v_add_f32 v20, v20, v58
v_permlane16_swap_b32 v16, v17
v_mov_b32 v58, v20
v_add_f32 v16, v16, v17
v_permlane16_swap_b32 v20, v58
v_add_f32 v20, v20, v58""")
            a(f"""buffer_store_dword v16, v56, {srd(S_WS)}, s95 offen sc1
s_mov_b64 exec, 0xffff
buffer_store_dword v20, v56, {srd(S_WS)}, s95 offen offset:256 sc1
s_mov_b64 exec, -1
cs_skip{T}{h}:""")
            state["cs_mark"] = len(vm.q)
    def VFIN(h):
        assert h == state["vis"], h
        state["vis"] = h + 1
        if A_ or h < NCS:
            last = (not A_) and h == NCS - 1
            a("s_waitcnt lgkmcnt(0)")
            a(f"v_mov_b32 v{VS2}, {64 if last else h + 1}\nds_write_b32 v{VSW}, v{VS2} offset:32")
            if A_ and not OPT["nohalo"]: halo_mfma(h)
    def VIS(h):
        return A_ or h < NCS
    def pack_loads():
        for q in range(4):
            a(f"buffer_load_dwordx2 v[{60+2*q}:{61+2*q}], v54, {srd(S_PK)}, s90 offen offset:{1024*q}"); vm.issue(("pkraw", 0))
        for q in range(4):
            a(f"buffer_load_dwordx2 v[{68+2*q}:{69+2*q}], v52, {srd(S_WD)}, s91 offen offset:{1024*q}"); vm.issue(("pkraw", 1))
    def pack_do(k):
        raw = 60 if k == 0 else 68
        a(vm.wait(("pkraw", k)))
        a("s_mov_b32 s60, 0x05040100\ns_mov_b32 s61, 0x07060302")
        pack_valu(a, raw, 40)
        dv = 55 if k == 0 else 53
        so = 92 if k == 0 else 93
        a(f"buffer_store_dwordx4 v[40:43], v{dv}, {srd(S_WS)}, s{so} offen sc1"); vm.issue("pub")
        a(f"buffer_store_dwordx4 v[44:47], v{dv}, {srd(S_WS)}, s{so} offen offset:1024 sc1"); vm.issue("pub")
    def stats_store():
        a(f"""s_cmp_lg_u32 s47, 0
s_cbranch_scc1 ss_skip{T}
v_lshlrev_b32 v58, 3, v0
v_add_u32 v58, {STG}, v58
s_mov_b64 exec, 0xff
ds_read_b64 v[56:57], v58
v_lshrrev_b32 v59, 1, v0
v_and_b32 v58, 1, v0
v_lshlrev_b32 v58, 4, v58
v_add_u32 v58, v58, v59
v_lshlrev_b32 v58, 3, v58
s_lshl_b32 s60, s50, 7
s_lshl_b32 s61, s52, 3
s_add_u32 s60, s60, s61
s_and_b32 s61, s60, 31
s_lshr_b32 s61, s61, 1
s_andn2_b32 s60, s60, 31
s_add_u32 s60, s60, s61
s_lshl_b32 s60, s60, 3
s_waitcnt lgkmcnt(0)
buffer_store_dwordx2 v[56:57], v58, {srd(S_WS)}, s60 offen sc1
s_mov_b64 exec, -1
ss_skip{T}:""")
        state["ss_mark"] = len(vm.q)
    def arrive():
        marks = [state.get("cs_mark", 0), state.get("ss_mark", 0)]
        idx = max([i for i, t in enumerate(vm.q) if t == "pub"])
        m = max(marks)
        if m < len(vm.q):
            idx = max(idx, m)
            a(f"s_waitcnt vmcnt({len(vm.q) - 1 - idx})")
        else:
            a("s_waitcnt vmcnt(0)")
        a(f"""v_mov_b32 v58, 1
v_mov_b32 v59, {SYN + 48}
s_mov_b64 exec, 1
ds_add_rtn_u32 v58, v59, v58
s_waitcnt lgkmcnt(0)
v_readfirstlane_b32 s60, v58
s_mov_b64 exec, -1
s_cmp_lg_u32 s60, 3
s_cbranch_scc1 pf_skip{T}
s_add_u32 s61, s76, 1
s_mov_b64 exec, 7
v_mov_b32 v58, s61
buffer_store_dword v58, v21, {srd(S_WS)}, 0 offen sc1
s_mov_b64 exec, -1
pf_skip{T}:""")
    def gpoll_issue():
        a(f"""s_cmp_lg_u32 s47, 0
s_cbranch_scc1 pl_skip{T}
buffer_load_dwordx4 v[68:71], v13, {srd(S_WS)}, 0 offen sc1
pl_skip{T}:""")
        state["npoll0"] = len(vm.q)
    def gpoll_check():
        L = lab()
        a(f"""s_mov_b32 s63, 0
s_cmp_lg_u32 s47, 0
s_cbranch_scc1 {L}
s_add_u32 s61, s76, 1
s_waitcnt vmcnt({len(vm.q) - state['npoll0']})
pp_spin{T}:
v_xor_b32 v58, s61, v68
v_xor_b32 v59, s61, v69
v_xor_b32 v60, s61, v70
v_xor_b32 v61, s61, v71
v_or_b32 v58, v58, v59
v_or3_b32 v58, v58, v60, v61
v_cmp_ne_u32 vcc, 0, v58
s_cbranch_vccz pp_done{T}
s_add_u32 s63, s63, 1
s_cmp_ge_u32 s63, 0x8000
s_cbranch_scc1 pp_done{T}
s_sleep 4
buffer_load_dwordx4 v[68:71], v13, {srd(S_WS)}, 0 offen sc1
s_waitcnt vmcnt(0)
s_branch pp_spin{T}
pp_done{T}:
v_mov_b32 v58, 1
v_mov_b32 v59, {SYN + 52}
s_mov_b64 exec, 1
ds_write_b32 v59, v58
s_mov_b64 exec, -1
s_branch {L}x
{L}:
v_mov_b32 v59, {SYN + 52}
{L}s:
ds_read_b32 v58, v59
s_waitcnt lgkmcnt(0)
v_cmp_eq_u32 vcc, 1, v58
s_cbranch_vccnz {L}x
s_add_u32 s63, s63, 1
s_cmp_lt_u32 s63, {SPIN}
s_cbranch_scc1 {L}s
{L}x:""")
    def csp_loads():
        a(f"buffer_load_dwordx2 v[56:57], v14, {srd(S_WS)}, 0 offen sc1"); vm.issue("stats")
        a("v_lshlrev_b32 v58, 2, v0\nv_lshrrev_b32 v59, 4, v0\nv_mul_u32_u24 v59, 1280, v59\nv_and_b32 v60, 15, v0\nv_lshlrev_b32 v60, 2, v60\nv_add_u32 v59, v59, v60")
        for tq in range(16):
            if tq % 3 == 0: a(f"s_add_u32 s3, s94, {1280*tq}")
            a(f"buffer_load_dword v{32+tq}, v58, {srd(S_WS)}, s3 offen offset:{1280*(tq%3)} sc1"); vm.issue("csp")
        for q in range(4):
            a(f"s_add_u32 s3, s94, {5120*q}")
            a(f"buffer_load_dword v{48+q}, v59, {srd(S_WS)}, s3 offen offset:256 sc1"); vm.issue("csp")
    def tables():
        a(vm.wait("stats"))
        a("ds_write_b64 v15, v[56:57]")
        a(vm.wait("csp"))
        for k in range(4): a(f"v_pk_add_f32 v[{32+2*k}:{33+2*k}], v[{32+2*k}:{33+2*k}], v[{40+2*k}:{41+2*k}]")
        a("v_pk_add_f32 v[48:49], v[48:49], v[50:51]")
        for k in range(2): a(f"v_pk_add_f32 v[{32+2*k}:{33+2*k}], v[{32+2*k}:{33+2*k}], v[{36+2*k}:{37+2*k}]")
        a("v_add_f32 v20, v48, v49\nv_pk_add_f32 v[32:33], v[32:33], v[34:35]\nv_mov_b32 v58, v20")
        a("v_add_f32 v16, v32, v33\nv_permlane32_swap_b32 v20, v58\nv_add_f32 v20, v20, v58\nv_mov_b32 v58, v20\nv_permlane16_swap_b32 v20, v58\nv_add_f32 v20, v20, v58")
        for (x, t) in ((16, 60), (20, 66)):
            a(f"""v_cvt_pk_bf16_f32 v{t}, v{x}, v{x}
v_and_b32 v{t+2}, 0xffff0000, v{t}
v_sub_f32 v{x}, v{x}, v{t+2}
v_cvt_pk_bf16_f32 v{t+3}, v{x}, v{x}
v_and_b32 v{t+2}, 0xffff0000, v{t+3}
v_sub_f32 v{x}, v{x}, v{t+2}
v_cvt_pk_bf16_f32 v{t+1}, v{x}, v{x}
v_and_b32 v{t}, 0xffff, v{t}
v_or_b32 v{t}, v{t}, v{t+2}
v_and_b32 v{t+1}, 0xffff, v{t+1}""")
        a(f"""v_and_b32 v58, 15, v0
v_lshlrev_b32 v58, 3, v58
s_lshl_b32 s3, s47, 7
s_add_u32 s3, s3, {CST}
v_add_u32 v103, s3, v58
v_lshrrev_b32 v59, 4, v0
v_lshlrev_b32 v59, 9, v59
v_add_u32 v59, v59, v103
ds_write_b64 v59, v[60:61]
ds_write_b64 v103, v[66:67] offset:2048
s_waitcnt lgkmcnt(0)""")
    VCS = 103
    w2l = w2_loads(55)
    w2i = [0]
    def w2(n):
        for _ in range(n):
            if w2i[0] < len(w2l):
                for x in w2l[w2i[0]][1]: a(x)
                vm.issue(("w2", w2l[w2i[0]][0])); w2i[0] += 1
    FPV = 100
    def fp(k, r):
        if OPT.get("fp") and 0 <= r < 16:
            a(f"s_memtime s[64:65]\ns_waitcnt lgkmcnt(0)\nv_writelane_b32 v{FPV}, s64, {16*k + r}")

    karg_wait(a)
    st("karg")
    pre = {0: ["W0", "X0", "W1", "X1"], 1: ["W0", "X0", "W1", "X1", "W2"], 2: ["W0", "X0", "W1", "X1", "W2", "W3"],
           3: ["W0", "X0", "W1"]}[OPT["ramp"]]
    def I(o): (IW if o[0] == "W" else IX)(int(o[1:]))
    for o in pre: I(o)
    nonce_load(a)
    st("dma_issued")
    prod_late_setup(a, T)
    a(f"""v_min_u32 v{VSY}, 11, v0
v_lshlrev_b32 v{VSY}, 2, v{VSY}
v_add_u32 v{VSY}, {SYN}, v{VSY}
s_lshl_b32 s3, s47, 2
s_add_u32 s3, s3, {SYN}
v_mov_b32 v58, s3
v_lshlrev_b32 v{VSW}, 2, v0
v_add_u32 v{VSW}, {DUM}, v{VSW}
v_cmp_eq_u32 vcc, 0, v0
v_cndmask_b32 v{VSW}, v{VSW}, v58, vcc
v_cmp_gt_u32 vcc, 4, v0
s_mov_b64 s[98:99], vcc""")
    if A_:
        a(f"""v_and_b32 v58, 15, v0
v_lshrrev_b32 v59, 1, v58
v_lshrrev_b32 v60, 4, v0
v_xor_b32 v59, v59, v60
v_lshlrev_b32 v59, 4, v59
v_lshlrev_b32 v58, 7, v58
v_add_u32 v58, v58, v59
v_add_u32 v11, {XRING + 128*128}, v58
v_xor_b32 v12, 64, v11""")
        for r in range(24, 32): a(f"v_mov_b32 v{r}, 0")
    if OPT["pprio"]: a(f"s_setprio {OPT['pprio']}")
    a("s_barrier")
    rest = [o for o in ["W0", "X0", "W1", "X1", "W2", "W3", "X2", "W4"] if o not in pre]
    SIG(1)
    st("Pm1")
    if VIS(0): POLL(1, 0); VRD(0)
    SIG(2)
    def try_sig():
        n = state["sig"] + 1
        if n <= 3 and ("W", n - 1) in issued and ("X", (n - 1) >> 1) in issued: SIG(n)
    k = 0
    for o in rest:
        I(o); k += 1
        if k == OPT["pkl"]: pack_loads()
        if k == 1:
            if VIS(0): VFIN(0)
        if k >= 2 or o == "W2": pass
        if state["sig"] == 2 and k >= OPT.get("s3k", 1 if "W2" in pre else len(rest)) and ("W", 2) in issued and ("X", 1) in issued: SIG(3)
    if state["vis"] == 0 and VIS(0): VFIN(0)
    if state["sig"] == 2: SIG(3)
    if OPT["pkl"] == 0 or OPT["pkl"] > len(rest): pack_loads()
    st("ramp")
    for r in range(0, 15):
        h = r + 1
        need_free = r + 1 if r + 5 < 16 else 0
        extra_free = 0
        if r == OPT["stg"]: extra_free = r + 1
        fp(0, r)
        if OPT.get("xbar"):
            a("s_barrier")
            state["land"] = max(state["land"], h + 1); state["free"] = max(state["free"], r + 1)
        else:
            POLL(h + 1 if VIS(h) else 0, max(need_free, extra_free))
        fp(1, r)
        if r + 4 <= 16: SIG(r + 4)
        if VIS(h): VRD(h)
        if r + 5 < 16:
            IW(r + 5)
            if (r & 1) and (r + 5) // 2 < 8: IX((r + 5) // 2)
        fp(2, r)
        if VIS(h): VFIN(h)
        if not VIS(h): state["vis"] = h + 1
        if r == OPT["pks"]: pack_do(0)
        if r == OPT["pks"] + 1: pack_do(1)
        if r == OPT["stg"]: stats_store()
        if r == OPT["fs"]: arrive()
        if r == OPT["gpoll"] - 1: gpoll_issue()
        if r == OPT["gpoll"]:
            gpoll_check()
            st("gpoll")
            csp_loads()
            w2(OPT["w2r"])
        if r == OPT["gpoll"] + 1: w2(OPT.get("w2r1", 6))
        if r == OPT["gpoll"] + 2:
            tables()
            SIG(17)
            st("tables")
        if r > OPT["gpoll"] + 2: w2(OPT.get("w2r2", 8))
        fp(3, r)
        if r in (3, 7, 11): st(f"P{r}")
    if OPT.get("xbar"): a("s_barrier")
    assert state["sig"] == 17, state
    if OPT.get("fp"):
        a(f"""s_lshl_b32 s3, s2, 3
s_add_u32 s3, s3, s46
s_lshl_b32 s3, s3, 8
s_add_u32 s3, s3, {gen1.PROF_OFF + 2 * (256 * 8 * 256)}
v_lshlrev_b32 v58, 2, v0
s_mov_b32 s{S_WS+2}, {gen1.PROF_OFF + (4 << 20)}
buffer_store_dword v{FPV}, v58, {srd(S_WS)}, s3 offen
s_mov_b32 s{S_WS+2}, {WS_USED}""")
    w2(99)
    st("P15")
    if A_:
        POLL(17, 16)
        a(f"""ds_read_b64 v[60:61], v{VCS} offset:512
ds_read_b64 v[62:63], v{VCS} offset:1024
v_and_b32 v59, 15, v0
v_lshlrev_b32 v59, 3, v59
v_add_u32 v59, {RST + 128*8}, v59
ds_read_b64 v[64:65], v59
v_cmp_gt_u32 vcc, 16, v0
v_bfe_u32 v68, v0, 4, 1
v_mul_u32_u24 v68, 2560, v68
v_bfe_u32 v69, v0, 5, 1
v_bfe_u32 v70, v0, 3, 1
v_and_b32 v71, 7, v0
s_mul_i32 s3, s47, {REG2}
s_waitcnt lgkmcnt(0)
v_cndmask_b32 v66, 0, v64, vcc
v_and_b32 v67, 0xffff, v66
v_mfma_f32_16x16x16_bf16 v[24:27], v[60:61], v[66:67], v[24:27]
v_mfma_f32_16x16x16_bf16 v[28:31], v[62:63], v[66:67], v[28:31]
v_lshlrev_b32 v72, 3, v69
v_mul_u32_u24 v73, 1280, v70
v_lshlrev_b32 v74, 4, v71
v_add_u32 v72, v72, v68
v_add_u32 v73, v73, v74
v_add_u32 v72, v72, v73
v_add_u32 v72, s3, v72
v_mul_u32_u24 v73, 1280, v69
v_mul_u32_u24 v74, 640, v70
v_lshlrev_b32 v75, 3, v71
v_add_u32 v73, v73, v68
v_add_u32 v74, v74, v75
v_add_u32 v73, v73, v74
v_add_u32 v73, s3, v73""")
        for q in range(8): a(f"v_mul_f32 v{24+q}, v{24+q}, v65")
        a(f"""v_cvt_pk_bf16_f32 v60, v24, v25
v_cvt_pk_bf16_f32 v61, v26, v27
v_cvt_pk_bf16_f32 v62, v28, v29
v_cvt_pk_bf16_f32 v63, v30, v31
ds_write_b64 v72, v[60:61] offset:{KOFF}
ds_write_b64 v73, v[62:63] offset:{VOFF}
s_waitcnt lgkmcnt(0)
s_branch attn""")
    else:
        a("s_branch pub")

def cons_setup(a):
    a("""s_lshr_b32 s49, s47, 1
s_and_b32 s47, s47, 1""")
    a("s_cmp_lg_u32 s48, 0\ns_cbranch_scc1 cs_B")
    a(f"""s_lshl_b32 s83, s49, 6
s_mov_b32 s84, 32
s_add_u32 s85, s83, 4096
s_mov_b32 s86, 32
s_add_u32 s87, s83, 8192
s_mov_b32 s88, 32
s_add_u32 s89, s83, {3*4096}
s_mov_b32 s90, {4096+32}
s_add_u32 s91, s83, {3*4096+32}
s_mov_b32 s92, {4096-32}
s_lshl_b32 s66, s51, 2
s_lshl_b32 s3, s49, 1
s_add_u32 s66, s66, s3
s_add_u32 s66, s66, 32
s_add_u32 s67, s66, 1
s_branch cs_D
cs_B:
s_lshr_b32 s60, s72, 4
s_add_u32 s60, s60, 32
s_lshr_b32 s61, s73, 4
s_add_u32 s61, s61, 32
s_cmp_lg_u32 s49, 0
s_cbranch_scc1 cs_B1""")
    def tiles(lst):
        for j, (sa, ca, sb, cb) in enumerate(lst):
            t0 = sa * 4096 + 32 * ca; t1 = sb * 4096 + 32 * cb
            a(f"s_mov_b32 s{83+2*j}, {t0}\ns_mov_b32 s{84+2*j}, {t1 - t0}")
    tiles([(0,0,2,1),(0,1,2,0),(0,2,2,3),(0,3,2,2),(1,0,3,1)])
    a("s_mov_b32 s63, s60\ns_add_u32 s64, s60, 1\ns_add_u32 s65, s60, 2\ns_add_u32 s66, s60, 3\ns_add_u32 s67, s60, 4\ns_branch cs_D\ncs_B1:")
    tiles([(1,1,3,0),(1,2,3,3),(1,3,3,2),(4,0,4,3),(4,1,4,2)])
    a("s_add_u32 s63, s60, 5\ns_add_u32 s64, s60, 6\ns_add_u32 s65, s60, 7\ns_mov_b32 s66, s61\ns_add_u32 s67, s61, 1\ncs_D:")
    a(f"""v_lshrrev_b32 v32, 5, v0
v_bfe_u32 v33, v0, 2, 2
v_lshlrev_b32 v34, 3, v32
v_add_u32 v34, v34, v33
v_lshlrev_b32 v34, 7, v34
v_and_b32 v35, 3, v0
v_lshlrev_b32 v35, 3, v35
v_add_u32 v34, v34, v35
v_and_b32 v35, 2, v33
v_xor_b32 v35, v35, v32
v_lshlrev_b32 v35, 5, v35
v_bfe_u32 v36, v0, 4, 1
v_and_b32 v37, 15, v0
v_lshlrev_b32 v37, 3, v37
v_add_u32 v37, {CST}, v37""")
    for j in range(5):
        a(f"""v_mul_lo_u32 v38, v36, s{84+2*j}
v_add_u32 v38, s{83+2*j}, v38
v_xor_b32 v39, v38, v35
v_add_u32 v{VT[j]}, v39, v34
v_lshrrev_b32 v39, 12, v38
v_lshlrev_b32 v39, 9, v39
v_and_b32 v38, 0x60, v38
v_lshlrev_b32 v38, 2, v38
v_add_u32 v38, v38, v39
v_add_u32 v{VC[j]}, v38, v37""")
    a(f"""v_and_b32 v33, 31, v0
s_lshl_b32 s3, s47, 6
v_add_u32 v33, s3, v33
v_lshlrev_b32 v{VR}, 3, v33
v_add_u32 v{VR}, {RST}, v{VR}
v_bfe_u32 v34, v33, 1, 3
v_xor_b32 v34, v34, v32
v_lshlrev_b32 v34, 4, v34
v_lshlrev_b32 v33, 7, v33
v_add_u32 v33, v33, v34
v_add_u32 v{VX[0]}, {XRING}, v33
v_xor_b32 v{VX[1]}, 32, v{VX[0]}
v_xor_b32 v{VX[2]}, 64, v{VX[0]}
v_xor_b32 v{VX[3]}, 96, v{VX[0]}
v_lshlrev_b32 v{VL16}, 4, v0
v_and_b32 v{VFA}, 3, v0
v_lshlrev_b32 v{VFA}, 2, v{VFA}
v_add_u32 v{VFA}, {SYN}, v{VFA}
s_lshl_b32 s3, s46, 2
s_add_u32 s3, s3, {SYN + 16}
v_mov_b32 v33, s3
v_lshlrev_b32 v{VDA}, 2, v0
v_add_u32 v{VDA}, {DUM}, v{VDA}
v_cmp_eq_u32 vcc, 0, v0
v_cndmask_b32 v{VDA}, v{VDA}, v33, vcc""")

def stats_groups():
    G = []
    def allred(r, t):
        for m in ("quad_perm:[1,0,3,2]", "quad_perm:[2,3,0,1]", "row_half_mirror", "row_mirror"):
            G.append([f"v_add_f32_dpp v{r}, v{r}, v{r} {m} {DPPM}"])
        for sw in ("16", "32"):
            G.append([f"v_mov_b32 v{t}, v{r}"])
            G.append([f"v_permlane{sw}_swap_b32 v{r}, v{t}"])
            G.append([f"v_add_f32 v{r}, v{r}, v{t}"])
    for r in range(2):
        R = 24 + 4 * r
        u = []
        for i in range(4): u += [f"v_lshlrev_b32 v{88+i}, 16, v{R+i}", f"v_and_b32 v{R+i}, 0xffff0000, v{R+i}"]
        u += ["v_pk_add_f32 v[92:93], v[88:89], v[90:91]", f"v_pk_add_f32 v[94:95], v[{R}:{R+1}], v[{R+2}:{R+3}]",
              "v_pk_add_f32 v[92:93], v[92:93], v[94:95]", "v_add_f32 v92, v92, v93"]
        for k in range(0, len(u), 3): G.append(u[k:k + 3])
        allred(92, 94)
        G.append(["v_mul_f32 v92, 0x3b000000, v92"])
        u = []
        for pr in (88, 90, R, R + 2):
            u.append(f"v_pk_add_f32 v[{pr}:{pr+1}], v[{pr}:{pr+1}], v[92:93] op_sel:[0,0] op_sel_hi:[1,0] neg_lo:[0,1] neg_hi:[0,1]")
        u.append(f"v_readfirstlane_b32 s{96+2*r}, v92")
        u.append("v_pk_mul_f32 v[94:95], v[88:89], v[88:89]")
        for pr in (90, R, R + 2): u.append(f"v_pk_fma_f32 v[94:95], v[{pr}:{pr+1}], v[{pr}:{pr+1}], v[94:95]")
        u.append("v_add_f32 v94, v94, v95")
        for k in range(0, len(u), 2): G.append(u[k:k + 2])
        allred(94, 93)
        G.append([f"v_readfirstlane_b32 s{97+2*r}, v94"])
    fin = """v_cmp_eq_u32 vcc, 1, v0
v_mov_b32 v88, s96
v_mov_b32 v90, s98
v_mov_b32 v89, s97
v_mov_b32 v91, s99
v_cndmask_b32 v88, v88, v90, vcc
v_cndmask_b32 v89, v89, v91, vcc
v_mul_f32 v89, 0x3b000000, v89
v_cvt_pk_bf16_f32 v88, v88, v88
v_cvt_pk_bf16_f32 v89, v89, v89
v_xor_b32 v88, 0x80008000, v88
v_and_b32 v89, 0xffff0000, v89
v_add_f32 v89, 0x3727c5ac, v89
v_cvt_pk_bf16_f32 v89, v89, v89
v_and_b32 v89, 0xffff0000, v89
v_sqrt_f32 v89, v89
v_lshlrev_b32 v90, 3, v0
v_cvt_pk_bf16_f32 v89, v89, v89
v_and_b32 v89, 0xffff0000, v89
v_rcp_f32 v89, v89
v_add_u32 v90, s45, v90""".split("\n")
    for k in range(0, len(fin), 2): G.append(fin[k:k + 2])
    G.append(["s_mov_b64 exec, 3", "ds_write_b64 v90, v[88:89]", "s_mov_b64 exec, -1"])
    return G

def cons_reads(m):
    st = m & 1; s = m >> 1; half = m & 1; g = m >> 2; xs = m & 3; slot = s % 5
    def fa(j):
        v, o = (VT[j], slot * WST) if slot < 4 else (VT[j], 0)
        pre = []
        if slot == 4 and half == 0: pre = [f"v_add_u32 v{VT[j]}, {4*WST}, v{VT[j]}"]
        if slot == 0 and half == 0 and s > 0: pre = [f"v_subrev_u32 v{VT[j]}, {4*WST}, v{VT[j]}"]
        r = [f"ds_read_b64_tr_b16 v[{FA[st]+4*j+2*i}:{FA[st]+4*j+2*i+1}], v{v} offset:{o + 2048*half + 512*i}" for i in range(2)]
        if pre: r[0] = pre[0] + "\n" + r[0]
        return r
    def fb(rt):
        return [f"ds_read_b128 v[{FB[st]+4*rt}:{FB[st]+4*rt+3}], v{VX[xs]} offset:{(g % 3)*XST + 4096*rt}"]
    return fb(0) + fa(0) + fb(1) + fa(1) + fa(2) + fa(3) + fa(4)

def table_reads():
    r = [f"ds_read_b64 v[{32+2*j}:{33+2*j}], v{VC[j]}" for j in range(5)]
    r += [f"ds_read_b64 v[{42+2*rt}:{43+2*rt}], v{VR} offset:{256*rt}" for rt in range(2)]
    return r

def ffn_tile(rt, j):
    b = ACC(rt, j); L = []
    for q in range(4): L.append(f"v_pk_mul_f32 v[{b+2*q}:{b+2*q+1}], v[{b+2*q}:{b+2*q+1}], v[{b+8+2*q}:{b+9+2*q}]")
    for q in range(4): L.append(f"v_pk_mul_f32 v[{b+2*q}:{b+2*q+1}], v[{b+2*q}:{b+2*q+1}], v[50:51] op_sel:[0,{rt}] op_sel_hi:[1,{rt}]")
    for q in range(4): L.append(f"v_cvt_pk_bf16_f32 v{b+8+q}, v{b+2*q}, v{b+2*q+1}")
    sc = " sc1" if OPT["fuse"] else ""
    L += [f"s_add_u32 s3, s{60+rt}, s{63+j}", "s_lshl_b32 s3, s3, 10", f"s_add_u32 s3, s3, {OH}",
          f"buffer_store_dwordx4 v[{b+8}:{b+11}], v{VL16}, {srd(S_WS)}, s3 offen{sc}"]
    return L

def code_prefetch(a):
    a("""s_getpc_b64 s[60:61]
pf_base:
s_lshl_b32 s3, s46, 14
v_lshlrev_b32 v88, 7, v0
v_add_u32 v88, s3, v88
v_add_u32 v90, 0x2000, v88
v_min_u32 v88, k1_done - pf_base, v88
v_min_u32 v90, k1_done - pf_base, v90
v_mov_b32 v89, s61
v_mov_b32 v91, s61
v_add_co_u32 v88, vcc, s60, v88
v_addc_co_u32 v89, vcc, 0, v89, vcc
v_add_co_u32 v90, vcc, s60, v90
v_addc_co_u32 v91, vcc, 0, v91, vcc
global_load_dword v92, v[88:89], off
global_load_dword v93, v[90:91], off""")

def consumer(a, st):
    if OPT["pf"]: code_prefetch(a)
    a(f"""s_lshl_b32 s60, s50, 7
s_lshl_b32 s61, s52, 3
s_add_u32 s60, s60, s61
s_lshl_b32 s61, s47, 1
s_add_u32 s60, s60, s61
v_lshlrev_b32 v32, 4, v0
s_lshl_b32 s45, s47, 4
s_add_u32 s45, s45, {STG}
s_lshl_b32 s44, s60, 10""")
    karg_wait(a)
    a(f"buffer_load_dwordx4 v[24:27], v32, {srd(S_X)}, s44 offen\nbuffer_load_dwordx4 v[28:31], v32, {srd(S_X)}, s44 offen offset:1024")
    nonce_load(a)
    cons_setup(a)
    p2_scalars(a)
    st("setup")
    a("s_barrier")
    slow = []
    def check(tag, need, addr=None):
        a(f"v_cmp_gt_u32 vcc, {need}, v{VF}\ns_cbranch_vccnz cw{tag}\ncw{tag}x:")
        slow.append(f"""cw{tag}:
s_mov_b32 s43, 0
cw{tag}l:
ds_read_b32 v{VF}, v{VFA}
s_waitcnt lgkmcnt(0)
v_cmp_gt_u32 vcc, {need}, v{VF}
s_cbranch_vccz cw{tag}x
s_add_u32 s43, s43, 1
s_cmp_lt_u32 s43, {SPIN}
s_cbranch_scc1 cw{tag}l
s_branch cw{tag}x""")
    a(f"ds_read_b32 v{VF}, v{VFA}\ns_waitcnt lgkmcnt(0)")
    check("s", 1)
    st("Pm1")
    if OPT["prio"]: a(f"s_setprio {OPT['prio']}")
    for x in cons_reads(0): a(x)
    G = stats_groups(); gi = 0
    store_step = None
    for n in range(32):
        cur = n & 1
        rd = cons_reads(n + 1) if n < 31 else table_reads()
        if not (n & 1) and not OPT.get("xnoflag"):
            fl = [f"ds_read_b32 v{VF}, v{VFA}"]
            rd = (fl + rd) if OPT.get("flfirst") else (rd + fl)
        mf = []
        for j in range(5):
            for rt in range(2):
                b = ACC(rt, j)
                c = f"v[{b}:{b+15}]" if n else "0"
                mf.append(f"v_mfma_f32_32x32x16_bf16 v[{b}:{b+15}], v[{FA[cur]+4*j}:{FA[cur]+4*j+3}], v[{FB[cur]+4*rt}:{FB[cur]+4*rt+3}], {c}")
        a("s_waitcnt lgkmcnt(0)")
        if OPT.get("fp") and n >= 2 and n % 2 == 0:
            a(f"v_writelane_b32 v1, s90, {(n-2)//2}\nv_writelane_b32 v1, s92, {16 + (n-2)//2}")
        if n == 1: a("s_waitcnt vmcnt(0)")
        k = 0
        if n & 1:
            for _ in range(OPT["nb"]): a(mf[k]); k += 1
            a(f"ds_write_b32 v{VDA}, v{VDV}")
            if OPT.get("fp"): a("s_memtime s[90:91]")
            if OPT.get("xbar"): a("s_barrier")
            if not ((OPT.get("xnochk") or OPT.get("xbar")) and n < 31): check(n, (n >> 1) + 2)
            if OPT.get("fp"): a("s_memtime s[92:93]")
        else:
            a(mf[k]); k += 1
            a(f"v_mov_b32 v{VDV}, {(n >> 1) + 1}")
        per = OPT['per']
        i = 0
        while k < 10:
            for x in rd[i:i + per]: a(x)
            i += per
            if n >= 1 and gi < len(G):
                for x in G[gi]: a(x)
                gi += 1
                if gi == len(G): store_step = n
            a(mf[k]); k += 1
        for x in rd[i:]: a(x)
        if n in (1, 7, 15, 23): st(f"s{n}")
    assert store_step < 2 * OPT["stg"] + 1, store_step
    assert gi == len(G)
    if OPT.get("fp"):
        a(f"""s_waitcnt lgkmcnt(0)
v_writelane_b32 v1, s90, 15
v_writelane_b32 v1, s92, 31
s_lshl_b32 s3, s2, 3
s_add_u32 s3, s3, s46
s_lshl_b32 s3, s3, 8
s_add_u32 s3, s3, {gen1.PROF_OFF + 2 * (256 * 8 * 256)}
v_lshlrev_b32 v88, 2, v0
s_mov_b32 s{S_WS+2}, {gen1.PROF_OFF + (4 << 20)}
buffer_store_dword v1, v88, {srd(S_WS)}, s3 offen
s_mov_b32 s{S_WS+2}, {WS_USED}""")
    st("loop_end")
    if OPT["prio"]: a("s_setprio 0")
    a("""s_waitcnt lgkmcnt(0)
v_cmp_gt_u32 vcc, 32, v0
v_cndmask_b32 v46, 0, v42, vcc
v_cndmask_b32 v48, 0, v44, vcc
v_and_b32 v47, 0xffff, v46
v_and_b32 v49, 0xffff, v48
v_mul_f32 v50, v43, v43
v_mul_f32 v51, v45, v45
s_lshl_b32 s60, s50, 2
s_lshl_b32 s3, s47, 1
s_add_u32 s60, s60, s3
s_mul_i32 s60, s60, 144
s_add_u32 s61, s60, 144""")
    for j in range(5):
        for rt in range(2):
            b = ACC(rt, j)
            a(f"v_mfma_f32_32x32x8_bf16 v[{b}:{b+15}], v[{32+2*j}:{33+2*j}], v[{46+2*rt}:{47+2*rt}], v[{b}:{b+15}]")
    a("s_cmp_lg_u32 s48, 0\ns_cbranch_scc1 ep_B")
    a(f"""v_and_b32 v30, 7, v0
v_lshlrev_b32 v30, 2, v30
v_add_u32 v30, {SYN + 16}, v30
ds_read_b32 v31, v30""")
    slow.append(f"""cwe:
s_mov_b32 s43, 0
cwel:
ds_read_b32 v31, v30
s_waitcnt lgkmcnt(0)
v_cmp_gt_u32 vcc, 16, v31
s_cbranch_vccz cwex
s_add_u32 s43, s43, 1
s_cmp_lt_u32 s43, {SPIN}
s_cbranch_scc1 cwel
s_branch cwex""")
    a(f"""v_lshrrev_b32 v24, 5, v0
v_mul_u32_u24 v24, 2560, v24
v_bfe_u32 v25, v0, 4, 1
v_and_b32 v26, 15, v0
s_mul_i32 s3, s49, {2*REG2}
v_mul_u32_u24 v27, 1280, v25
v_lshlrev_b32 v28, 4, v26
v_add_u32 v27, v27, v24
v_add_u32 v27, v27, v28
s_lshl_b32 s62, s47, 9
s_add_u32 s62, s62, s3
s_add_u32 s62, s62, 128
v_add_u32 v27, s62, v27
v_mul_u32_u24 v28, 640, v25
v_lshlrev_b32 v29, 3, v26
v_add_u32 v28, v28, v24
v_add_u32 v28, v28, v29
s_lshl_b32 s62, s47, 8
s_add_u32 s62, s62, s3
s_add_u32 s62, s62, {VOFF + 64}
v_add_u32 v28, s62, v28
s_waitcnt lgkmcnt(0)
v_cmp_gt_u32 vcc, 16, v31
s_cbranch_vccnz cwe
cwex:""")
    w2l = w2_loads(VL16) if OPT["fuse"] else []
    w2i = [0]
    def w2_upto(freed_tiles, n):
        for _ in range(n):
            if w2i[0] < len(w2l) and (w2l[w2i[0]][0] >> 1) < freed_tiles:
                for x in w2l[w2i[0]][1]: a(x)
                w2i[0] += 1
    nt_done = 0
    for j in range(3):
        for rt in range(2):
            b = ACC(rt, j)
            for q in range(8):
                a(f"v_pk_mul_f32 v[{b+2*q}:{b+2*q+1}], v[{b+2*q}:{b+2*q+1}], v[{42+2*rt}:{43+2*rt}] op_sel:[0,1] op_sel_hi:[1,1]")
            for q in range(8): a(f"v_cvt_pk_bf16_f32 v{b+q}, v{b+2*q}, v{b+2*q+1}")
            for hh in range(2):
                if j < 2:
                    a(f"ds_write_b128 v27, v[{b+4*hh}:{b+4*hh+3}] offset:{(QOFF, KOFF)[j] + REG2*hh + 256*rt}")
                else:
                    for mm in range(2):
                        a(f"ds_write_b64 v28, v[{b+4*hh+2*mm}:{b+4*hh+2*mm+1}] offset:{REG2*hh + 1280*mm + 128*rt}")
            nt_done += 1
            w2_upto(nt_done - 1, 2)
    for j in (3, 4):
        for rt in range(2):
            for x in ffn_tile(rt, j): a(x)
            nt_done += 1
            w2_upto(nt_done - 1, 2)
    a("s_waitcnt lgkmcnt(0)")
    st("staged")
    w2_upto(9, OPT.get("w2a", 8))
    return w2l, w2i, slow

def attention(a, st, tail_loads):
    Q = 24; K = 32; V = 56; S = [80, 84, 88]; T = 92; PP = 24
    VA = 20; VB = 21
    tl = list(tail_loads or [])
    cnt = [0]
    def tail(n):
        if not tl: return
        cnt[0] += 1
        a(f"s_cmp_lt_u32 s46, 4\ns_cbranch_scc0 at_tl{cnt[0]}")
        for _ in range(n):
            if tl:
                for x in tl.pop(0)[1]: a(x)
        a(f"at_tl{cnt[0]}:")
    a(f"""attn:
s_barrier
s_and_b32 s47, s46, 3
s_lshr_b32 s49, s46, 2
v_lshrrev_b32 v1, 5, v0
s_lshl_b32 s3, s49, 1
v_add_u32 v1, s3, v1
v_lshlrev_b32 v{VA}, 4, v1
v_and_b32 v{T}, 15, v0
v_add_u32 v{VA}, v{VA}, v{T}
v_bfe_u32 v{T+1}, v0, 4, 1
v_mul_u32_u24 v{T+2}, 1280, v{T+1}
v_lshlrev_b32 v{VB}, 4, v{VA}
v_add_u32 v{VB}, v{VB}, v{T+2}
s_mul_i32 s3, s47, {REG2}
v_add_u32 v{VB}, s3, v{VB}""")
    a(f"ds_read_b128 v[{Q}:{Q+3}], v{VB} offset:{QOFF + 128}\nds_read_b128 v[{Q+4}:{Q+7}], v{VB} offset:{QOFF + 128 + 2560}")
    for kb in range(3):
        a(f"ds_read_b128 v[{K+8*kb}:{K+8*kb+3}], v{VB} offset:{KOFF + 64*kb}\nds_read_b128 v[{K+8*kb+4}:{K+8*kb+7}], v{VB} offset:{KOFF + 64*kb + 2560}")
    a(f"""v_lshlrev_b32 v1, 4, v1
v_and_b32 v{T}, 3, v0
v_lshlrev_b32 v{T}, 2, v{T}
v_add_u32 v1, v1, v{T}
v_bfe_u32 v{T}, v0, 2, 2
v_add_u32 v1, v1, v{T}
v_lshlrev_b32 v1, 3, v1
v_mul_u32_u24 v{T}, 640, v{T+1}
v_add_u32 v1, v1, v{T}
s_add_u32 s3, s3, {VOFF}
v_add_u32 v1, s3, v1""")
    for kb in range(3):
        for m in range(4):
            d = V + 8 * kb + 2 * m
            a(f"ds_read_b64_tr_b16 v[{d}:{d+1}], v1 offset:{1280*m + 32*kb}")
    a(f"""v_mov_b32 v{T}, 0
v_mov_b32 v{T+1}, 0
s_cmp_lg_u32 s50, 0
s_cbranch_scc1 at_nomask
v_mov_b32 v{T+2}, 0xf149f2ca
v_cmp_gt_u32 vcc, 8, v{VA}
v_cndmask_b32 v{T}, 0, v{T+2}, vcc
v_cmp_gt_u32 vcc, 4, v{VA}
v_cndmask_b32 v{T+1}, 0, v{T+2}, vcc
at_nomask:""")
    for i in range(4): a(f"v_mov_b32 v{S[0]+i}, v{T}\nv_mov_b32 v{S[1]+i}, v{T+1}")
    tail(OPT["tl0"])
    a("s_waitcnt lgkmcnt(12)")
    for ds in range(4):
        for kb in range(3):
            c = f"v[{S[kb]}:{S[kb]+3}]" if not (kb == 2 and ds == 0) else "0"
            a(f"v_mfma_f32_4x4x4_16b_bf16 v[{S[kb]}:{S[kb]+3}], v[{K+8*kb+2*ds}:{K+8*kb+2*ds+1}], v[{Q+2*ds}:{Q+2*ds+1}], {c}")
    a("""s_mov_b32 s62, 0x11111111
s_mov_b32 s63, 0x11111111
s_mov_b32 s64, 0x33333333
s_mov_b32 s65, 0x33333333
s_mov_b32 s66, 0x77777777
s_mov_b32 s67, 0x77777777
s_mov_b32 s61, 0x3eb8aa3b""")
    tail(OPT["tl1"])
    a(f"v_cndmask_b32 v{S[2]+1}, v{S[2]+1}, v{S[0]+1}, s[62:63]")
    a(f"v_cndmask_b32 v{S[2]+2}, v{S[2]+2}, v{S[0]+2}, s[64:65]")
    a(f"v_cndmask_b32 v{S[2]+3}, v{S[2]+3}, v{S[0]+3}, s[66:67]")
    p = [S[2] + i for i in range(4)] + [S[1] + i for i in range(4)]
    t0, t1, t2, t3 = T, T + 1, T + 2, T + 3
    a(f"v_max3_f32 v{t0}, v{p[0]}, v{p[1]}, v{p[2]}\nv_max3_f32 v{t1}, v{p[3]}, v{p[4]}, v{p[5]}")
    a(f"v_max3_f32 v{t0}, v{t0}, v{p[6]}, v{p[7]}\nv_max_f32 v{t0}, v{t0}, v{t1}\nv_mul_f32 v{t0}, s61, v{t0}")
    for x in p: a(f"v_fma_f32 v{x}, s61, v{x}, -v{t0}")
    for x in p: a(f"v_exp_f32 v{x}, v{x}")
    tail(OPT["tl2"])
    a(f"v_add_f32 v{t1}, v{p[0]}, v{p[1]}\nv_add_f32 v{t2}, v{p[2]}, v{p[3]}\nv_add_f32 v{t3}, v{p[4]}, v{p[5]}\nv_add_f32 v{t0}, v{p[6]}, v{p[7]}")
    a(f"v_add_f32 v{t1}, v{t1}, v{t2}\nv_add_f32 v{t0}, v{t0}, v{t3}\nv_add_f32 v{t0}, v{t0}, v{t1}\nv_rcp_f32 v{t0}, v{t0}")
    for x in p: a(f"v_mul_f32 v{x}, v{x}, v{t0}")
    P0, P1, P2, P3, P4, P5 = [PP + i for i in range(6)]
    a(f"""v_cvt_pk_bf16_f32 v{P0}, v{p[0]}, v{p[1]}
v_cvt_pk_bf16_f32 v{P1}, v{p[2]}, v{p[3]}
v_cvt_pk_bf16_f32 v{P2}, v{p[4]}, v{p[5]}
v_cvt_pk_bf16_f32 v{P3}, v{p[6]}, v{p[7]}
v_mov_b32 v{t0}, 0xffff0000
v_cndmask_b32 v{t1}, 0, v{t0}, s[62:63]
v_cndmask_b32 v{t2}, 0, v{t0}, s[66:67]
v_mov_b32 v{t0}, 0xffff
v_cndmask_b32 v{t3}, 0, v{t0}, s[64:65]
v_or_b32 v{t2}, v{t2}, v{t3}
v_and_b32 v{P4}, v{P0}, v{t1}
v_and_b32 v{P5}, v{P1}, v{t2}
v_xor_b32 v{P0}, v{P0}, v{P4}
v_xor_b32 v{P1}, v{P1}, v{P5}
s_waitcnt lgkmcnt(0)""")
    Pk = [P4, P2, P0]
    tail(99)
    O = [K, K + 4, K + 8, K + 12]
    for kb in range(3):
        for m in range(4):
            c = f"v[{O[m]}:{O[m]+3}]" if kb else "0"
            d = V + 8 * kb + 2 * m
            a(f"v_mfma_f32_4x4x4_16b_bf16 v[{O[m]}:{O[m]+3}], v[{d}:{d+1}], v[{Pk[kb]}:{Pk[kb]+1}], {c}")
    Qo = 48
    for m in range(4):
        a(f"v_cvt_pk_bf16_f32 v{Qo+2*m}, v{O[m]}, v{O[m]+1}\nv_cvt_pk_bf16_f32 v{Qo+2*m+1}, v{O[m]+2}, v{O[m]+3}")
    sc = " sc1" if OPT["fuse"] else ""
    a(f"""v_lshrrev_b32 v{t0}, 5, v0
s_mov_b32 s3, {OH_TILE}
v_mul_lo_u32 v{t0}, v{t0}, s3
v_and_b32 v{t1}, 31, v0
v_lshlrev_b32 v{t1}, 4, v{t1}
v_add_u32 v{t0}, v{t0}, v{t1}
s_lshl_b32 s3, s50, 2
s_lshl_b32 s61, s49, 1
s_add_u32 s3, s3, s61
s_mul_i32 s3, s3, 144
s_lshl_b32 s61, s51, 2
s_add_u32 s3, s3, s61
s_add_u32 s3, s3, s47
s_lshl_b32 s3, s3, 10
s_add_u32 s3, s3, {OH}
buffer_store_dwordx4 v[{Qo}:{Qo+3}], v{t0}, {srd(S_WS)}, s3 offen{sc}
buffer_store_dwordx4 v[{Qo+4}:{Qo+7}], v{t0}, {srd(S_WS)}, s3 offen offset:512{sc}""")
    if OPT["fuse"]:
        st("attn_done")
        a("s_waitcnt vmcnt(0)")
        st("drainedA")
        a("s_branch pub")
    else:
        a("s_branch p1_done")

RW = 20480; RT = 5120; RQ = 1280; RH = 640
def phase2(a, st):
    ws = srd(S_WS)
    a(f"""pub:
s_barrier
s_cmp_lg_u32 s46, 4
s_cbranch_scc1 p2_go
s_mov_b64 exec, 1
s_add_u32 s61, s76, 1
v_mov_b32 v20, s61
s_lshl_b32 s3, s50, 4
s_add_u32 s3, s3, s52
s_lshl_b32 s3, s3, 7
s_add_u32 s3, s3, {FLG2}
buffer_store_dword v20, off, {ws}, s3 sc1
s_mov_b64 exec, -1
p2_go:""")
    st("pub")
    a(f"""buffer_load_dword v20, off, {ws}, s87 sc1
s_add_u32 s76, s76, 1
v_lshlrev_b32 v22, 4, v0
v_add_u32 v21, {OH_TILE}, v22
s_mov_b32 s60, 0""")
    def spin(tag, sreg, first_wait):
        a(first_wait)
        a(f"""p2_spin{tag}:
v_cmp_eq_u32 vcc, s76, v20
s_cbranch_vccnz p2_ok{tag}
s_add_u32 s60, s60, 1
s_cmp_ge_u32 s60, 0x8000
s_cbranch_scc1 p2_ok{tag}
s_sleep 2
buffer_load_dword v20, off, {ws}, s{sreg} sc1
s_waitcnt vmcnt(0)
s_branch p2_spin{tag}
p2_ok{tag}:""")
    spin("B", 87, "s_waitcnt vmcnt(0)")
    st("pollB")
    if OPT["p2prio"]: a(f"s_setprio {OPT['p2prio']}")
    vm = VM()
    free = list(OPT.get("ring0", [96, 104, 88, 12, 2]))
    slot = {}
    nxt = [0]
    lastso = [None]
    def issue(limit):
        while nxt[0] < limit and free:
            i = nxt[0]; nxt[0] += 1
            if i < 10: base, k = 84, i
            elif i < 14: base, k = 85, i - 10
            else: base, k = 86, i - 14
            key = (base, k >> 2)
            if lastso[0] != key:
                a(f"s_add_u32 s89, s{base}, {4096 * (k >> 2)}"); lastso[0] = key
            r = free.pop(0); slot[i] = r
            for rt in range(2):
                a(f"buffer_load_dwordx4 v[{r+4*rt}:{r+4*rt+3}], v{22-rt}, {ws}, s89 offen offset:{1024*(k&3)} sc1"); vm.issue(("L", i))
    issue(10)
    RES = None
    okA = False
    for i in range(18):
        a(vm.wait(("L", i)))
        if i == OPT["chkA"]:
            a("s_mov_b32 s60, 0")
            spin("A", 88, "s_nop 0")
            st("pollA")
            okA = True
            issue(18)
        w = W2R(i); o = slot[i]
        for rt in range(2):
            for nt in range(2):
                c = ACC2 + 16 * (2 * rt + nt)
                cc = f"v[{c}:{c+15}]" if i else "0"
                a(f"v_mfma_f32_32x32x16_bf16 v[{c}:{c+15}], v[{w+4*nt}:{w+4*nt+3}], v[{o+4*rt}:{o+4*rt+3}], {cc}")
        free += [o, w]
        if i == 0:
            a(f"buffer_load_dword v20, off, {ws}, s88 sc1"); vm.issue("pollA")
        issue(18 if okA else 10)
        if nxt[0] == 18 and RES is None and free:
            RES = free.pop(0)
            a(f"""s_and_b32 s60, s46, 3
s_lshl_b32 s60, s60, 3
v_and_b32 v10, 7, v0
v_add_u32 v10, s60, v10
v_and_b32 v11, 15, v10
v_lshlrev_b32 v11, 1, v11
v_lshrrev_b32 v1, 4, v10
v_add_u32 v11, v11, v1
s_lshr_b32 s61, s46, 2
s_lshl_b32 s61, s61, 5
s_lshl_b32 s62, s78, 6
s_add_u32 s61, s61, s62
v_add_u32 v11, s61, v11
v_lshlrev_b32 v11, 10, v11
v_bfe_u32 v1, v0, 3, 2
v_lshlrev_b32 v1, 5, v1
v_add_u32 v11, v11, v1
v_lshrrev_b32 v1, 5, v0
v_lshlrev_b32 v1, 4, v1
v_add_u32 v11, v11, v1
s_lshl_b32 s62, s77, 7
v_add_u32 v11, s62, v11
buffer_load_dwordx4 v[{RES}:{RES+3}], v11, {srd(S_X)}, 0 offen""")
            vm.issue("res")
            a(f"""v_lshlrev_b32 v10, 4, v10
v_lshrrev_b32 v1, 5, v0
v_mul_u32_u24 v1, {4*RW}, v1
v_add_u32 v10, v10, v1
v_bfe_u32 v1, v0, 4, 1
v_mul_u32_u24 v1, {RQ}, v1
v_add_u32 v10, v10, v1
v_bfe_u32 v1, v0, 3, 1
v_mul_u32_u24 v1, {RH}, v1
v_add_u32 v10, v10, v1
s_lshr_b32 s61, s46, 2
s_mul_i32 s61, s61, {2*RT}
v_add_u32 v10, s61, v10""")
            a(f"""v_and_b32 v20, 31, v0
v_lshlrev_b32 v20, 4, v20
v_lshrrev_b32 v1, 5, v0
v_mul_u32_u24 v1, {RH}, v1
v_add_u32 v20, v20, v1
s_mul_i32 s61, s46, {RW}
v_add_u32 v20, s61, v20""")
        if i in (0, 4, 9, 13): st(f"q{i}")
    assert nxt[0] == 18 and RES is not None
    st("p2_loop")
    if OPT["p2prio"]: a("s_setprio 0")
    for rt in range(2):
        for nt in range(2):
            c = ACC2 + 16 * (2 * rt + nt)
            for q in range(4):
                a(f"ds_write_b128 v20, v[{c+4*q}:{c+4*q+3}] offset:{(2*rt+nt)*RT + q*RQ}")
    a(vm.wait("res"))
    a("s_waitcnt lgkmcnt(0)")
    for i in range(4):
        a(f"v_lshlrev_b32 v{24+2*i}, 16, v{RES+i}\nv_and_b32 v{25+2*i}, 0xffff0000, v{RES+i}")
    a("s_barrier")
    st("red_w")
    a(f"v_add_u32 v1, {2*RW}, v10")
    for sidx in range(4):
        for c in range(4):
            nt, hb = c >> 1, c & 1
            base = 10 if sidx < 2 else 1
            off = (sidx & 1) * RW + nt * RT + 2 * hb * RQ
            d = 96 + 16 * sidx + 4 * c
            a(f"ds_read_b128 v[{d}:{d+3}], v{base} offset:{off}")
    a("s_waitcnt lgkmcnt(8)")
    for k in range(8): a(f"v_pk_add_f32 v[{96+2*k}:{97+2*k}], v[{96+2*k}:{97+2*k}], v[{112+2*k}:{113+2*k}]")
    a("s_waitcnt lgkmcnt(0)")
    for k in range(8): a(f"v_pk_add_f32 v[{128+2*k}:{129+2*k}], v[{128+2*k}:{129+2*k}], v[{144+2*k}:{145+2*k}]")
    for k in range(8): a(f"v_pk_add_f32 v[{96+2*k}:{97+2*k}], v[{96+2*k}:{97+2*k}], v[{128+2*k}:{129+2*k}]")
    for c in range(4):
        for r in range(2): a(f"v_permlane32_swap_b32 v{96+4*c+r}, v{96+4*c+r+2}")
    for r in range(2):
        for c in range(4):
            a(f"v_add_f32 v{96+4*c+r}, v{96+4*c+r}, v{96+4*c+r+2}")
    for r in range(2):
        for c in range(4):
            a(f"v_add_f32 v{24+4*r+c}, v{24+4*r+c}, v{96+4*c+r}")
    for k in range(4): a(f"v_cvt_pk_bf16_f32 v{32+k}, v{24+2*k}, v{25+2*k}")
    a(f"buffer_store_dwordx4 v[32:35], v11, {srd(S_OUT)}, 0 offen")
    a(f"""s_or_b32 s3, s2, s46
s_cmp_lg_u32 s3, 0
s_cbranch_scc1 p2_noep
s_mov_b64 exec, 1
v_mov_b32 v20, s76
s_mov_b32 s3, {FLG}
buffer_store_dword v20, off, {ws}, s3
s_mov_b64 exec, -1
p2_noep:""")

DBG_NAMES = ["nstart", "start", "karg", "Pm1", "P3", "P7", "P11", "P15", "attn_done", "pub", "pollB", "pollA", "p2_loop", "red_w", "end", "dma_issued"]
class DStamps:
    def __init__(self, a): self.a = a; self.n = 0; self.names = []
    def __call__(self, name, real=False):
        if name in DBG_NAMES:
            self.a(f"s_memrealtime s[100:101]\ns_waitcnt lgkmcnt(0)\nv_writelane_b32 v{VSTAMP}, s100, {DBG_NAMES.index(name)}")
    def dump(self, w, t): pass

def gen_k1(P, name="k1_kernel"):
    a = A()
    a("s_cmp_ge_u32 s2, 256\ns_cbranch_scc1 k1_done")
    global Stamps
    if OPT.get("dbgp"):
        Stamps = lambda a_, v, k: DStamps(a_)
        a(f"v_mov_b32 v{VSTAMP}, 0")
        a(f"s_memrealtime s[100:101]\ns_waitcnt lgkmcnt(0)\nv_writelane_b32 v{VSTAMP}, s100, 1\ns_not_b32 s100, s100\nv_writelane_b32 v{VSTAMP}, s100, 0")
    stc = Stamps(a, VSTAMP, 1); stp = Stamps(a, VSTAMP, 1)
    if gen1.PROF:
        stc("real0", True); stc("start")
        stp.names = list(stc.names); stp.n = stc.n
    prologue(a)
    a("s_cmp_lt_u32 s46, 4\ns_cbranch_scc1 cons")
    prod_setup_common(a)
    a("s_cmp_lg_u32 s48, 0\ns_cbranch_scc1 prodB")
    n0 = stp.n; nm0 = list(stp.names)
    producer(a, "A", stp)
    a("prodB:")
    stp.n = n0; stp.names = list(nm0)
    producer(a, "B", stp)
    a("cons:")
    w2l, w2i, slow = consumer(a, stc)
    sta = Stamps(a, VSTAMP, 1); sta.n = 16; sta.names = [None] * 16
    attention(a, sta, w2l[w2i[0]:] if OPT["fuse"] else None)
    for x in slow: a(x)
    a("ep_B:\ns_nop 3")
    k = 0; nd = 0
    for j in range(5):
        for rt in range(2):
            for x in ffn_tile(rt, j): a(x)
            nd += 1
            for _ in range(2):
                if OPT["fuse"] and k < len(w2l) and (w2l[k][0] >> 1) < nd - 1:
                    for x in w2l[k][1]: a(x)
                    k += 1
    if OPT["fuse"]:
        sta.n = 16; sta.names = [None] * 16
        sta("attn_done")
        a("s_waitcnt vmcnt(0)")
        sta("drainedA")
        a("s_barrier")
        while k < len(w2l):
            for x in w2l[k][1]: a(x)
            k += 1
        a("s_branch p2_go")
        st2 = Stamps(a, VSTAMP, 1); st2.n = 18; st2.names = list(sta.names) if gen1.PROF else []
        phase2(a, st2)
        if gen1.PROF:
            for S_ in (stc, stp):
                S_.names = S_.names + ["-"] * (16 - len(S_.names)) + st2.names[16:]
    a("p1_done:")
    if gen1.PROF:
        a(f"s_memtime s[100:101]\ns_waitcnt lgkmcnt(0)\nv_writelane_b32 v{VSTAMP}, s100, 30")
    a("s_waitcnt vmcnt(0)")
    if OPT.get("dbgp"):
        stc("end")
        a(f"""s_cmp_lg_u32 s46, {OPT['dbgp']}
s_cbranch_scc1 k1_done
s_mov_b64 exec, 0xffff
v_lshlrev_b32 v24, 2, v0
buffer_atomic_umax v{VSTAMP}, v24, {srd(S_DBG)}, 0 offen
s_waitcnt vmcnt(0)""")
    if gen1.PROF:
        a(f"s_memtime s[100:101]\ns_waitcnt lgkmcnt(0)\nv_writelane_b32 v{VSTAMP}, s100, 31")
        a(f"s_memrealtime s[100:101]\ns_waitcnt lgkmcnt(0)\nv_writelane_b32 v{VSTAMP}, s100, 32")
        stc.dump(46, 24)
        print("CONS", stc.names, file=sys.stderr); print("PROD", stp.names, file=sys.stderr)
        open("last.names", "w").write(repr({"cons": stc.names, "prod": stp.names}))
    a("k1_done:\ns_endpgm")
    gen1.finish(P, name, a, 256, LDS1)

if __name__ == "__main__":
    if len(sys.argv) > 2 and sys.argv[2] == "prof": gen1.PROF = True
    P = Prog()
    if OPT["fuse"]:
        gen_k1(P, NAME + "_kernel")
        open(sys.argv[1], "w").write(P.render(single=True))
    else:
        gen_k1(P)
        gen1.gen_k2(P)
        open(sys.argv[1], "w").write(P.render())
```

```python
import sys; sys.path.insert(0, "work")
from asmlib import *
import hazard, gen1
from gen1 import Stamps, DPPM
import os

OPT = dict(fuse=1, nb=1, prio=2, per=2, pf=1, rot=8, nohalo=0, x16=1, amap=1,
           pprio=3, tl0=4, tl1=4, tl2=4, w2a=4, chkA=5, p2prio=0,
           dsch=2, pkl=3, pk0=5, pk1=7, fs=8, gp=11, csp=12, tab=13, w12=4, w13=6, w14=8, w15=8, hlate=1)
for kv in os.environ.get("OPT", "").split(","):
    if "=" in kv:
        k, v = kv.split("="); OPT[k] = int(v)

STATS = 0
OH = 65536
OH_TILE = 144 * 1024
CSP = OH + 64 * OH_TILE
PK = CSP + 16 * 16 * 4 * 320
WS_USED = PK + 8 * 144 * 2048
FLG = 16384
FLG2 = FLG + 12288
XB = 2048 * 1024
WQKV_B = 512 * 3072
WG_B = 512 * 3584
WO_B = 512 * 1024
WD_B = 1792 * 1024

WST = 20480
XRING = 102400; XST = 18432
TAB = 157696
CST = TAB; RST = TAB + 2560
LDS1 = 163840
REG2 = 36864
QOFF = 20480; KOFF = 25600; VOFF = 30720

S_X, S_QKV, S_G, S_U, S_WS, S_DBG, S_WD, S_WO, S_OUT = 4, 8, 12, 16, 20, 24, 28, 32, 36
S_PK = 68
def srd(n): return f"s[{n}:{n+3}]"

class VM:
    def __init__(self): self.q = []
    def issue(self, tag): self.q.append(tag)
    def wait(self, *tags):
        idx = [i for i, t in enumerate(self.q) if t in tags]
        if not idx: return None
        n = len(self.q) - 1 - max(idx)
        assert n <= 63, n
        return f"s_waitcnt vmcnt({n})"

VT = [2, 3, 4, 5, 6]; VX = [12, 13, 14, 15]; VC = [16, 17, 18, 19, 20]; VR = 21; VL16 = 22; VSTAMP = 23
FA = [32, 60]; FB = [52, 80]
def ACC(rt, j): return 96 + 80 * rt + 16 * j
W2BASE = [176, 112, 192, 128, 208, 144, 224, 160, 240]
def W2R(i): return W2BASE[i >> 1] + 8 * (i & 1)
ACC2 = 24
RING0 = [96, 104, 88, 12]

def prologue(a):
    if OPT["x16"]:
        a("s_load_dwordx16 s[76:91], s[0:1], 0\ns_load_dwordx4 s[92:95], s[0:1], 64")
    else:
        for (s, off) in ((S_X, 0), (S_QKV, 8), (S_G, 32), (S_U, 40), (S_WS, 72), (S_DBG, 64), (S_WD, 48), (S_WO, 16), (S_OUT, 56)):
            a(f"s_load_dwordx2 s[{s}:{s+1}], s[0:1], {off}")
    a("""v_lshrrev_b32 v1, 6, v0
v_and_b32 v0, 63, v0
s_and_b32 s60, s2, 7
s_lshr_b32 s61, s2, 3
v_readfirstlane_b32 s46, v1
s_lshr_b32 s50, s60, 2
s_lshl_b32 s50, s50, 3
s_and_b32 s62, s61, 7
s_add_u32 s50, s50, s62
s_and_b32 s47, s46, 3""")
    if OPT["amap"]:
        a("""s_and_b32 s51, s60, 3
s_lshl_b32 s51, s51, 1
s_bfe_u32 s62, s61, 0x10003
s_add_u32 s51, s51, s62
s_lshr_b32 s48, s61, 4
s_lshl_b32 s52, s48, 3
s_add_u32 s52, s52, s51""")
    else:
        a("""s_and_b32 s52, s60, 3
s_lshl_b32 s52, s52, 2
s_lshr_b32 s62, s61, 3
s_add_u32 s52, s52, s62
s_lshr_b32 s48, s52, 3
s_and_b32 s51, s52, 7""")
    for (s, nb) in ((S_X, XB), (S_QKV, WQKV_B), (S_G, WG_B), (S_U, WG_B), (S_WS, WS_USED), (S_DBG, 256), (S_WD, WD_B), (S_WO, WO_B), (S_OUT, XB)):
        a(f"s_mov_b32 s{s+2}, {nb}\ns_mov_b32 s{s+3}, 0x00020000")
    a("""s_mul_i32 s74, s51, 160
s_add_u32 s74, s74, 512
s_and_b32 s75, s51, 1
s_lshl_b32 s72, s75, 5
s_add_u32 s72, s72, s74
s_add_u32 s73, s74, 128
s_cmp_lg_u32 s75, 0
s_cselect_b32 s73, s74, s73""")

def karg_wait(a):
    a("s_waitcnt lgkmcnt(0)")
    if OPT["x16"]:
        for (s, off) in ((S_X, 0), (S_QKV, 8), (S_G, 32), (S_U, 40), (S_WS, 72), (S_DBG, 64), (S_WD, 48), (S_WO, 16), (S_OUT, 56)):
            a(f"s_mov_b64 s[{s}:{s+1}], s[{76+off//4}:{77+off//4}]")

def nonce_load(a):
    a(f"s_load_dword s76, s[{S_WS}:{S_WS+1}], {FLG}")

def p2_scalars(a):
    a(f"""s_and_b32 s60, s2, 7
s_lshr_b32 s61, s2, 3
s_lshr_b32 s77, s61, 2
s_lshl_b32 s78, s60, 2
s_and_b32 s62, s61, 3
s_add_u32 s78, s78, s62
s_and_b32 s79, s77, 1
s_lshl_b32 s79, s79, 2
s_add_u32 s79, s79, s46
s_and_b32 s79, s79, 7
s_mul_i32 s60, s77, 144
s_mul_i32 s61, s79, 10
s_add_u32 s61, s61, 64
s_lshl_b32 s62, s79, 2
s_add_u32 s80, s60, s61
s_lshl_b32 s80, s80, 11
s_add_u32 s80, s80, {PK}
s_add_u32 s82, s60, s62
s_lshl_b32 s82, s82, 11
s_add_u32 s82, s82, {PK}
s_add_u32 s81, s82, {32*2048}
s_mul_i32 s60, s78, 288
s_add_u32 s84, s60, s61
s_lshl_b32 s84, s84, 10
s_add_u32 s84, s84, {OH}
s_add_u32 s86, s60, s62
s_lshl_b32 s86, s86, 10
s_add_u32 s86, s86, {OH}
s_add_u32 s85, s86, {32*1024}
s_lshr_b32 s60, s78, 1
s_lshl_b32 s60, s60, 4
s_add_u32 s88, s60, s79
s_lshl_b32 s88, s88, 7
s_add_u32 s88, s88, {FLG2}
s_add_u32 s87, s88, 1024""")

def w2_loads(vl16):
    out = []
    for i in range(18):
        if i < 10: base, k = 80, i
        elif i < 14: base, k = 81, i - 10
        else: base, k = 82, i - 14
        pre = []
        if k % 2 == 0: pre = [f"s_add_u32 s89, s{base}, {2048*k}"]
        r = W2R(i)
        for nt in range(2):
            out.append((i, pre + [f"buffer_load_dwordx4 v[{r+4*nt}:{r+4*nt+3}], v{vl16}, {srd(S_WS)}, s89 offen offset:{2048*(k%2) + 1024*nt} sc1"]))
            pre = []
    return out

def prod_setup_common(a):
    a("""v_lshrrev_b32 v58, 3, v0
s_lshl_b32 s3, s47, 3
v_add_u32 v56, s3, v58
v_and_b32 v57, 7, v0
v_bfe_u32 v59, v0, 4, 1
v_lshlrev_b32 v59, 2, v59
v_xor_b32 v57, v57, v59
s_and_b32 s3, s47, 1
s_lshl_b32 s3, s3, 1
v_xor_b32 v57, s3, v57
v_lshlrev_b32 v57, 4, v57
s_lshl_b32 s43, s47, 10
s_lshl_b32 s44, s47, 12
s_lshl_b32 s45, s47, 9
s_mov_b32 s53, 0x3f803f80""")
    a("""s_lshl_b32 s3, s50, 7
s_lshl_b32 s60, s47, 5
s_add_u32 s3, s3, s60
v_lshlrev_b32 v59, 1, v58
v_add_u32 v59, s3, v59
v_lshlrev_b32 v59, 10, v59
v_and_b32 v60, 7, v0
v_lshrrev_b32 v61, 4, v0
v_xor_b32 v60, v60, v61
v_lshlrev_b32 v60, 4, v60
v_add_u32 v6, v59, v60
v_xor_b32 v60, 64, v60
v_add_u32 v7, v59, v60
v_add_u32 v7, 0x4000, v7""")
    R = OPT["rot"]
    if R > 1:
        a(f"""s_and_b32 s3, s50, {R-1}
s_mul_i32 s3, s3, {8//R}
s_mul_i32 s40, s3, 196608
s_mul_i32 s41, s3, 229376
s_lshl_b32 s42, s3, 7""")
    else:
        a("s_mov_b32 s40, 0\ns_mov_b32 s41, 0\ns_mov_b32 s42, 0")

def prod_late_setup(a, T):
    a(f"""v_lshrrev_b32 v58, 4, v0
v_bfe_u32 v59, v0, 2, 2
v_lshlrev_b32 v60, 3, v58
v_add_u32 v60, v60, v59
v_lshlrev_b32 v60, 7, v60
v_and_b32 v61, 3, v0
v_lshlrev_b32 v61, 3, v61
v_add_u32 v60, v60, v61
v_and_b32 v61, 2, v59
v_and_b32 v62, 1, v58
v_xor_b32 v61, v61, v62
v_xor_b32 v61, s47, v61
v_lshlrev_b32 v61, 5, v61
v_add_u32 v9, v60, v61
v_add_u32 v10, {3*WST}, v9""")
    a(f"""s_lshl_b32 s3, s50, 7
s_lshl_b32 s60, s47, 6
s_add_u32 s61, s3, s60
v_add_u32 v14, s61, v0
v_lshlrev_b32 v14, 3, v14
v_add_u32 v15, s60, v0
v_lshlrev_b32 v15, 3, v15
v_add_u32 v15, {RST}, v15
s_cmp_lt_u32 s47, 2
s_cbranch_scc1 psa_done{T}
v_and_b32 v58, 7, v0
v_bfe_u32 v59, v0, 3, 1
v_lshlrev_b32 v59, 4, v59
v_add_u32 v58, v58, v59
s_sub_u32 s3, s3, 24
v_add_u32 v14, s3, v58
v_lshlrev_b32 v14, 3, v14
v_and_b32 v15, 15, v0
v_lshlrev_b32 v15, 3, v15
v_add_u32 v15, {RST + 128*8}, v15
s_cmp_lg_u32 s50, 0
s_cbranch_scc1 psa_done{T}
v_mov_b32 v14, 0x80000000
psa_done{T}:""")
    p2_scalars(a)
    a(f"""s_lshl_b32 s3, s50, 8
s_add_u32 s3, s3, {FLG + 256}
s_lshl_b32 s60, s52, 8
s_add_u32 s60, s60, {FLG + 256*17}
s_lshl_b32 s61, s77, 8
s_add_u32 s61, s61, {FLG + 256*33}
v_lshlrev_b32 v58, 4, v0
v_mov_b32 v13, s3
v_add_u32 v59, s3, v58
v_cmp_gt_u32 vcc, 4, v0
v_cndmask_b32 v13, v13, v59, vcc
v_subrev_u32 v59, 4, v0
v_cmp_gt_u32 vcc, 4, v59
s_sub_u32 s60, s60, 64
v_add_u32 v59, s60, v58
v_cndmask_b32 v13, v13, v59, vcc
v_subrev_u32 v59, 8, v0
v_cmp_gt_u32 vcc, 8, v59
s_sub_u32 s61, s61, 128
v_add_u32 v59, s61, v58
v_cndmask_b32 v13, v13, v59, vcc""")
    if T == "A":
        a(f"""s_sub_u32 s61, s3, {256 - 48}
s_cmp_eq_u32 s50, 0
s_cselect_b32 s61, s3, s61
v_cmp_eq_u32 vcc, 16, v0
v_mov_b32 v59, s61
v_cndmask_b32 v13, v13, v59, vcc""")
    a(f"""s_lshl_b32 s61, s52, 2
s_add_u32 s3, s3, s61
s_lshl_b32 s61, s50, 2
s_add_u32 s60, s60, s61
s_add_u32 s60, s60, 64
s_and_b32 s61, s2, 7
s_lshl_b32 s61, s61, 8
s_lshr_b32 s62, s2, 3
s_lshl_b32 s62, s62, 2
s_add_u32 s61, s61, s62
s_add_u32 s61, s61, {FLG + 256*33}
v_mov_b32 v21, s3
v_mov_b32 v59, s60
v_cmp_eq_u32 vcc, 1, v0
v_cndmask_b32 v21, v21, v59, vcc
v_mov_b32 v59, s61
v_cmp_eq_u32 vcc, 2, v0
v_cndmask_b32 v21, v21, v59, vcc""")
    a(f"""v_lshrrev_b32 v58, 5, v0
v_lshlrev_b32 v58, 2, v58
v_bfe_u32 v59, v0, 4, 1
v_lshlrev_b32 v59, 3, v59
v_add_u32 v58, v58, v59
v_lshlrev_b32 v58, 10, v58
v_and_b32 v59, 15, v0
v_lshlrev_b32 v59, 3, v59
v_add_u32 v58, v58, v59
s_and_b32 s60, s2, 7
s_lshl_b32 s61, s60, 7
v_add_u32 v54, s61, v58
v_lshlrev_b32 v55, 4, v0
v_lshlrev_b32 v22, 4, v0
s_lshr_b32 s61, s2, 3
s_lshl_b32 s62, s61, 2
s_add_u32 s62, s62, s47
s_mul_i32 s60, s60, 144
s_add_u32 s92, s60, s62
s_lshl_b32 s92, s92, 11
s_add_u32 s92, s92, {PK}
s_add_u32 s93, s60, s61
s_add_u32 s93, s93, 128
s_lshl_b32 s93, s93, 11
s_add_u32 s93, s93, {PK}
s_add_u32 s91, s61, 96
s_lshl_b32 s91, s91, 14
s_cmp_lt_u32 s62, 32
s_cselect_b32 s{S_PK}, s{S_WO}, s{S_WD}
s_cselect_b32 s{S_PK+1}, s{S_WO+1}, s{S_WD+1}
s_cselect_b32 s{S_PK+2}, s{S_WO+2}, s{S_WD+2}
s_mov_b32 s{S_PK+3}, 0x00020000
s_cselect_b32 s3, 0, 32
s_sub_u32 s90, s62, s3
s_lshl_b32 s90, s90, 14
v_mov_b32 v53, v55
v_mov_b32 v52, v54
s_and_b32 s3, s61, 3
s_cmp_eq_u32 s3, s47
s_cselect_b32 s3, 1, 0
s_cmp_lt_u32 s61, 16
s_cselect_b32 s3, s3, 0
s_cmp_lg_u32 s3, 0
s_cbranch_scc1 pk_act{T}
v_mov_b32 v53, 0x80000000
v_mov_b32 v52, 0x80000000
pk_act{T}:""")
    a(f"""s_lshl_b32 s94, s52, 6
s_add_u32 s94, s94, s47
s_mul_i32 s94, s94, 320
s_add_u32 s94, s94, {CSP}
s_mul_i32 s95, s50, 1280
s_add_u32 s95, s95, s94""")

def pack_valu(a, raw, out):
    for nt in range(2):
        F = out + 4 * nt
        r = [raw + 2 * q + nt for q in range(4)]
        a(f"v_perm_b32 v{F}, v{r[1]}, v{r[0]}, s60\nv_perm_b32 v{F+2}, v{r[1]}, v{r[0]}, s61")
        a(f"v_perm_b32 v{F+1}, v{r[3]}, v{r[2]}, s60\nv_perm_b32 v{F+3}, v{r[3]}, v{r[2]}, s61")
    for nt in range(2):
        F = out + 4 * nt
        a(f"v_permlane16_swap_b32 v{F}, v{F+2}\nv_permlane16_swap_b32 v{F+1}, v{F+3}")

def producer(a, T, st):
    vm = VM()
    A_ = T == "A"
    if A_:
        a("""s_movk_i32 s60, 3072
v_mul_lo_u32 v58, v56, s60
s_lshl_b32 s3, s51, 7
v_add_u32 v58, s3, v58
v_add_u32 v2, v58, v57
s_movk_i32 s60, 3584
v_mul_lo_u32 v58, v56, s60
v_add_u32 v58, s3, v58
v_add_u32 v3, v58, v57
v_xor_b32 v57, 32, v57
v_add_u32 v4, v58, v57""")
        a(f"""s_lshr_b32 s3, s47, 1
s_lshl_b32 s60, s50, 7
s_add_u32 s3, s3, s60
s_sub_u32 s3, s3, 16
s_and_b32 s60, s47, 1
s_lshl_b32 s60, s60, 3
s_add_u32 s3, s3, s60
v_lshrrev_b32 v58, 3, v0
v_lshlrev_b32 v58, 1, v58
v_add_u32 v58, s3, v58
v_lshlrev_b32 v58, 10, v58
v_and_b32 v59, 7, v0
v_lshrrev_b32 v60, 4, v0
v_xor_b32 v59, v59, v60
s_lshl_b32 s60, s47, 1
v_xor_b32 v59, s60, v59
v_and_b32 v59, 7, v59
v_lshlrev_b32 v59, 4, v59
v_add_u32 v8, v58, v59
s_mov_b32 s58, -1
s_mov_b32 s59, 0
s_cmp_lg_u32 s50, 0
s_cbranch_scc1 pA_hok
v_mov_b32 v8, 0x80000000
pA_hok:""")
    else:
        a("""s_movk_i32 s60, 3584
v_mul_lo_u32 v58, v56, s60
s_lshl_b32 s3, s72, 1
v_add_u32 v59, s3, v58
v_add_u32 v2, v59, v57
v_xor_b32 v60, 32, v57
v_add_u32 v3, v59, v60
s_lshl_b32 s3, s73, 1
v_add_u32 v59, s3, v58
v_and_b32 v57, 48, v57
v_and_b32 v60, 48, v60
v_add_u32 v4, v59, v57
v_add_u32 v5, v59, v60
v_bfe_u32 v58, v0, 2, 1
v_bfe_u32 v59, v0, 4, 1
v_xor_b32 v58, v58, v59
v_cmp_eq_u32 vcc, 0, v58
s_mov_b64 s[54:55], vcc
v_cmp_eq_u32 vcc, 1, v58
s_mov_b64 s[56:57], vcc""")
    def W(s):
        if OPT.get("xnodma") and s >= 5:
            issued.add(("W", s)); return
        base = (s % 5) * WST
        if A_:
            lst = [(2, S_QKV, 40, 0), (2, S_QKV, 40, 1024), (2, S_QKV, 40, 2048), (3, S_G, 41, 0), (4, S_U, 41, 0)]
        else:
            lst = [(2, S_G, 41, 0), (2, S_G, 41, 128), (3, S_U, 41, 0), (3, S_U, 41, 128)]
        for sig, (v, sr, so, imm) in enumerate(lst):
            a(f"s_add_u32 m0, s43, {base + sig*4096 - imm}")
            a(f"buffer_load_dwordx4 v{v}, {srd(sr)}, s{so} offen offset:{imm} lds"); vm.issue(("W", s))
        if not A_:
            a(f"s_add_u32 m0, s43, {base + 4*4096}\ns_mov_b64 exec, s[54:55]")
            a(f"buffer_load_dwordx4 v4, {srd(S_G)}, s41 offen lds"); vm.issue(("W", s))
            a("s_mov_b64 exec, s[56:57]")
            a(f"buffer_load_dwordx4 v5, {srd(S_U)}, s41 offen lds"); vm.issue(("W", s))
            a("s_mov_b64 exec, -1")
        if s < 15:
            if A_: a(f"s_add_u32 s40, s40, 98304\ns_cmp_eq_u32 s40, {16*98304}\ns_cselect_b32 s40, 0, s40")
            a(f"s_add_u32 s41, s41, 114688\ns_cmp_eq_u32 s41, {16*114688}\ns_cselect_b32 s41, 0, s41")
        issued.add(("W", s))
    def X(g):
        if OPT.get("xnodma") and g >= 3:
            issued.add(("X", g)); return
        xs = XRING + (g % 3) * XST
        for par in range(2):
            for half in range(2):
                a(f"s_add_u32 m0, s44, {xs + 2048*par + 1024*half - 1024*par}")
                a(f"buffer_load_dwordx4 v{6+half}, {srd(S_X)}, s42 offen offset:{1024*par} lds"); vm.issue(("X", g))
        if A_:
            a(f"s_add_u32 m0, s45, {xs + 16384}\ns_mov_b64 exec, s[58:59]")
            a(f"buffer_load_dwordx4 v8, {srd(S_X)}, s42 offen lds"); vm.issue(("X", g))
            a("s_mov_b64 exec, -1")
        if g < 7: a("s_add_u32 s42, s42, 128\ns_and_b32 s42, s42, 1023")
        issued.add(("X", g))
    issued = set()
    state = dict(lab=0)
    def lab():
        state["lab"] += 1; return f"pq{T}{state['lab']}"
    IW, IX = W, X
    HF = [76, 88]
    NCS = 16 // OPT["rot"] if OPT["rot"] > 1 else 2
    lgR = {1: 3, 2: 1, 4: 2, 8: 3}[OPT["rot"]]
    def halo_mfma(s):
        h = HF[s & 1]
        a(f"v_mfma_f32_16x16x32_bf16 v[24:27], v[{h}:{h+3}], v[{h+8}:{h+11}], v[24:27]")
        a(f"v_mfma_f32_16x16x32_bf16 v[28:31], v[{h+4}:{h+7}], v[{h+8}:{h+11}], v[28:31]")
    def slot_addr(s):
        slot = s % 5
        return (9, slot * WST) if slot < 3 else (10, (slot - 3) * WST)
    def VRD(h):
        vb, off0 = slot_addr(h)
        if A_ and not OPT["nohalo"]:
            hf = HF[h & 1]
            for k, sig in enumerate((1, 2)):
                for i in range(2):
                    d = hf + 4 * k + 2 * i
                    a(f"ds_read_b64_tr_b16 v[{d}:{d+1}], v{vb} offset:{off0 + sig*4096 + 512*i}")
            a(f"ds_read_b128 v[{hf+8}:{hf+11}], v{11 + (h & 1)} offset:{((h >> 1) % 3) * XST}")
        if h < NCS:
            a(f"s_lshr_b32 s3, s50, {lgR}\ns_cmp_lg_u32 s3, {h}\ns_cbranch_scc1 cs_skip{T}{h}")
            for sig in range(5):
                for i in range(2):
                    d = 32 + 4 * sig + 2 * i
                    a(f"ds_read_b64_tr_b16 v[{d}:{d+1}], v{vb} offset:{off0 + sig*4096 + 512*i}")
            for r in range(16, 21): a(f"v_mov_b32 v{r}, 0")
            a("v_lshlrev_b32 v56, 2, v0")
            a("s_waitcnt lgkmcnt(0)")
            for d in range(4):
                for sig in range(5):
                    a(f"v_dot2c_f32_bf16 v{16+sig}, s53, v{32+4*sig+d}")
            a("""v_permlane32_swap_b32 v16, v18
v_permlane32_swap_b32 v17, v19
v_mov_b32 v58, v20
v_add_f32 v16, v16, v18
v_add_f32 v17, v17, v19
v_permlane32_swap_b32 v20, v58
v_add_f32 v20, v20, v58
v_permlane16_swap_b32 v16, v17
v_mov_b32 v58, v20
v_add_f32 v16, v16, v17
v_permlane16_swap_b32 v20, v58
v_add_f32 v20, v20, v58""")
            a(f"""buffer_store_dword v16, v56, {srd(S_WS)}, s95 offen sc1
s_mov_b64 exec, 0xffff
buffer_store_dword v20, v56, {srd(S_WS)}, s95 offen offset:256 sc1
s_mov_b64 exec, -1
cs_skip{T}{h}:""")
            state["cs_mark"] = len(vm.q)
    def pack_loads():
        for q in range(4):
            a(f"buffer_load_dwordx2 v[{60+2*q}:{61+2*q}], v54, {srd(S_PK)}, s90 offen offset:{1024*q}"); vm.issue(("pkraw", 0))
        for q in range(4):
            a(f"buffer_load_dwordx2 v[{68+2*q}:{69+2*q}], v52, {srd(S_WD)}, s91 offen offset:{1024*q}"); vm.issue(("pkraw", 1))
    def pack_do(k):
        raw = 60 if k == 0 else 68
        a(vm.wait(("pkraw", k)))
        a("s_mov_b32 s60, 0x05040100\ns_mov_b32 s61, 0x07060302")
        pack_valu(a, raw, 40)
        dv = 55 if k == 0 else 53
        so = 92 if k == 0 else 93
        a(f"buffer_store_dwordx4 v[40:43], v{dv}, {srd(S_WS)}, s{so} offen sc1"); vm.issue("pub")
        a(f"buffer_store_dwordx4 v[44:47], v{dv}, {srd(S_WS)}, s{so} offen offset:1024 sc1"); vm.issue("pub")
    def drain_pub():
        idx = max([i for i, t in enumerate(vm.q) if t == "pub"])
        m = state.get("cs_mark", 0)
        if m < len(vm.q):
            idx = max(idx, m)
            a(f"s_waitcnt vmcnt({len(vm.q) - 1 - idx})")
        else:
            a("s_waitcnt vmcnt(0)")
    def raise_flags():
        a(f"""s_cmp_lg_u32 s47, 0
s_cbranch_scc1 pf_skip{T}
s_add_u32 s61, s76, 1
s_mov_b64 exec, 7
v_mov_b32 v58, s61
buffer_store_dword v58, v21, {srd(S_WS)}, 0 offen sc1
s_mov_b64 exec, -1
pf_skip{T}:""")
    def gpoll_issue():
        a(f"""s_cmp_lg_u32 s47, 0
s_cbranch_scc1 pl_skip{T}
buffer_load_dwordx4 v[68:71], v13, {srd(S_WS)}, 0 offen sc1
pl_skip{T}:""")
        state["npoll0"] = len(vm.q)
    def gpoll_check():
        a(f"""s_cmp_lg_u32 s47, 0
s_cbranch_scc1 pp_done{T}
s_mov_b32 s63, 0
s_add_u32 s61, s76, 1
s_waitcnt vmcnt({len(vm.q) - state['npoll0']})
pp_spin{T}:
v_xor_b32 v58, s61, v68
v_xor_b32 v59, s61, v69
v_xor_b32 v60, s61, v70
v_xor_b32 v61, s61, v71
v_or_b32 v58, v58, v59
v_or3_b32 v58, v58, v60, v61
v_cmp_ne_u32 vcc, 0, v58
s_cbranch_vccz pp_done{T}
s_add_u32 s63, s63, 1
s_cmp_ge_u32 s63, 0x8000
s_cbranch_scc1 pp_done{T}
s_sleep 4
buffer_load_dwordx4 v[68:71], v13, {srd(S_WS)}, 0 offen sc1
s_waitcnt vmcnt(0)
s_branch pp_spin{T}
pp_done{T}:""")
    def csp_loads():
        a(f"buffer_load_dwordx2 v[56:57], v14, {srd(S_WS)}, 0 offen sc1"); vm.issue("stats")
        a("v_lshlrev_b32 v58, 2, v0\nv_lshrrev_b32 v59, 4, v0\nv_mul_u32_u24 v59, 1280, v59\nv_and_b32 v60, 15, v0\nv_lshlrev_b32 v60, 2, v60\nv_add_u32 v59, v59, v60")
        for tq in range(16):
            if tq % 3 == 0: a(f"s_add_u32 s3, s94, {1280*tq}")
            a(f"buffer_load_dword v{32+tq}, v58, {srd(S_WS)}, s3 offen offset:{1280*(tq%3)} sc1"); vm.issue("csp")
        for q in range(4):
            a(f"s_add_u32 s3, s94, {5120*q}")
            a(f"buffer_load_dword v{48+q}, v59, {srd(S_WS)}, s3 offen offset:256 sc1"); vm.issue("csp")
    def tables():
        a(vm.wait("stats"))
        a("ds_write_b64 v15, v[56:57]")
        a(vm.wait("csp"))
        for k in range(4): a(f"v_pk_add_f32 v[{32+2*k}:{33+2*k}], v[{32+2*k}:{33+2*k}], v[{40+2*k}:{41+2*k}]")
        a("v_pk_add_f32 v[48:49], v[48:49], v[50:51]")
        for k in range(2): a(f"v_pk_add_f32 v[{32+2*k}:{33+2*k}], v[{32+2*k}:{33+2*k}], v[{36+2*k}:{37+2*k}]")
        a("v_add_f32 v20, v48, v49\nv_pk_add_f32 v[32:33], v[32:33], v[34:35]\nv_mov_b32 v58, v20")
        a("v_add_f32 v16, v32, v33\nv_permlane32_swap_b32 v20, v58\nv_add_f32 v20, v20, v58\nv_mov_b32 v58, v20\nv_permlane16_swap_b32 v20, v58\nv_add_f32 v20, v20, v58")
        for (x, t) in ((16, 60), (20, 66)):
            a(f"""v_cvt_pk_bf16_f32 v{t}, v{x}, v{x}
v_and_b32 v{t+2}, 0xffff0000, v{t}
v_sub_f32 v{x}, v{x}, v{t+2}
v_cvt_pk_bf16_f32 v{t+3}, v{x}, v{x}
v_and_b32 v{t+2}, 0xffff0000, v{t+3}
v_sub_f32 v{x}, v{x}, v{t+2}
v_cvt_pk_bf16_f32 v{t+1}, v{x}, v{x}
v_and_b32 v{t}, 0xffff, v{t}
v_or_b32 v{t}, v{t}, v{t+2}
v_and_b32 v{t+1}, 0xffff, v{t+1}""")
        a(f"""v_and_b32 v58, 15, v0
v_lshlrev_b32 v58, 3, v58
s_lshl_b32 s3, s47, 7
s_add_u32 s3, s3, {CST}
v_add_u32 v103, s3, v58
v_lshrrev_b32 v59, 4, v0
v_lshlrev_b32 v59, 9, v59
v_add_u32 v59, v59, v103
ds_write_b64 v59, v[60:61]
ds_write_b64 v103, v[66:67] offset:2048
s_waitcnt lgkmcnt(0)""")
    VCS = 103
    w2l = w2_loads(55)
    w2i = [0]
    def w2(n):
        for _ in range(n):
            if w2i[0] < len(w2l):
                for x in w2l[w2i[0]][1]: a(x)
                vm.issue(("w2", w2l[w2i[0]][0])); w2i[0] += 1
    FPV = 100
    def fp(k, r):
        if OPT.get("fp") and 0 <= r < 16:
            a(f"s_memtime s[64:65]\ns_waitcnt lgkmcnt(0)\nv_writelane_b32 v{FPV}, s64, {16*k + r}")

    SCHED = {
        0: {-1: "W0 X0 W1 X1", 0: "W2", 1: "W3 X2", 2: "W4 X3", 3: "W5 W6", 4: "W7 X4", 5: "W8 W9", 6: "W10 X5", 7: "W11", 8: "W12 X6", 9: "W13", 10: "W14 X7", 11: "W15"},
        1: {-1: "W0 X0 W1 X1", 0: "W2 X2", 1: "W3", 2: "W4 X3", 3: "W5", 4: "W6 X4", 5: "W7", 6: "W8 X5", 7: "W9", 8: "W10 X6", 9: "W11", 10: "W12 X7", 11: "W13", 12: "W14", 13: "W15"},
        2: {-1: "W0 X0 W1 X1", 0: "W2 X2", 1: "W3 W4", 2: "W5 X3", 3: "W6", 4: "W7 X4", 5: "W8", 6: "W9 X5", 7: "W10", 8: "W11 X6", 9: "W12 W13", 10: "W14 X7", 11: "W15"},
        3: {-1: "W0 X0 W1", 0: "X1 W2", 1: "W3 X2", 2: "W4 W5", 3: "X3 W6", 4: "W7", 5: "X4 W8", 6: "W9", 7: "X5 W10", 8: "W11", 9: "X6 W12", 10: "W13 W14", 11: "X7 W15"},
        4: {-1: "W0 X0 W1 X1", 0: "W2 X2", 1: "W3 W4", 2: "W5 X3", 3: "W6", 4: "W7 X4", 5: "W8", 6: "W9 X5", 7: "W10 W11", 8: "W12 X6", 9: "W13", 10: "W14 X7", 11: "W15"},
    }[OPT["dsch"]]
    sched = {k: [(o[0], int(o[1:])) for o in SCHED.get(k, "").split()] for k in range(-1, 16)}
    when = {o: k for k, ops in sched.items() for o in ops}
    for i in range(16):
        assert ("W", i) in when and (i < 5 or when[("W", i)] >= i - 4) and when[("W", i)] <= i - 1, i
    for g in range(8):
        assert ("X", g) in when and (g < 3 or when[("X", g)] >= 2 * g - 4) and when[("X", g)] <= 2 * g - 1, g
    def do(ops):
        for (k, i) in ops: (IW if k == "W" else IX)(i)
    def land(s):
        w = vm.wait(("W", s), ("X", s >> 1))
        if w: a(w)
    karg_wait(a)
    st("karg")
    do(sched[-1])
    nonce_load(a)
    st("dma_issued")
    prod_late_setup(a, T)
    if A_:
        a(f"""v_and_b32 v58, 15, v0
v_lshrrev_b32 v59, 1, v58
v_lshrrev_b32 v60, 4, v0
v_xor_b32 v59, v59, v60
v_lshlrev_b32 v59, 4, v59
v_lshlrev_b32 v58, 7, v58
v_add_u32 v58, v58, v59
v_add_u32 v11, {XRING + 128*128}, v58
v_xor_b32 v12, 64, v11""")
        for r in range(24, 32): a(f"v_mov_b32 v{r}, 0")
    if OPT["pprio"]: a(f"s_setprio {OPT['pprio']}")
    a("s_waitcnt lgkmcnt(0)")
    land(0)
    a("s_barrier")
    st("Pm1")
    W2N = {12: OPT["w12"], 13: OPT["w13"], 14: OPT["w14"], 15: OPT["w15"], 11: OPT.get("w11", 0)}
    halo = A_ and not OPT["nohalo"]
    for s in range(16):
        fp(0, s)
        if s == OPT["fs"]: raise_flags()
        if s == OPT["gp"]: gpoll_issue()
        if halo and s >= 1 and not OPT["hlate"]: halo_mfma(s - 1)
        do(sched[s])
        fp(1, s)
        if halo and s >= 1 and OPT["hlate"]: halo_mfma(s - 1)
        VRD(s)
        if s == OPT["pkl"]: pack_loads()
        if s == OPT["pk0"]: pack_do(0)
        if s == OPT["pk1"]: pack_do(1)
        if s == OPT["csp"]: csp_loads()
        w2(W2N.get(s, 0))
        if s == OPT["tab"]:
            tables()
            st("tables")
        fp(2, s)
        if s == OPT["fs"] - 1: drain_pub()
        if s == OPT["gp"]:
            gpoll_check()
            st("gpoll")
        if s < 15: land(s + 1)
        a("s_waitcnt lgkmcnt(0)")
        fp(3, s)
        a("s_barrier")
        if s in (0, 3, 7, 11): st(f"P{s}")
    assert OPT["pk1"] < OPT["fs"] and OPT["pk0"] < OPT["fs"] and OPT["gp"] < OPT["csp"] < OPT["tab"] <= 15 and NCS < OPT["fs"]
    if halo: halo_mfma(15)
    if OPT.get("fp"):
        a(f"""s_lshl_b32 s3, s2, 3
s_add_u32 s3, s3, s46
s_lshl_b32 s3, s3, 8
s_add_u32 s3, s3, {gen1.PROF_OFF + 2 * (256 * 8 * 256)}
v_lshlrev_b32 v58, 2, v0
s_mov_b32 s{S_WS+2}, {gen1.PROF_OFF + (4 << 20)}
buffer_store_dword v{FPV}, v58, {srd(S_WS)}, s3 offen
s_mov_b32 s{S_WS+2}, {WS_USED}""")
    w2(99)
    st("P15")
    if A_:
        a(f"""ds_read_b64 v[60:61], v{VCS} offset:512
ds_read_b64 v[62:63], v{VCS} offset:1024
v_and_b32 v59, 15, v0
v_lshlrev_b32 v59, 3, v59
v_add_u32 v59, {RST + 128*8}, v59
ds_read_b64 v[64:65], v59
v_cmp_gt_u32 vcc, 16, v0
v_bfe_u32 v68, v0, 4, 1
v_mul_u32_u24 v68, 2560, v68
v_bfe_u32 v69, v0, 5, 1
v_bfe_u32 v70, v0, 3, 1
v_and_b32 v71, 7, v0
s_mul_i32 s3, s47, {REG2}
s_waitcnt lgkmcnt(0)
v_cndmask_b32 v66, 0, v64, vcc
v_and_b32 v67, 0xffff, v66
v_mfma_f32_16x16x16_bf16 v[24:27], v[60:61], v[66:67], v[24:27]
v_mfma_f32_16x16x16_bf16 v[28:31], v[62:63], v[66:67], v[28:31]
v_lshlrev_b32 v72, 3, v69
v_mul_u32_u24 v73, 1280, v70
v_lshlrev_b32 v74, 4, v71
v_add_u32 v72, v72, v68
v_add_u32 v73, v73, v74
v_add_u32 v72, v72, v73
v_add_u32 v72, s3, v72
v_mul_u32_u24 v73, 1280, v69
v_mul_u32_u24 v74, 640, v70
v_lshlrev_b32 v75, 3, v71
v_add_u32 v73, v73, v68
v_add_u32 v74, v74, v75
v_add_u32 v73, v73, v74
v_add_u32 v73, s3, v73""")
        for q in range(8): a(f"v_mul_f32 v{24+q}, v{24+q}, v65")
        a(f"""v_cvt_pk_bf16_f32 v60, v24, v25
v_cvt_pk_bf16_f32 v61, v26, v27
v_cvt_pk_bf16_f32 v62, v28, v29
v_cvt_pk_bf16_f32 v63, v30, v31
ds_write_b64 v72, v[60:61] offset:{KOFF}
ds_write_b64 v73, v[62:63] offset:{VOFF}
s_waitcnt lgkmcnt(0)
s_branch attn""")
    else:
        a("s_branch pub")

def cons_setup(a):
    a("""s_lshr_b32 s49, s47, 1
s_and_b32 s47, s47, 1""")
    a("s_cmp_lg_u32 s48, 0\ns_cbranch_scc1 cs_B")
    a(f"""s_lshl_b32 s83, s49, 6
s_mov_b32 s84, 32
s_add_u32 s85, s83, 4096
s_mov_b32 s86, 32
s_add_u32 s87, s83, 8192
s_mov_b32 s88, 32
s_add_u32 s89, s83, {3*4096}
s_mov_b32 s90, {4096+32}
s_add_u32 s91, s83, {3*4096+32}
s_mov_b32 s92, {4096-32}
s_lshl_b32 s66, s51, 2
s_lshl_b32 s3, s49, 1
s_add_u32 s66, s66, s3
s_add_u32 s66, s66, 32
s_add_u32 s67, s66, 1
s_branch cs_D
cs_B:
s_lshr_b32 s60, s72, 4
s_add_u32 s60, s60, 32
s_lshr_b32 s61, s73, 4
s_add_u32 s61, s61, 32
s_cmp_lg_u32 s49, 0
s_cbranch_scc1 cs_B1""")
    def tiles(lst):
        for j, (sa, ca, sb, cb) in enumerate(lst):
            t0 = sa * 4096 + 32 * ca; t1 = sb * 4096 + 32 * cb
            a(f"s_mov_b32 s{83+2*j}, {t0}\ns_mov_b32 s{84+2*j}, {t1 - t0}")
    tiles([(0,0,2,1),(0,1,2,0),(0,2,2,3),(0,3,2,2),(1,0,3,1)])
    a("s_mov_b32 s63, s60\ns_add_u32 s64, s60, 1\ns_add_u32 s65, s60, 2\ns_add_u32 s66, s60, 3\ns_add_u32 s67, s60, 4\ns_branch cs_D\ncs_B1:")
    tiles([(1,1,3,0),(1,2,3,3),(1,3,3,2),(4,0,4,3),(4,1,4,2)])
    a("s_add_u32 s63, s60, 5\ns_add_u32 s64, s60, 6\ns_add_u32 s65, s60, 7\ns_mov_b32 s66, s61\ns_add_u32 s67, s61, 1\ncs_D:")
    a(f"""v_lshrrev_b32 v32, 5, v0
v_bfe_u32 v33, v0, 2, 2
v_lshlrev_b32 v34, 3, v32
v_add_u32 v34, v34, v33
v_lshlrev_b32 v34, 7, v34
v_and_b32 v35, 3, v0
v_lshlrev_b32 v35, 3, v35
v_add_u32 v34, v34, v35
v_and_b32 v35, 2, v33
v_xor_b32 v35, v35, v32
v_lshlrev_b32 v35, 5, v35
v_bfe_u32 v36, v0, 4, 1
v_and_b32 v37, 15, v0
v_lshlrev_b32 v37, 3, v37
v_add_u32 v37, {CST}, v37""")
    for j in range(5):
        a(f"""v_mul_lo_u32 v38, v36, s{84+2*j}
v_add_u32 v38, s{83+2*j}, v38
v_xor_b32 v39, v38, v35
v_add_u32 v{VT[j]}, v39, v34
v_lshrrev_b32 v39, 12, v38
v_lshlrev_b32 v39, 9, v39
v_and_b32 v38, 0x60, v38
v_lshlrev_b32 v38, 2, v38
v_add_u32 v38, v38, v39
v_add_u32 v{VC[j]}, v38, v37""")
    a(f"""v_and_b32 v33, 31, v0
s_lshl_b32 s3, s47, 6
v_add_u32 v33, s3, v33
v_lshlrev_b32 v{VR}, 3, v33
v_add_u32 v{VR}, {RST}, v{VR}
v_bfe_u32 v34, v33, 1, 3
v_xor_b32 v34, v34, v32
v_lshlrev_b32 v34, 4, v34
v_lshlrev_b32 v33, 7, v33
v_add_u32 v33, v33, v34
v_add_u32 v{VX[0]}, {XRING}, v33
v_xor_b32 v{VX[1]}, 32, v{VX[0]}
v_xor_b32 v{VX[2]}, 64, v{VX[0]}
v_xor_b32 v{VX[3]}, 96, v{VX[0]}
v_lshlrev_b32 v{VL16}, 4, v0""")

def stats_code(a):
    for i in range(8): a(f"v_lshlrev_b32 v{32+i}, 16, v{24+i}\nv_and_b32 v{24+i}, 0xffff0000, v{24+i}")
    prs = [32, 34, 36, 38, 24, 26, 28, 30]
    def pk(op, d, x, y, *rest): a(f"v_pk_{op}_f32 v[{d}:{d+1}], v[{x}:{x+1}], v[{y}:{y+1}]" + "".join(rest))
    pk("add", 40, 32, 34); pk("add", 42, 36, 38); pk("add", 44, 24, 26); pk("add", 46, 28, 30)
    pk("add", 40, 40, 42); pk("add", 44, 44, 46); pk("add", 40, 40, 44)
    a("v_add_f32 v40, v40, v41")
    def allred(r, t):
        for m in ("quad_perm:[1,0,3,2]", "quad_perm:[2,3,0,1]", "row_half_mirror", "row_mirror"):
            a(f"v_add_f32_dpp v{r}, v{r}, v{r} {m} {DPPM}")
        a(f"v_mov_b32 v{t}, v{r}\nv_permlane16_swap_b32 v{r}, v{t}\nv_add_f32 v{r}, v{r}, v{t}")
    allred(40, 42)
    a("v_mul_f32 v40, 0x3b000000, v40")
    for pr in prs:
        a(f"v_pk_add_f32 v[{pr}:{pr+1}], v[{pr}:{pr+1}], v[40:41] op_sel:[0,0] op_sel_hi:[1,0] neg_lo:[0,1] neg_hi:[0,1]")
    a("v_pk_mul_f32 v[42:43], v[32:33], v[32:33]\nv_pk_mul_f32 v[44:45], v[34:35], v[34:35]")
    for k in range(2, 8):
        d = 42 + 2 * (k & 1); pr = prs[k]
        a(f"v_pk_fma_f32 v[{d}:{d+1}], v[{pr}:{pr+1}], v[{pr}:{pr+1}], v[{d}:{d+1}]")
    a("v_pk_add_f32 v[42:43], v[42:43], v[44:45]\nv_add_f32 v42, v42, v43")
    allred(42, 44)
    a(f"""v_mul_f32 v89, 0x3b000000, v42
v_cvt_pk_bf16_f32 v88, v40, v40
v_cvt_pk_bf16_f32 v89, v89, v89
v_xor_b32 v88, 0x80008000, v88
v_and_b32 v89, 0xffff0000, v89
v_add_f32 v89, 0x3727c5ac, v89
v_cvt_pk_bf16_f32 v89, v89, v89
v_and_b32 v89, 0xffff0000, v89
v_sqrt_f32 v89, v89
v_lshrrev_b32 v90, 5, v0
v_lshlrev_b32 v90, 7, v90
v_cvt_pk_bf16_f32 v89, v89, v89
v_and_b32 v89, 0xffff0000, v89
v_rcp_f32 v89, v89
s_mov_b32 exec_lo, 1
s_mov_b32 exec_hi, 1
buffer_store_dwordx2 v[88:89], v90, {srd(S_WS)}, s45 offen sc1
s_mov_b64 exec, -1""")

def cons_reads(m):
    st = m & 1; s = m >> 1; half = m & 1; g = m >> 2; xs = m & 3; slot = s % 5
    def fa(j):
        v, o = (VT[j], slot * WST) if slot < 4 else (VT[j], 0)
        pre = []
        if slot == 4 and half == 0: pre = [f"v_add_u32 v{VT[j]}, {4*WST}, v{VT[j]}"]
        if slot == 0 and half == 0 and s > 0: pre = [f"v_subrev_u32 v{VT[j]}, {4*WST}, v{VT[j]}"]
        r = [f"ds_read_b64_tr_b16 v[{FA[st]+4*j+2*i}:{FA[st]+4*j+2*i+1}], v{v} offset:{o + 2048*half + 512*i}" for i in range(2)]
        if pre: r[0] = pre[0] + "\n" + r[0]
        return r
    def fb(rt):
        return [f"ds_read_b128 v[{FB[st]+4*rt}:{FB[st]+4*rt+3}], v{VX[xs]} offset:{(g % 3)*XST + 4096*rt}"]
    return fb(0) + fa(0) + fb(1) + fa(1) + fa(2) + fa(3) + fa(4)

def table_reads():
    r = [f"ds_read_b64 v[{32+2*j}:{33+2*j}], v{VC[j]}" for j in range(5)]
    r += [f"ds_read_b64 v[{42+2*rt}:{43+2*rt}], v{VR} offset:{256*rt}" for rt in range(2)]
    return r

def ffn_tile(rt, j):
    b = ACC(rt, j); L = []
    for q in range(4): L.append(f"v_pk_mul_f32 v[{b+2*q}:{b+2*q+1}], v[{b+2*q}:{b+2*q+1}], v[{b+8+2*q}:{b+9+2*q}]")
    for q in range(4): L.append(f"v_pk_mul_f32 v[{b+2*q}:{b+2*q+1}], v[{b+2*q}:{b+2*q+1}], v[50:51] op_sel:[0,{rt}] op_sel_hi:[1,{rt}]")
    for q in range(4): L.append(f"v_cvt_pk_bf16_f32 v{b+8+q}, v{b+2*q}, v{b+2*q+1}")
    sc = " sc1" if OPT["fuse"] else ""
    L += [f"s_add_u32 s3, s{60+rt}, s{63+j}", "s_lshl_b32 s3, s3, 10", f"s_add_u32 s3, s3, {OH}",
          f"buffer_store_dwordx4 v[{b+8}:{b+11}], v{VL16}, {srd(S_WS)}, s3 offen{sc}"]
    return L

def code_prefetch(a):
    a("""s_getpc_b64 s[60:61]
pf_base:
s_lshl_b32 s3, s46, 14
v_lshlrev_b32 v88, 7, v0
v_add_u32 v88, s3, v88
v_add_u32 v90, 0x2000, v88
v_min_u32 v88, k1_done - pf_base, v88
v_min_u32 v90, k1_done - pf_base, v90
v_mov_b32 v89, s61
v_mov_b32 v91, s61
v_add_co_u32 v88, vcc, s60, v88
v_addc_co_u32 v89, vcc, 0, v89, vcc
v_add_co_u32 v90, vcc, s60, v90
v_addc_co_u32 v91, vcc, 0, v91, vcc
global_load_dword v92, v[88:89], off
global_load_dword v93, v[90:91], off""")

def consumer(a, st):
    if OPT["pf"]: code_prefetch(a)
    a("""s_lshl_b32 s60, s50, 7
s_lshl_b32 s61, s52, 3
s_add_u32 s60, s60, s61
s_lshl_b32 s61, s47, 1
s_add_u32 s60, s60, s61
v_lshrrev_b32 v32, 5, v0
v_lshlrev_b32 v32, 10, v32
v_and_b32 v33, 31, v0
v_lshlrev_b32 v33, 4, v33
v_add_u32 v32, v32, v33
s_lshr_b32 s45, s60, 5
s_lshl_b32 s45, s45, 5
s_and_b32 s61, s60, 31
s_lshr_b32 s61, s61, 1
s_add_u32 s45, s45, s61
s_lshl_b32 s45, s45, 3
s_lshl_b32 s44, s60, 10""")
    karg_wait(a)
    a(f"buffer_load_dwordx4 v[24:27], v32, {srd(S_X)}, s44 offen\nbuffer_load_dwordx4 v[28:31], v32, {srd(S_X)}, s44 offen offset:512")
    nonce_load(a)
    cons_setup(a)
    p2_scalars(a)
    st("setup")
    a("s_waitcnt vmcnt(0)")
    st("rows")
    stats_code(a)
    st("stats")
    a("s_barrier")
    st("Pm1")
    if OPT["prio"]: a(f"s_setprio {OPT['prio']}")
    for x in cons_reads(0): a(x)
    for n in range(32):
        cur = n & 1
        rd = cons_reads(n + 1) if n < 31 else table_reads()
        mf = []
        for j in range(5):
            for rt in range(2):
                b = ACC(rt, j)
                c = f"v[{b}:{b+15}]" if n else "0"
                mf.append(f"v_mfma_f32_32x32x16_bf16 v[{b}:{b+15}], v[{FA[cur]+4*j}:{FA[cur]+4*j+3}], v[{FB[cur]+4*rt}:{FB[cur]+4*rt+3}], {c}")
        a("s_waitcnt lgkmcnt(0)")
        if OPT.get("fp") and n >= 2 and n % 2 == 0:
            a(f"v_writelane_b32 v1, s90, {(n-2)//2}\nv_writelane_b32 v1, s92, {16 + (n-2)//2}")
        k = 0
        if n & 1:
            if n == 2 * OPT["fs"] - 1: a("s_waitcnt vmcnt(0)")
            for _ in range(OPT["nb"]): a(mf[k]); k += 1
            if OPT.get("fp"): a("s_memtime s[90:91]")
            a("s_barrier")
            if OPT.get("fp"): a("s_memtime s[92:93]")
        else:
            a(mf[k]); k += 1
        per = OPT['per']
        i = 0
        while k < 10:
            for x in rd[i:i + per]: a(x)
            i += per
            a(mf[k]); k += 1
        for x in rd[i:]: a(x)
        if n in (1, 7, 15, 23): st(f"s{n}")
    if OPT.get("fp"):
        a(f"""s_waitcnt lgkmcnt(0)
v_writelane_b32 v1, s90, 15
v_writelane_b32 v1, s92, 31
s_lshl_b32 s3, s2, 3
s_add_u32 s3, s3, s46
s_lshl_b32 s3, s3, 8
s_add_u32 s3, s3, {gen1.PROF_OFF + 2 * (256 * 8 * 256)}
v_lshlrev_b32 v88, 2, v0
s_mov_b32 s{S_WS+2}, {gen1.PROF_OFF + (4 << 20)}
buffer_store_dword v1, v88, {srd(S_WS)}, s3 offen
s_mov_b32 s{S_WS+2}, {WS_USED}""")
    st("loop_end")
    if OPT["prio"]: a("s_setprio 0")
    a("""s_waitcnt lgkmcnt(0)
v_cmp_gt_u32 vcc, 32, v0
v_cndmask_b32 v46, 0, v42, vcc
v_cndmask_b32 v48, 0, v44, vcc
v_and_b32 v47, 0xffff, v46
v_and_b32 v49, 0xffff, v48
v_mul_f32 v50, v43, v43
v_mul_f32 v51, v45, v45
s_lshl_b32 s60, s50, 2
s_lshl_b32 s3, s47, 1
s_add_u32 s60, s60, s3
s_mul_i32 s60, s60, 144
s_add_u32 s61, s60, 144""")
    for j in range(5):
        for rt in range(2):
            b = ACC(rt, j)
            a(f"v_mfma_f32_32x32x8_bf16 v[{b}:{b+15}], v[{32+2*j}:{33+2*j}], v[{46+2*rt}:{47+2*rt}], v[{b}:{b+15}]")
    a("s_cmp_lg_u32 s48, 0\ns_cbranch_scc1 ep_B")
    a(f"""v_lshrrev_b32 v24, 5, v0
v_mul_u32_u24 v24, 2560, v24
v_bfe_u32 v25, v0, 4, 1
v_and_b32 v26, 15, v0
s_mul_i32 s3, s49, {2*REG2}
v_mul_u32_u24 v27, 1280, v25
v_lshlrev_b32 v28, 4, v26
v_add_u32 v27, v27, v24
v_add_u32 v27, v27, v28
s_lshl_b32 s62, s47, 9
s_add_u32 s62, s62, s3
s_add_u32 s62, s62, 128
v_add_u32 v27, s62, v27
v_mul_u32_u24 v28, 640, v25
v_lshlrev_b32 v29, 3, v26
v_add_u32 v28, v28, v24
v_add_u32 v28, v28, v29
s_lshl_b32 s62, s47, 8
s_add_u32 s62, s62, s3
s_add_u32 s62, s62, {VOFF + 64}
v_add_u32 v28, s62, v28""")
    w2l = w2_loads(VL16) if OPT["fuse"] else []
    w2i = [0]
    def w2_upto(freed_tiles, n):
        for _ in range(n):
            if w2i[0] < len(w2l) and (w2l[w2i[0]][0] >> 1) < freed_tiles:
                for x in w2l[w2i[0]][1]: a(x)
                w2i[0] += 1
    nt_done = 0
    for j in range(3):
        for rt in range(2):
            b = ACC(rt, j)
            for q in range(8):
                a(f"v_pk_mul_f32 v[{b+2*q}:{b+2*q+1}], v[{b+2*q}:{b+2*q+1}], v[{42+2*rt}:{43+2*rt}] op_sel:[0,1] op_sel_hi:[1,1]")
            for q in range(8): a(f"v_cvt_pk_bf16_f32 v{b+q}, v{b+2*q}, v{b+2*q+1}")
            for hh in range(2):
                if j < 2:
                    a(f"ds_write_b128 v27, v[{b+4*hh}:{b+4*hh+3}] offset:{(QOFF, KOFF)[j] + REG2*hh + 256*rt}")
                else:
                    for mm in range(2):
                        a(f"ds_write_b64 v28, v[{b+4*hh+2*mm}:{b+4*hh+2*mm+1}] offset:{REG2*hh + 1280*mm + 128*rt}")
            nt_done += 1
            w2_upto(nt_done - 1, 2)
    for j in (3, 4):
        for rt in range(2):
            for x in ffn_tile(rt, j): a(x)
            nt_done += 1
            w2_upto(nt_done - 1, 2)
    a("s_waitcnt lgkmcnt(0)")
    st("staged")
    w2_upto(9, OPT.get("w2a", 8))
    return w2l, w2i

def attention(a, st, tail_loads):
    Q = 24; K = 32; V = 56; S = [80, 84, 88]; T = 92; PP = 24
    VA = 20; VB = 21
    tl = list(tail_loads or [])
    cnt = [0]
    def tail(n):
        if not tl: return
        cnt[0] += 1
        a(f"s_cmp_lt_u32 s46, 4\ns_cbranch_scc0 at_tl{cnt[0]}")
        for _ in range(n):
            if tl:
                for x in tl.pop(0)[1]: a(x)
        a(f"at_tl{cnt[0]}:")
    a(f"""attn:
s_barrier
s_and_b32 s47, s46, 3
s_lshr_b32 s49, s46, 2
v_lshrrev_b32 v1, 5, v0
s_lshl_b32 s3, s49, 1
v_add_u32 v1, s3, v1
v_lshlrev_b32 v{VA}, 4, v1
v_and_b32 v{T}, 15, v0
v_add_u32 v{VA}, v{VA}, v{T}
v_bfe_u32 v{T+1}, v0, 4, 1
v_mul_u32_u24 v{T+2}, 1280, v{T+1}
v_lshlrev_b32 v{VB}, 4, v{VA}
v_add_u32 v{VB}, v{VB}, v{T+2}
s_mul_i32 s3, s47, {REG2}
v_add_u32 v{VB}, s3, v{VB}""")
    a(f"ds_read_b128 v[{Q}:{Q+3}], v{VB} offset:{QOFF + 128}\nds_read_b128 v[{Q+4}:{Q+7}], v{VB} offset:{QOFF + 128 + 2560}")
    for kb in range(3):
        a(f"ds_read_b128 v[{K+8*kb}:{K+8*kb+3}], v{VB} offset:{KOFF + 64*kb}\nds_read_b128 v[{K+8*kb+4}:{K+8*kb+7}], v{VB} offset:{KOFF + 64*kb + 2560}")
    a(f"""v_lshlrev_b32 v1, 4, v1
v_and_b32 v{T}, 3, v0
v_lshlrev_b32 v{T}, 2, v{T}
v_add_u32 v1, v1, v{T}
v_bfe_u32 v{T}, v0, 2, 2
v_add_u32 v1, v1, v{T}
v_lshlrev_b32 v1, 3, v1
v_mul_u32_u24 v{T}, 640, v{T+1}
v_add_u32 v1, v1, v{T}
s_add_u32 s3, s3, {VOFF}
v_add_u32 v1, s3, v1""")
    for kb in range(3):
        for m in range(4):
            d = V + 8 * kb + 2 * m
            a(f"ds_read_b64_tr_b16 v[{d}:{d+1}], v1 offset:{1280*m + 32*kb}")
    a(f"""v_mov_b32 v{T}, 0
v_mov_b32 v{T+1}, 0
s_cmp_lg_u32 s50, 0
s_cbranch_scc1 at_nomask
v_mov_b32 v{T+2}, 0xf149f2ca
v_cmp_gt_u32 vcc, 8, v{VA}
v_cndmask_b32 v{T}, 0, v{T+2}, vcc
v_cmp_gt_u32 vcc, 4, v{VA}
v_cndmask_b32 v{T+1}, 0, v{T+2}, vcc
at_nomask:""")
    for i in range(4): a(f"v_mov_b32 v{S[0]+i}, v{T}\nv_mov_b32 v{S[1]+i}, v{T+1}")
    tail(OPT["tl0"])
    a("s_waitcnt lgkmcnt(12)")
    for ds in range(4):
        for kb in range(3):
            c = f"v[{S[kb]}:{S[kb]+3}]" if not (kb == 2 and ds == 0) else "0"
            a(f"v_mfma_f32_4x4x4_16b_bf16 v[{S[kb]}:{S[kb]+3}], v[{K+8*kb+2*ds}:{K+8*kb+2*ds+1}], v[{Q+2*ds}:{Q+2*ds+1}], {c}")
    a("""s_mov_b32 s62, 0x11111111
s_mov_b32 s63, 0x11111111
s_mov_b32 s64, 0x33333333
s_mov_b32 s65, 0x33333333
s_mov_b32 s66, 0x77777777
s_mov_b32 s67, 0x77777777
s_mov_b32 s61, 0x3eb8aa3b""")
    tail(OPT["tl1"])
    a(f"v_cndmask_b32 v{S[2]+1}, v{S[2]+1}, v{S[0]+1}, s[62:63]")
    a(f"v_cndmask_b32 v{S[2]+2}, v{S[2]+2}, v{S[0]+2}, s[64:65]")
    a(f"v_cndmask_b32 v{S[2]+3}, v{S[2]+3}, v{S[0]+3}, s[66:67]")
    p = [S[2] + i for i in range(4)] + [S[1] + i for i in range(4)]
    t0, t1, t2, t3 = T, T + 1, T + 2, T + 3
    a(f"v_max3_f32 v{t0}, v{p[0]}, v{p[1]}, v{p[2]}\nv_max3_f32 v{t1}, v{p[3]}, v{p[4]}, v{p[5]}")
    a(f"v_max3_f32 v{t0}, v{t0}, v{p[6]}, v{p[7]}\nv_max_f32 v{t0}, v{t0}, v{t1}\nv_mul_f32 v{t0}, s61, v{t0}")
    for x in p: a(f"v_fma_f32 v{x}, s61, v{x}, -v{t0}")
    for x in p: a(f"v_exp_f32 v{x}, v{x}")
    tail(OPT["tl2"])
    a(f"v_add_f32 v{t1}, v{p[0]}, v{p[1]}\nv_add_f32 v{t2}, v{p[2]}, v{p[3]}\nv_add_f32 v{t3}, v{p[4]}, v{p[5]}\nv_add_f32 v{t0}, v{p[6]}, v{p[7]}")
    a(f"v_add_f32 v{t1}, v{t1}, v{t2}\nv_add_f32 v{t0}, v{t0}, v{t3}\nv_add_f32 v{t0}, v{t0}, v{t1}\nv_rcp_f32 v{t0}, v{t0}")
    for x in p: a(f"v_mul_f32 v{x}, v{x}, v{t0}")
    P0, P1, P2, P3, P4, P5 = [PP + i for i in range(6)]
    a(f"""v_cvt_pk_bf16_f32 v{P0}, v{p[0]}, v{p[1]}
v_cvt_pk_bf16_f32 v{P1}, v{p[2]}, v{p[3]}
v_cvt_pk_bf16_f32 v{P2}, v{p[4]}, v{p[5]}
v_cvt_pk_bf16_f32 v{P3}, v{p[6]}, v{p[7]}
v_mov_b32 v{t0}, 0xffff0000
v_cndmask_b32 v{t1}, 0, v{t0}, s[62:63]
v_cndmask_b32 v{t2}, 0, v{t0}, s[66:67]
v_mov_b32 v{t0}, 0xffff
v_cndmask_b32 v{t3}, 0, v{t0}, s[64:65]
v_or_b32 v{t2}, v{t2}, v{t3}
v_and_b32 v{P4}, v{P0}, v{t1}
v_and_b32 v{P5}, v{P1}, v{t2}
v_xor_b32 v{P0}, v{P0}, v{P4}
v_xor_b32 v{P1}, v{P1}, v{P5}
s_waitcnt lgkmcnt(0)""")
    Pk = [P4, P2, P0]
    tail(99)
    O = [K, K + 4, K + 8, K + 12]
    for kb in range(3):
        for m in range(4):
            c = f"v[{O[m]}:{O[m]+3}]" if kb else "0"
            d = V + 8 * kb + 2 * m
            a(f"v_mfma_f32_4x4x4_16b_bf16 v[{O[m]}:{O[m]+3}], v[{d}:{d+1}], v[{Pk[kb]}:{Pk[kb]+1}], {c}")
    Qo = 48
    for m in range(4):
        a(f"v_cvt_pk_bf16_f32 v{Qo+2*m}, v{O[m]}, v{O[m]+1}\nv_cvt_pk_bf16_f32 v{Qo+2*m+1}, v{O[m]+2}, v{O[m]+3}")
    sc = " sc1" if OPT["fuse"] else ""
    a(f"""v_lshrrev_b32 v{t0}, 5, v0
s_mov_b32 s3, {OH_TILE}
v_mul_lo_u32 v{t0}, v{t0}, s3
v_and_b32 v{t1}, 31, v0
v_lshlrev_b32 v{t1}, 4, v{t1}
v_add_u32 v{t0}, v{t0}, v{t1}
s_lshl_b32 s3, s50, 2
s_lshl_b32 s61, s49, 1
s_add_u32 s3, s3, s61
s_mul_i32 s3, s3, 144
s_lshl_b32 s61, s51, 2
s_add_u32 s3, s3, s61
s_add_u32 s3, s3, s47
s_lshl_b32 s3, s3, 10
s_add_u32 s3, s3, {OH}
buffer_store_dwordx4 v[{Qo}:{Qo+3}], v{t0}, {srd(S_WS)}, s3 offen{sc}
buffer_store_dwordx4 v[{Qo+4}:{Qo+7}], v{t0}, {srd(S_WS)}, s3 offen offset:512{sc}""")
    if OPT["fuse"]:
        st("attn_done")
        a("s_waitcnt vmcnt(0)")
        st("drainedA")
        a("s_branch pub")
    else:
        a("s_branch p1_done")

RW = 20480; RT = 5120; RQ = 1280; RH = 640
def phase2(a, st):
    ws = srd(S_WS)
    a(f"""pub:
s_barrier
s_cmp_lg_u32 s46, 4
s_cbranch_scc1 p2_go
s_mov_b64 exec, 1
s_add_u32 s61, s76, 1
v_mov_b32 v20, s61
s_lshl_b32 s3, s50, 4
s_add_u32 s3, s3, s52
s_lshl_b32 s3, s3, 7
s_add_u32 s3, s3, {FLG2}
buffer_store_dword v20, off, {ws}, s3 sc1
s_mov_b64 exec, -1
p2_go:""")
    st("pub")
    a(f"""buffer_load_dword v20, off, {ws}, s87 sc1
s_add_u32 s76, s76, 1
v_lshlrev_b32 v22, 4, v0
v_add_u32 v21, {OH_TILE}, v22
s_mov_b32 s60, 0""")
    def spin(tag, sreg, first_wait):
        a(first_wait)
        a(f"""p2_spin{tag}:
v_cmp_eq_u32 vcc, s76, v20
s_cbranch_vccnz p2_ok{tag}
s_add_u32 s60, s60, 1
s_cmp_ge_u32 s60, 0x8000
s_cbranch_scc1 p2_ok{tag}
s_sleep 2
buffer_load_dword v20, off, {ws}, s{sreg} sc1
s_waitcnt vmcnt(0)
s_branch p2_spin{tag}
p2_ok{tag}:""")
    spin("B", 87, "s_waitcnt vmcnt(0)")
    st("pollB")
    if OPT["p2prio"]: a(f"s_setprio {OPT['p2prio']}")
    vm = VM()
    free = list(OPT.get("ring0", [96, 104, 88, 12, 2]))
    slot = {}
    nxt = [0]
    lastso = [None]
    def issue(limit):
        while nxt[0] < limit and free:
            i = nxt[0]; nxt[0] += 1
            if i < 10: base, k = 84, i
            elif i < 14: base, k = 85, i - 10
            else: base, k = 86, i - 14
            key = (base, k >> 2)
            if lastso[0] != key:
                a(f"s_add_u32 s89, s{base}, {4096 * (k >> 2)}"); lastso[0] = key
            r = free.pop(0); slot[i] = r
            for rt in range(2):
                a(f"buffer_load_dwordx4 v[{r+4*rt}:{r+4*rt+3}], v{22-rt}, {ws}, s89 offen offset:{1024*(k&3)} sc1"); vm.issue(("L", i))
    issue(10)
    RES = None
    okA = False
    for i in range(18):
        a(vm.wait(("L", i)))
        if i == OPT["chkA"]:
            a("s_mov_b32 s60, 0")
            spin("A", 88, "s_nop 0")
            st("pollA")
            okA = True
            issue(18)
        w = W2R(i); o = slot[i]
        for rt in range(2):
            for nt in range(2):
                c = ACC2 + 16 * (2 * rt + nt)
                cc = f"v[{c}:{c+15}]" if i else "0"
                a(f"v_mfma_f32_32x32x16_bf16 v[{c}:{c+15}], v[{w+4*nt}:{w+4*nt+3}], v[{o+4*rt}:{o+4*rt+3}], {cc}")
        free += [o, w]
        if i == 0:
            a(f"buffer_load_dword v20, off, {ws}, s88 sc1"); vm.issue("pollA")
        issue(18 if okA else 10)
        if nxt[0] == 18 and RES is None and free:
            RES = free.pop(0)
            a(f"""s_and_b32 s60, s46, 3
s_lshl_b32 s60, s60, 3
v_and_b32 v10, 7, v0
v_add_u32 v10, s60, v10
v_and_b32 v11, 15, v10
v_lshlrev_b32 v11, 1, v11
v_lshrrev_b32 v1, 4, v10
v_add_u32 v11, v11, v1
s_lshr_b32 s61, s46, 2
s_lshl_b32 s61, s61, 5
s_lshl_b32 s62, s78, 6
s_add_u32 s61, s61, s62
v_add_u32 v11, s61, v11
v_lshlrev_b32 v11, 10, v11
v_bfe_u32 v1, v0, 3, 2
v_lshlrev_b32 v1, 5, v1
v_add_u32 v11, v11, v1
v_lshrrev_b32 v1, 5, v0
v_lshlrev_b32 v1, 4, v1
v_add_u32 v11, v11, v1
s_lshl_b32 s62, s77, 7
v_add_u32 v11, s62, v11
buffer_load_dwordx4 v[{RES}:{RES+3}], v11, {srd(S_X)}, 0 offen""")
            vm.issue("res")
            a(f"""v_lshlrev_b32 v10, 4, v10
v_lshrrev_b32 v1, 5, v0
v_mul_u32_u24 v1, {4*RW}, v1
v_add_u32 v10, v10, v1
v_bfe_u32 v1, v0, 4, 1
v_mul_u32_u24 v1, {RQ}, v1
v_add_u32 v10, v10, v1
v_bfe_u32 v1, v0, 3, 1
v_mul_u32_u24 v1, {RH}, v1
v_add_u32 v10, v10, v1
s_lshr_b32 s61, s46, 2
s_mul_i32 s61, s61, {2*RT}
v_add_u32 v10, s61, v10""")
            a(f"""v_and_b32 v20, 31, v0
v_lshlrev_b32 v20, 4, v20
v_lshrrev_b32 v1, 5, v0
v_mul_u32_u24 v1, {RH}, v1
v_add_u32 v20, v20, v1
s_mul_i32 s61, s46, {RW}
v_add_u32 v20, s61, v20""")
        if i in (0, 4, 9, 13): st(f"q{i}")
    assert nxt[0] == 18 and RES is not None
    st("p2_loop")
    if OPT["p2prio"]: a("s_setprio 0")
    for rt in range(2):
        for nt in range(2):
            c = ACC2 + 16 * (2 * rt + nt)
            for q in range(4):
                a(f"ds_write_b128 v20, v[{c+4*q}:{c+4*q+3}] offset:{(2*rt+nt)*RT + q*RQ}")
    a(vm.wait("res"))
    a("s_waitcnt lgkmcnt(0)")
    for i in range(4):
        a(f"v_lshlrev_b32 v{24+2*i}, 16, v{RES+i}\nv_and_b32 v{25+2*i}, 0xffff0000, v{RES+i}")
    a("s_barrier")
    st("red_w")
    a(f"v_add_u32 v1, {2*RW}, v10")
    for sidx in range(4):
        for c in range(4):
            nt, hb = c >> 1, c & 1
            base = 10 if sidx < 2 else 1
            off = (sidx & 1) * RW + nt * RT + 2 * hb * RQ
            d = 96 + 16 * sidx + 4 * c
            a(f"ds_read_b128 v[{d}:{d+3}], v{base} offset:{off}")
    a("s_waitcnt lgkmcnt(8)")
    for k in range(8): a(f"v_pk_add_f32 v[{96+2*k}:{97+2*k}], v[{96+2*k}:{97+2*k}], v[{112+2*k}:{113+2*k}]")
    a("s_waitcnt lgkmcnt(0)")
    for k in range(8): a(f"v_pk_add_f32 v[{128+2*k}:{129+2*k}], v[{128+2*k}:{129+2*k}], v[{144+2*k}:{145+2*k}]")
    for k in range(8): a(f"v_pk_add_f32 v[{96+2*k}:{97+2*k}], v[{96+2*k}:{97+2*k}], v[{128+2*k}:{129+2*k}]")
    for c in range(4):
        for r in range(2): a(f"v_permlane32_swap_b32 v{96+4*c+r}, v{96+4*c+r+2}")
    for r in range(2):
        for c in range(4):
            a(f"v_add_f32 v{96+4*c+r}, v{96+4*c+r}, v{96+4*c+r+2}")
    for r in range(2):
        for c in range(4):
            a(f"v_add_f32 v{24+4*r+c}, v{24+4*r+c}, v{96+4*c+r}")
    for k in range(4): a(f"v_cvt_pk_bf16_f32 v{32+k}, v{24+2*k}, v{25+2*k}")
    a(f"buffer_store_dwordx4 v[32:35], v11, {srd(S_OUT)}, 0 offen")
    a(f"""s_or_b32 s3, s2, s46
s_cmp_lg_u32 s3, 0
s_cbranch_scc1 p2_noep
s_mov_b64 exec, 1
v_mov_b32 v20, s76
s_mov_b32 s3, {FLG}
buffer_store_dword v20, off, {ws}, s3
s_mov_b64 exec, -1
p2_noep:""")

DBG_NAMES = ["nstart", "start", "karg", "Pm1", "P3", "P7", "P11", "P15", "attn_done", "pub", "pollB", "pollA", "p2_loop", "red_w", "end", "dma_issued"]
class DStamps:
    def __init__(self, a): self.a = a; self.n = 0; self.names = []
    def __call__(self, name, real=False):
        if name in DBG_NAMES:
            self.a(f"s_memrealtime s[100:101]\ns_waitcnt lgkmcnt(0)\nv_writelane_b32 v{VSTAMP}, s100, {DBG_NAMES.index(name)}")
    def dump(self, w, t): pass

def gen_k1(P, name="k1_kernel"):
    a = A()
    a("s_cmp_ge_u32 s2, 256\ns_cbranch_scc1 k1_done")
    global Stamps
    if OPT.get("dbgp"):
        Stamps = lambda a_, v, k: DStamps(a_)
        a(f"v_mov_b32 v{VSTAMP}, 0")
        a(f"s_memrealtime s[100:101]\ns_waitcnt lgkmcnt(0)\nv_writelane_b32 v{VSTAMP}, s100, 1\ns_not_b32 s100, s100\nv_writelane_b32 v{VSTAMP}, s100, 0")
    stc = Stamps(a, VSTAMP, 1); stp = Stamps(a, VSTAMP, 1)
    if gen1.PROF:
        stc("real0", True); stc("start")
        stp.names = list(stc.names); stp.n = stc.n
    prologue(a)
    a("s_cmp_lt_u32 s46, 4\ns_cbranch_scc1 cons")
    prod_setup_common(a)
    a("s_cmp_lg_u32 s48, 0\ns_cbranch_scc1 prodB")
    n0 = stp.n; nm0 = list(stp.names)
    producer(a, "A", stp)
    a("prodB:")
    stp.n = n0; stp.names = list(nm0)
    producer(a, "B", stp)
    a("cons:")
    w2l, w2i = consumer(a, stc)
    sta = Stamps(a, VSTAMP, 1); sta.n = 16; sta.names = [None] * 16
    attention(a, sta, w2l[w2i[0]:] if OPT["fuse"] else None)
    a("ep_B:\ns_nop 3")
    k = 0; nd = 0
    for j in range(5):
        for rt in range(2):
            for x in ffn_tile(rt, j): a(x)
            nd += 1
            for _ in range(2):
                if OPT["fuse"] and k < len(w2l) and (w2l[k][0] >> 1) < nd - 1:
                    for x in w2l[k][1]: a(x)
                    k += 1
    if OPT["fuse"]:
        sta.n = 16; sta.names = [None] * 16
        sta("attn_done")
        a("s_waitcnt vmcnt(0)")
        sta("drainedA")
        a("s_barrier")
        while k < len(w2l):
            for x in w2l[k][1]: a(x)
            k += 1
        a("s_branch p2_go")
        st2 = Stamps(a, VSTAMP, 1); st2.n = 18; st2.names = list(sta.names) if gen1.PROF else []
        phase2(a, st2)
        if gen1.PROF:
            for S_ in (stc, stp):
                S_.names = S_.names + ["-"] * (16 - len(S_.names)) + st2.names[16:]
    a("p1_done:")
    if gen1.PROF:
        a(f"s_memtime s[100:101]\ns_waitcnt lgkmcnt(0)\nv_writelane_b32 v{VSTAMP}, s100, 30")
    a("s_waitcnt vmcnt(0)")
    if OPT.get("dbgp"):
        stc("end")
        a(f"""s_cmp_lg_u32 s46, {OPT['dbgp']}
s_cbranch_scc1 k1_done
s_mov_b64 exec, 0xffff
v_lshlrev_b32 v24, 2, v0
buffer_atomic_umax v{VSTAMP}, v24, {srd(S_DBG)}, 0 offen
s_waitcnt vmcnt(0)""")
    if gen1.PROF:
        a(f"s_memtime s[100:101]\ns_waitcnt lgkmcnt(0)\nv_writelane_b32 v{VSTAMP}, s100, 31")
        a(f"s_memrealtime s[100:101]\ns_waitcnt lgkmcnt(0)\nv_writelane_b32 v{VSTAMP}, s100, 32")
        stc.dump(46, 24)
        print("CONS", stc.names, file=sys.stderr); print("PROD", stp.names, file=sys.stderr)
        open("last.names", "w").write(repr({"cons": stc.names, "prod": stp.names}))
    a("k1_done:\ns_endpgm")
    gen1.finish(P, name, a, 256, LDS1)

if __name__ == "__main__":
    if len(sys.argv) > 2 and sys.argv[2] == "prof": gen1.PROF = True
    P = Prog()
    if OPT["fuse"]:
        gen_k1(P, NAME + "_kernel")
        open(sys.argv[1], "w").write(P.render(single=True))
    else:
        gen_k1(P)
        gen1.gen_k2(P)
        open(sys.argv[1], "w").write(P.render())
```

```python
import sys; sys.path.insert(0, "work")
from asmlib import *
import hazard, gen1
from gen1 import Stamps, DPPM
import os

OPT = dict(fuse=1, nb=1, prio=2, per=2, pf=1, rot=8, nohalo=0, x16=1, amap=1,
           pprio=3, tl0=4, tl1=4, tl2=4, w2a=4, chkA=5, p2prio=0,
           par=1, sig=1, bw2=2, bw2b=4, pB=6, dsch=2, pkl=3, pk0=5, pk1=7, fs=8, gp=11, csp=12, tab=13, w12=4, w13=6, w14=8, w15=8, hlate=1)
for kv in os.environ.get("OPT", "").split(","):
    if "=" in kv:
        k, v = kv.split("="); OPT[k] = int(v)

STATS = 0
OH = 65536
OH_TILE = 144 * 1024
CSP = OH + 64 * OH_TILE
PK = CSP + 16 * 16 * 4 * 320
WS_USED = PK + 8 * 144 * 2048
FLG = 16384
FLG2 = FLG + 12288
XB = 2048 * 1024
WQKV_B = 512 * 3072
WG_B = 512 * 3584
WO_B = 512 * 1024
WD_B = 1792 * 1024

WST = 20480
XRING = 102400; XST = 18432
TAB = 157696
CST = TAB; RST = TAB + 2560
LDS1 = 163840
REG2 = 36864
QOFF = 20480; KOFF = 25600; VOFF = 30720

S_X, S_QKV, S_G, S_U, S_WS, S_DBG, S_WD, S_WO, S_OUT = 4, 8, 12, 16, 20, 24, 28, 32, 36
S_PK = 68
def srd(n): return f"s[{n}:{n+3}]"

class VM:
    def __init__(self): self.q = []
    def issue(self, tag): self.q.append(tag)
    def wait(self, *tags):
        idx = [i for i, t in enumerate(self.q) if t in tags]
        if not idx: return None
        n = len(self.q) - 1 - max(idx)
        assert n <= 63, n
        return f"s_waitcnt vmcnt({n})"

VT = [2, 3, 4, 5, 6]; VX = [12, 13, 14, 15]; VC = [16, 17, 18, 19, 20]; VR = 21; VL16 = 22; VSTAMP = 23
FA = [32, 60]; FB = [52, 80]
def ACC(rt, j): return 96 + 80 * rt + 16 * j
W2BASE = [176, 112, 192, 128, 208, 144, 224, 160, 240]
def W2R(i): return W2BASE[i >> 1] + 8 * (i & 1)
ACC2 = 24
RING0 = [96, 104, 88, 12]

def prologue(a):
    if OPT["x16"]:
        a("s_load_dwordx16 s[76:91], s[0:1], 0\ns_load_dwordx4 s[92:95], s[0:1], 64")
    else:
        for (s, off) in ((S_X, 0), (S_QKV, 8), (S_G, 32), (S_U, 40), (S_WS, 72), (S_DBG, 64), (S_WD, 48), (S_WO, 16), (S_OUT, 56)):
            a(f"s_load_dwordx2 s[{s}:{s+1}], s[0:1], {off}")
    a("""v_lshrrev_b32 v1, 6, v0
v_and_b32 v0, 63, v0
s_and_b32 s60, s2, 7
s_lshr_b32 s61, s2, 3
v_readfirstlane_b32 s46, v1
s_lshr_b32 s50, s60, 2
s_lshl_b32 s50, s50, 3
s_and_b32 s62, s61, 7
s_add_u32 s50, s50, s62
s_and_b32 s47, s46, 3""")
    if OPT["amap"]:
        a("""s_and_b32 s51, s60, 3
s_lshl_b32 s51, s51, 1
s_bfe_u32 s62, s61, 0x10003
s_add_u32 s51, s51, s62
s_lshr_b32 s48, s61, 4
s_lshl_b32 s52, s48, 3
s_add_u32 s52, s52, s51""")
    else:
        a("""s_and_b32 s52, s60, 3
s_lshl_b32 s52, s52, 2
s_lshr_b32 s62, s61, 3
s_add_u32 s52, s52, s62
s_lshr_b32 s48, s52, 3
s_and_b32 s51, s52, 7""")
    for (s, nb) in ((S_X, XB), (S_QKV, WQKV_B), (S_G, WG_B), (S_U, WG_B), (S_WS, WS_USED), (S_DBG, 256), (S_WD, WD_B), (S_WO, WO_B), (S_OUT, XB)):
        a(f"s_mov_b32 s{s+2}, {nb}\ns_mov_b32 s{s+3}, 0x00020000")
    a("""s_mul_i32 s74, s51, 160
s_add_u32 s74, s74, 512
s_and_b32 s75, s51, 1
s_lshl_b32 s72, s75, 5
s_add_u32 s72, s72, s74
s_add_u32 s73, s74, 128
s_cmp_lg_u32 s75, 0
s_cselect_b32 s73, s74, s73""")

def karg_wait(a):
    a("s_waitcnt lgkmcnt(0)")
    if OPT["x16"]:
        for (s, off) in ((S_X, 0), (S_QKV, 8), (S_G, 32), (S_U, 40), (S_WS, 72), (S_DBG, 64), (S_WD, 48), (S_WO, 16), (S_OUT, 56)):
            a(f"s_mov_b64 s[{s}:{s+1}], s[{76+off//4}:{77+off//4}]")

def nonce_load(a):
    a(f"s_load_dword s76, s[{S_WS}:{S_WS+1}], {FLG}")

def p2_scalars(a):
    if OPT["par"]:
        P2PAR = "s_xor_b32 s79, s77, s78\ns_and_b32 s79, s79, 1\n"
    else:
        P2PAR = "s_and_b32 s79, s77, 1\n"
    P2PAR += "s_lshl_b32 s79, s79, 2\ns_add_u32 s79, s79, s46\ns_and_b32 s79, s79, 7"
    a(f"""s_and_b32 s60, s2, 7
s_lshr_b32 s61, s2, 3
s_lshr_b32 s77, s61, 2
s_lshl_b32 s78, s60, 2
s_and_b32 s62, s61, 3
s_add_u32 s78, s78, s62
{P2PAR}
s_mul_i32 s60, s77, 144
s_mul_i32 s61, s79, 10
s_add_u32 s61, s61, 64
s_lshl_b32 s62, s79, 2
s_add_u32 s80, s60, s61
s_lshl_b32 s80, s80, 11
s_add_u32 s80, s80, {PK}
s_add_u32 s82, s60, s62
s_lshl_b32 s82, s82, 11
s_add_u32 s82, s82, {PK}
s_add_u32 s81, s82, {32*2048}
s_mul_i32 s60, s78, 288
s_add_u32 s84, s60, s61
s_lshl_b32 s84, s84, 10
s_add_u32 s84, s84, {OH}
s_add_u32 s86, s60, s62
s_lshl_b32 s86, s86, 10
s_add_u32 s86, s86, {OH}
s_add_u32 s85, s86, {32*1024}
s_lshr_b32 s60, s78, 1
s_lshl_b32 s60, s60, 4
s_add_u32 s88, s60, s79
s_lshl_b32 s88, s88, 7
s_add_u32 s88, s88, {FLG2}
s_add_u32 s87, s88, 1024""")
    if OPT["sig"]:
        a(f"""s_lshr_b32 s60, s77, 1
s_and_b32 s61, s78, 2
s_add_u32 s60, s60, s61
s_and_b32 s60, s60, 3
s_mul_i32 s61, s60, 5
s_add_u32 s61, s61, 1
s_lshr_b32 s61, s61, 1
s_lshl_b32 s61, s61, 2
s_mov_b32 s96, 0x76543210
s_mov_b32 s97, 0x98
s_sub_u32 s62, 40, s61
s_lshl_b64 s[98:99], s[96:97], s62
s_lshr_b64 s[96:97], s[96:97], s61
s_or_b64 s[96:97], s[96:97], s[98:99]
s_lshl_b32 s3, s60, 4
s_and_b32 s61, s77, 1
s_lshl_b32 s61, s61, 3
s_add_u32 s3, s3, s61
s_mov_b32 s98, 0x23222120
s_mov_b32 s99, 0x03020100
s_sub_u32 s62, 64, s3
s_lshl_b64 s[60:61], s[98:99], s62
s_lshr_b64 s[98:99], s[98:99], s3
s_or_b64 s[98:99], s[98:99], s[60:61]""")
    else:
        a("s_mov_b32 s96, 0x76543210\ns_mov_b32 s97, 0x98\ns_mov_b32 s98, 0x23222120\ns_mov_b32 s99, 0x03020100")

def step_off(i, sh, baseB, baseA, dst):
    if i < 10:
        t, pos, w, base = 96 + (i >> 3), 4 * (i & 7), 4, baseB
    else:
        j = i - 10
        t, pos, w, base = 98 + (j >> 2), 8 * (j & 3), 8, baseA
    return [f"s_bfe_u32 s{dst}, s{t}, {hex(pos | (w << 16))}", f"s_lshl_b32 s{dst}, s{dst}, {sh}", f"s_add_u32 s{dst}, s{dst}, s{base}"]

def w2_loads(vl16):
    out = []
    for i in range(18):
        pre = step_off(i, 11, 80, 82, 89)
        r = W2R(i)
        for nt in range(2):
            out.append((i, pre + [f"buffer_load_dwordx4 v[{r+4*nt}:{r+4*nt+3}], v{vl16}, {srd(S_WS)}, s89 offen offset:{1024*nt} sc1"]))
            pre = []
    return out

def prod_setup_common(a):
    a("""v_lshrrev_b32 v58, 3, v0
s_lshl_b32 s3, s47, 3
v_add_u32 v56, s3, v58
v_and_b32 v57, 7, v0
v_bfe_u32 v59, v0, 4, 1
v_lshlrev_b32 v59, 2, v59
v_xor_b32 v57, v57, v59
s_and_b32 s3, s47, 1
s_lshl_b32 s3, s3, 1
v_xor_b32 v57, s3, v57
v_lshlrev_b32 v57, 4, v57
s_lshl_b32 s43, s47, 10
s_lshl_b32 s44, s47, 12
s_lshl_b32 s45, s47, 9
s_mov_b32 s53, 0x3f803f80""")
    a("""s_lshl_b32 s3, s50, 7
s_lshl_b32 s60, s47, 5
s_add_u32 s3, s3, s60
v_lshlrev_b32 v59, 1, v58
v_add_u32 v59, s3, v59
v_lshlrev_b32 v59, 10, v59
v_and_b32 v60, 7, v0
v_lshrrev_b32 v61, 4, v0
v_xor_b32 v60, v60, v61
v_lshlrev_b32 v60, 4, v60
v_add_u32 v6, v59, v60
v_xor_b32 v60, 64, v60
v_add_u32 v7, v59, v60
v_add_u32 v7, 0x4000, v7""")
    R = OPT["rot"]
    if R > 1:
        a(f"""s_and_b32 s3, s50, {R-1}
s_mul_i32 s3, s3, {8//R}
s_mul_i32 s40, s3, 196608
s_mul_i32 s41, s3, 229376
s_lshl_b32 s42, s3, 7""")
    else:
        a("s_mov_b32 s40, 0\ns_mov_b32 s41, 0\ns_mov_b32 s42, 0")

def prod_late_setup(a, T):
    a(f"""v_lshrrev_b32 v58, 4, v0
v_bfe_u32 v59, v0, 2, 2
v_lshlrev_b32 v60, 3, v58
v_add_u32 v60, v60, v59
v_lshlrev_b32 v60, 7, v60
v_and_b32 v61, 3, v0
v_lshlrev_b32 v61, 3, v61
v_add_u32 v60, v60, v61
v_and_b32 v61, 2, v59
v_and_b32 v62, 1, v58
v_xor_b32 v61, v61, v62
v_xor_b32 v61, s47, v61
v_lshlrev_b32 v61, 5, v61
v_add_u32 v9, v60, v61
v_add_u32 v10, {3*WST}, v9""")
    a(f"""s_lshl_b32 s3, s50, 7
s_lshl_b32 s60, s47, 6
s_add_u32 s61, s3, s60
v_add_u32 v14, s61, v0
v_lshlrev_b32 v14, 3, v14
v_add_u32 v15, s60, v0
v_lshlrev_b32 v15, 3, v15
v_add_u32 v15, {RST}, v15
s_cmp_lt_u32 s47, 2
s_cbranch_scc1 psa_done{T}
v_and_b32 v58, 7, v0
v_bfe_u32 v59, v0, 3, 1
v_lshlrev_b32 v59, 4, v59
v_add_u32 v58, v58, v59
s_sub_u32 s3, s3, 24
v_add_u32 v14, s3, v58
v_lshlrev_b32 v14, 3, v14
v_and_b32 v15, 15, v0
v_lshlrev_b32 v15, 3, v15
v_add_u32 v15, {RST + 128*8}, v15
s_cmp_lg_u32 s50, 0
s_cbranch_scc1 psa_done{T}
v_mov_b32 v14, 0x80000000
psa_done{T}:""")
    p2_scalars(a)
    a(f"""s_lshl_b32 s3, s50, 8
s_add_u32 s3, s3, {FLG + 256}
s_lshl_b32 s60, s52, 8
s_add_u32 s60, s60, {FLG + 256*17}
s_lshl_b32 s61, s77, 8
s_add_u32 s61, s61, {FLG + 256*33}
v_lshlrev_b32 v58, 4, v0
v_mov_b32 v13, s3
v_add_u32 v59, s3, v58
v_cmp_gt_u32 vcc, 4, v0
v_cndmask_b32 v13, v13, v59, vcc
v_subrev_u32 v59, 4, v0
v_cmp_gt_u32 vcc, 4, v59
s_sub_u32 s60, s60, 64
v_add_u32 v59, s60, v58
v_cndmask_b32 v13, v13, v59, vcc
v_subrev_u32 v59, 8, v0
v_cmp_gt_u32 vcc, 8, v59
s_sub_u32 s61, s61, 128
v_add_u32 v59, s61, v58
v_cndmask_b32 v13, v13, v59, vcc""")
    if T == "A":
        a(f"""s_sub_u32 s61, s3, {256 - 48}
s_cmp_eq_u32 s50, 0
s_cselect_b32 s61, s3, s61
v_cmp_eq_u32 vcc, 16, v0
v_mov_b32 v59, s61
v_cndmask_b32 v13, v13, v59, vcc""")
    a(f"""s_lshl_b32 s61, s52, 2
s_add_u32 s3, s3, s61
s_lshl_b32 s61, s50, 2
s_add_u32 s60, s60, s61
s_add_u32 s60, s60, 64
s_and_b32 s61, s2, 7
s_lshl_b32 s61, s61, 8
s_lshr_b32 s62, s2, 3
s_lshl_b32 s62, s62, 2
s_add_u32 s61, s61, s62
s_add_u32 s61, s61, {FLG + 256*33}
v_mov_b32 v21, s3
v_mov_b32 v59, s60
v_cmp_eq_u32 vcc, 1, v0
v_cndmask_b32 v21, v21, v59, vcc
v_mov_b32 v59, s61
v_cmp_eq_u32 vcc, 2, v0
v_cndmask_b32 v21, v21, v59, vcc""")
    a(f"""v_lshrrev_b32 v58, 5, v0
v_lshlrev_b32 v58, 2, v58
v_bfe_u32 v59, v0, 4, 1
v_lshlrev_b32 v59, 3, v59
v_add_u32 v58, v58, v59
v_lshlrev_b32 v58, 10, v58
v_and_b32 v59, 15, v0
v_lshlrev_b32 v59, 3, v59
v_add_u32 v58, v58, v59
s_and_b32 s60, s2, 7
s_lshl_b32 s61, s60, 7
v_add_u32 v54, s61, v58
v_lshlrev_b32 v55, 4, v0
v_lshlrev_b32 v22, 4, v0
s_lshr_b32 s61, s2, 3
s_lshl_b32 s62, s61, 2
s_add_u32 s62, s62, s47
s_mul_i32 s60, s60, 144
s_add_u32 s92, s60, s62
s_lshl_b32 s92, s92, 11
s_add_u32 s92, s92, {PK}
s_add_u32 s93, s60, s61
s_add_u32 s93, s93, 128
s_lshl_b32 s93, s93, 11
s_add_u32 s93, s93, {PK}
s_add_u32 s91, s61, 96
s_lshl_b32 s91, s91, 14
s_cmp_lt_u32 s62, 32
s_cselect_b32 s{S_PK}, s{S_WO}, s{S_WD}
s_cselect_b32 s{S_PK+1}, s{S_WO+1}, s{S_WD+1}
s_cselect_b32 s{S_PK+2}, s{S_WO+2}, s{S_WD+2}
s_mov_b32 s{S_PK+3}, 0x00020000
s_cselect_b32 s3, 0, 32
s_sub_u32 s90, s62, s3
s_lshl_b32 s90, s90, 14
v_mov_b32 v53, v55
v_mov_b32 v52, v54
s_and_b32 s3, s61, 3
s_cmp_eq_u32 s3, s47
s_cselect_b32 s3, 1, 0
s_cmp_lt_u32 s61, 16
s_cselect_b32 s3, s3, 0
s_cmp_lg_u32 s3, 0
s_cbranch_scc1 pk_act{T}
v_mov_b32 v53, 0x80000000
v_mov_b32 v52, 0x80000000
pk_act{T}:""")
    a(f"""s_lshl_b32 s94, s52, 6
s_add_u32 s94, s94, s47
s_mul_i32 s94, s94, 320
s_add_u32 s94, s94, {CSP}
s_mul_i32 s95, s50, 1280
s_add_u32 s95, s95, s94""")

def pack_valu(a, raw, out):
    for nt in range(2):
        F = out + 4 * nt
        r = [raw + 2 * q + nt for q in range(4)]
        a(f"v_perm_b32 v{F}, v{r[1]}, v{r[0]}, s60\nv_perm_b32 v{F+2}, v{r[1]}, v{r[0]}, s61")
        a(f"v_perm_b32 v{F+1}, v{r[3]}, v{r[2]}, s60\nv_perm_b32 v{F+3}, v{r[3]}, v{r[2]}, s61")
    for nt in range(2):
        F = out + 4 * nt
        a(f"v_permlane16_swap_b32 v{F}, v{F+2}\nv_permlane16_swap_b32 v{F+1}, v{F+3}")

def producer(a, T, st):
    vm = VM()
    A_ = T == "A"
    if A_:
        a("""s_movk_i32 s60, 3072
v_mul_lo_u32 v58, v56, s60
s_lshl_b32 s3, s51, 7
v_add_u32 v58, s3, v58
v_add_u32 v2, v58, v57
s_movk_i32 s60, 3584
v_mul_lo_u32 v58, v56, s60
v_add_u32 v58, s3, v58
v_add_u32 v3, v58, v57
v_xor_b32 v57, 32, v57
v_add_u32 v4, v58, v57""")
        a(f"""s_lshr_b32 s3, s47, 1
s_lshl_b32 s60, s50, 7
s_add_u32 s3, s3, s60
s_sub_u32 s3, s3, 16
s_and_b32 s60, s47, 1
s_lshl_b32 s60, s60, 3
s_add_u32 s3, s3, s60
v_lshrrev_b32 v58, 3, v0
v_lshlrev_b32 v58, 1, v58
v_add_u32 v58, s3, v58
v_lshlrev_b32 v58, 10, v58
v_and_b32 v59, 7, v0
v_lshrrev_b32 v60, 4, v0
v_xor_b32 v59, v59, v60
s_lshl_b32 s60, s47, 1
v_xor_b32 v59, s60, v59
v_and_b32 v59, 7, v59
v_lshlrev_b32 v59, 4, v59
v_add_u32 v8, v58, v59
s_mov_b32 s58, -1
s_mov_b32 s59, 0
s_cmp_lg_u32 s50, 0
s_cbranch_scc1 pA_hok
v_mov_b32 v8, 0x80000000
pA_hok:""")
    else:
        a("""s_movk_i32 s60, 3584
v_mul_lo_u32 v58, v56, s60
s_lshl_b32 s3, s72, 1
v_add_u32 v59, s3, v58
v_add_u32 v2, v59, v57
v_xor_b32 v60, 32, v57
v_add_u32 v3, v59, v60
s_lshl_b32 s3, s73, 1
v_add_u32 v59, s3, v58
v_and_b32 v57, 48, v57
v_and_b32 v60, 48, v60
v_add_u32 v4, v59, v57
v_add_u32 v5, v59, v60
v_bfe_u32 v58, v0, 2, 1
v_bfe_u32 v59, v0, 4, 1
v_xor_b32 v58, v58, v59
v_cmp_eq_u32 vcc, 0, v58
s_mov_b64 s[54:55], vcc
v_cmp_eq_u32 vcc, 1, v58
s_mov_b64 s[56:57], vcc""")
    def W(s):
        if OPT.get("xnodma") and s >= 5:
            issued.add(("W", s)); return
        base = (s % 5) * WST
        if A_:
            lst = [(2, S_QKV, 40, 0), (2, S_QKV, 40, 1024), (2, S_QKV, 40, 2048), (3, S_G, 41, 0), (4, S_U, 41, 0)]
        else:
            lst = [(2, S_G, 41, 0), (2, S_G, 41, 128), (3, S_U, 41, 0), (3, S_U, 41, 128)]
        for sig, (v, sr, so, imm) in enumerate(lst):
            a(f"s_add_u32 m0, s43, {base + sig*4096 - imm}")
            a(f"buffer_load_dwordx4 v{v}, {srd(sr)}, s{so} offen offset:{imm} lds"); vm.issue(("W", s))
        if not A_:
            a(f"s_add_u32 m0, s43, {base + 4*4096}\ns_mov_b64 exec, s[54:55]")
            a(f"buffer_load_dwordx4 v4, {srd(S_G)}, s41 offen lds"); vm.issue(("W", s))
            a("s_mov_b64 exec, s[56:57]")
            a(f"buffer_load_dwordx4 v5, {srd(S_U)}, s41 offen lds"); vm.issue(("W", s))
            a("s_mov_b64 exec, -1")
        if s < 15:
            if A_: a(f"s_add_u32 s40, s40, 98304\ns_cmp_eq_u32 s40, {16*98304}\ns_cselect_b32 s40, 0, s40")
            a(f"s_add_u32 s41, s41, 114688\ns_cmp_eq_u32 s41, {16*114688}\ns_cselect_b32 s41, 0, s41")
        issued.add(("W", s))
    def X(g):
        if OPT.get("xnodma") and g >= 3:
            issued.add(("X", g)); return
        xs = XRING + (g % 3) * XST
        for par in range(2):
            for half in range(2):
                a(f"s_add_u32 m0, s44, {xs + 2048*par + 1024*half - 1024*par}")
                a(f"buffer_load_dwordx4 v{6+half}, {srd(S_X)}, s42 offen offset:{1024*par} lds"); vm.issue(("X", g))
        if A_:
            a(f"s_add_u32 m0, s45, {xs + 16384}\ns_mov_b64 exec, s[58:59]")
            a(f"buffer_load_dwordx4 v8, {srd(S_X)}, s42 offen lds"); vm.issue(("X", g))
            a("s_mov_b64 exec, -1")
        if g < 7: a("s_add_u32 s42, s42, 128\ns_and_b32 s42, s42, 1023")
        issued.add(("X", g))
    issued = set()
    state = dict(lab=0)
    def lab():
        state["lab"] += 1; return f"pq{T}{state['lab']}"
    IW, IX = W, X
    HF = [76, 88]
    NCS = 16 // OPT["rot"] if OPT["rot"] > 1 else 2
    lgR = {1: 3, 2: 1, 4: 2, 8: 3}[OPT["rot"]]
    def halo_mfma(s):
        h = HF[s & 1]
        a(f"v_mfma_f32_16x16x32_bf16 v[24:27], v[{h}:{h+3}], v[{h+8}:{h+11}], v[24:27]")
        a(f"v_mfma_f32_16x16x32_bf16 v[28:31], v[{h+4}:{h+7}], v[{h+8}:{h+11}], v[28:31]")
    def slot_addr(s):
        slot = s % 5
        return (9, slot * WST) if slot < 3 else (10, (slot - 3) * WST)
    def VRD(h):
        vb, off0 = slot_addr(h)
        if A_ and not OPT["nohalo"]:
            hf = HF[h & 1]
            for k, sig in enumerate((1, 2)):
                for i in range(2):
                    d = hf + 4 * k + 2 * i
                    a(f"ds_read_b64_tr_b16 v[{d}:{d+1}], v{vb} offset:{off0 + sig*4096 + 512*i}")
            a(f"ds_read_b128 v[{hf+8}:{hf+11}], v{11 + (h & 1)} offset:{((h >> 1) % 3) * XST}")
        if h < NCS:
            a(f"s_lshr_b32 s3, s50, {lgR}\ns_cmp_lg_u32 s3, {h}\ns_cbranch_scc1 cs_skip{T}{h}")
            for sig in range(5):
                for i in range(2):
                    d = 32 + 4 * sig + 2 * i
                    a(f"ds_read_b64_tr_b16 v[{d}:{d+1}], v{vb} offset:{off0 + sig*4096 + 512*i}")
            for r in range(16, 21): a(f"v_mov_b32 v{r}, 0")
            a("v_lshlrev_b32 v56, 2, v0")
            a("s_waitcnt lgkmcnt(0)")
            for d in range(4):
                for sig in range(5):
                    a(f"v_dot2c_f32_bf16 v{16+sig}, s53, v{32+4*sig+d}")
            a("""v_permlane32_swap_b32 v16, v18
v_permlane32_swap_b32 v17, v19
v_mov_b32 v58, v20
v_add_f32 v16, v16, v18
v_add_f32 v17, v17, v19
v_permlane32_swap_b32 v20, v58
v_add_f32 v20, v20, v58
v_permlane16_swap_b32 v16, v17
v_mov_b32 v58, v20
v_add_f32 v16, v16, v17
v_permlane16_swap_b32 v20, v58
v_add_f32 v20, v20, v58""")
            a(f"""buffer_store_dword v16, v56, {srd(S_WS)}, s95 offen sc1
s_mov_b64 exec, 0xffff
buffer_store_dword v20, v56, {srd(S_WS)}, s95 offen offset:256 sc1
s_mov_b64 exec, -1
cs_skip{T}{h}:""")
            state["cs_mark"] = len(vm.q)
    def pack_loads():
        for q in range(4):
            a(f"buffer_load_dwordx2 v[{60+2*q}:{61+2*q}], v54, {srd(S_PK)}, s90 offen offset:{1024*q}"); vm.issue(("pkraw", 0))
        for q in range(4):
            a(f"buffer_load_dwordx2 v[{68+2*q}:{69+2*q}], v52, {srd(S_WD)}, s91 offen offset:{1024*q}"); vm.issue(("pkraw", 1))
    def pack_do(k):
        raw = 60 if k == 0 else 68
        a(vm.wait(("pkraw", k)))
        a("s_mov_b32 s60, 0x05040100\ns_mov_b32 s61, 0x07060302")
        pack_valu(a, raw, 40)
        dv = 55 if k == 0 else 53
        so = 92 if k == 0 else 93
        a(f"buffer_store_dwordx4 v[40:43], v{dv}, {srd(S_WS)}, s{so} offen sc1"); vm.issue("pub")
        a(f"buffer_store_dwordx4 v[44:47], v{dv}, {srd(S_WS)}, s{so} offen offset:1024 sc1"); vm.issue("pub")
    def drain_pub():
        idx = max([i for i, t in enumerate(vm.q) if t == "pub"])
        m = state.get("cs_mark", 0)
        if m < len(vm.q):
            idx = max(idx, m)
            a(f"s_waitcnt vmcnt({len(vm.q) - 1 - idx})")
        else:
            a("s_waitcnt vmcnt(0)")
    def raise_flags():
        a(f"""s_cmp_lg_u32 s47, 0
s_cbranch_scc1 pf_skip{T}
s_add_u32 s61, s76, 1
s_mov_b64 exec, 7
v_mov_b32 v58, s61
buffer_store_dword v58, v21, {srd(S_WS)}, 0 offen sc1
s_mov_b64 exec, -1
pf_skip{T}:""")
    def gpoll_issue():
        a(f"""s_cmp_lg_u32 s47, 0
s_cbranch_scc1 pl_skip{T}
buffer_load_dwordx4 v[68:71], v13, {srd(S_WS)}, 0 offen sc1
pl_skip{T}:""")
        state["npoll0"] = len(vm.q)
    def gpoll_check():
        a(f"""s_cmp_lg_u32 s47, 0
s_cbranch_scc1 pp_done{T}
s_mov_b32 s63, 0
s_add_u32 s61, s76, 1
s_waitcnt vmcnt({len(vm.q) - state['npoll0']})
pp_spin{T}:
v_xor_b32 v58, s61, v68
v_xor_b32 v59, s61, v69
v_xor_b32 v60, s61, v70
v_xor_b32 v61, s61, v71
v_or_b32 v58, v58, v59
v_or3_b32 v58, v58, v60, v61
v_cmp_ne_u32 vcc, 0, v58
s_cbranch_vccz pp_done{T}
s_add_u32 s63, s63, 1
s_cmp_ge_u32 s63, 0x8000
s_cbranch_scc1 pp_done{T}
s_sleep 4
buffer_load_dwordx4 v[68:71], v13, {srd(S_WS)}, 0 offen sc1
s_waitcnt vmcnt(0)
s_branch pp_spin{T}
pp_done{T}:""")
    def csp_loads():
        a(f"buffer_load_dwordx2 v[56:57], v14, {srd(S_WS)}, 0 offen sc1"); vm.issue("stats")
        a("v_lshlrev_b32 v58, 2, v0\nv_lshrrev_b32 v59, 4, v0\nv_mul_u32_u24 v59, 1280, v59\nv_and_b32 v60, 15, v0\nv_lshlrev_b32 v60, 2, v60\nv_add_u32 v59, v59, v60")
        for tq in range(16):
            if tq % 3 == 0: a(f"s_add_u32 s3, s94, {1280*tq}")
            a(f"buffer_load_dword v{32+tq}, v58, {srd(S_WS)}, s3 offen offset:{1280*(tq%3)} sc1"); vm.issue("csp")
        for q in range(4):
            a(f"s_add_u32 s3, s94, {5120*q}")
            a(f"buffer_load_dword v{48+q}, v59, {srd(S_WS)}, s3 offen offset:256 sc1"); vm.issue("csp")
    def tables():
        a(vm.wait("stats"))
        a("ds_write_b64 v15, v[56:57]")
        a(vm.wait("csp"))
        for k in range(4): a(f"v_pk_add_f32 v[{32+2*k}:{33+2*k}], v[{32+2*k}:{33+2*k}], v[{40+2*k}:{41+2*k}]")
        a("v_pk_add_f32 v[48:49], v[48:49], v[50:51]")
        for k in range(2): a(f"v_pk_add_f32 v[{32+2*k}:{33+2*k}], v[{32+2*k}:{33+2*k}], v[{36+2*k}:{37+2*k}]")
        a("v_add_f32 v20, v48, v49\nv_pk_add_f32 v[32:33], v[32:33], v[34:35]\nv_mov_b32 v58, v20")
        a("v_add_f32 v16, v32, v33\nv_permlane32_swap_b32 v20, v58\nv_add_f32 v20, v20, v58\nv_mov_b32 v58, v20\nv_permlane16_swap_b32 v20, v58\nv_add_f32 v20, v20, v58")
        for (x, t) in ((16, 60), (20, 66)):
            a(f"""v_cvt_pk_bf16_f32 v{t}, v{x}, v{x}
v_and_b32 v{t+2}, 0xffff0000, v{t}
v_sub_f32 v{x}, v{x}, v{t+2}
v_cvt_pk_bf16_f32 v{t+3}, v{x}, v{x}
v_and_b32 v{t+2}, 0xffff0000, v{t+3}
v_sub_f32 v{x}, v{x}, v{t+2}
v_cvt_pk_bf16_f32 v{t+1}, v{x}, v{x}
v_and_b32 v{t}, 0xffff, v{t}
v_or_b32 v{t}, v{t}, v{t+2}
v_and_b32 v{t+1}, 0xffff, v{t+1}""")
        a(f"""v_and_b32 v58, 15, v0
v_lshlrev_b32 v58, 3, v58
s_lshl_b32 s3, s47, 7
s_add_u32 s3, s3, {CST}
v_add_u32 v103, s3, v58
v_lshrrev_b32 v59, 4, v0
v_lshlrev_b32 v59, 9, v59
v_add_u32 v59, v59, v103
ds_write_b64 v59, v[60:61]
ds_write_b64 v103, v[66:67] offset:2048
s_waitcnt lgkmcnt(0)""")
    VCS = 103
    w2l = w2_loads(55)
    w2i = [0]
    def w2(n):
        for _ in range(n):
            if w2i[0] < len(w2l):
                for x in w2l[w2i[0]][1]: a(x)
                vm.issue(("w2", w2l[w2i[0]][0])); w2i[0] += 1
    FPV = 100
    def fp(k, r):
        if OPT.get("fp") and 0 <= r < 16:
            a(f"s_memtime s[64:65]\ns_waitcnt lgkmcnt(0)\nv_writelane_b32 v{FPV}, s64, {16*k + r}")

    SCHED = {
        0: {-1: "W0 X0 W1 X1", 0: "W2", 1: "W3 X2", 2: "W4 X3", 3: "W5 W6", 4: "W7 X4", 5: "W8 W9", 6: "W10 X5", 7: "W11", 8: "W12 X6", 9: "W13", 10: "W14 X7", 11: "W15"},
        1: {-1: "W0 X0 W1 X1", 0: "W2 X2", 1: "W3", 2: "W4 X3", 3: "W5", 4: "W6 X4", 5: "W7", 6: "W8 X5", 7: "W9", 8: "W10 X6", 9: "W11", 10: "W12 X7", 11: "W13", 12: "W14", 13: "W15"},
        2: {-1: "W0 X0 W1 X1", 0: "W2 X2", 1: "W3 W4", 2: "W5 X3", 3: "W6", 4: "W7 X4", 5: "W8", 6: "W9 X5", 7: "W10", 8: "W11 X6", 9: "W12 W13", 10: "W14 X7", 11: "W15"},
        3: {-1: "W0 X0 W1", 0: "X1 W2", 1: "W3 X2", 2: "W4 W5", 3: "X3 W6", 4: "W7", 5: "X4 W8", 6: "W9", 7: "X5 W10", 8: "W11", 9: "X6 W12", 10: "W13 W14", 11: "X7 W15"},
        4: {-1: "W0 X0 W1 X1", 0: "W2 X2", 1: "W3 W4", 2: "W5 X3", 3: "W6", 4: "W7 X4", 5: "W8", 6: "W9 X5", 7: "W10 W11", 8: "W12 X6", 9: "W13", 10: "W14 X7", 11: "W15"},
    }[OPT["dsch"]]
    sched = {k: [(o[0], int(o[1:])) for o in SCHED.get(k, "").split()] for k in range(-1, 16)}
    when = {o: k for k, ops in sched.items() for o in ops}
    for i in range(16):
        assert ("W", i) in when and (i < 5 or when[("W", i)] >= i - 4) and when[("W", i)] <= i - 1, i
    for g in range(8):
        assert ("X", g) in when and (g < 3 or when[("X", g)] >= 2 * g - 4) and when[("X", g)] <= 2 * g - 1, g
    def do(ops):
        for (k, i) in ops: (IW if k == "W" else IX)(i)
    def land(s):
        w = vm.wait(("W", s), ("X", s >> 1))
        if w: a(w)
    karg_wait(a)
    st("karg")
    do(sched[-1])
    nonce_load(a)
    st("dma_issued")
    prod_late_setup(a, T)
    if A_:
        a(f"""v_and_b32 v58, 15, v0
v_lshrrev_b32 v59, 1, v58
v_lshrrev_b32 v60, 4, v0
v_xor_b32 v59, v59, v60
v_lshlrev_b32 v59, 4, v59
v_lshlrev_b32 v58, 7, v58
v_add_u32 v58, v58, v59
v_add_u32 v11, {XRING + 128*128}, v58
v_xor_b32 v12, 64, v11""")
        for r in range(24, 32): a(f"v_mov_b32 v{r}, 0")
    if OPT["pprio"]: a(f"s_setprio {OPT['pprio']}")
    a("s_waitcnt lgkmcnt(0)")
    land(0)
    a("s_barrier")
    st("Pm1")
    W2N = {12: OPT["w12"], 13: OPT["w13"], 14: OPT["w14"], 15: OPT["w15"], 11: OPT.get("w11", 0)}
    halo = A_ and not OPT["nohalo"]
    for s in range(16):
        fp(0, s)
        if s == OPT["fs"]: raise_flags()
        if s == OPT["gp"]: gpoll_issue()
        if halo and s >= 1 and not OPT["hlate"]: halo_mfma(s - 1)
        do(sched[s])
        fp(1, s)
        if halo and s >= 1 and OPT["hlate"]: halo_mfma(s - 1)
        VRD(s)
        if s == OPT["pkl"]: pack_loads()
        if s == OPT["pk0"]: pack_do(0)
        if s == OPT["pk1"]: pack_do(1)
        if s == OPT["csp"]: csp_loads()
        w2(W2N.get(s, 0))
        if s == OPT["tab"]:
            tables()
            st("tables")
        fp(2, s)
        if s == OPT["fs"] - 1: drain_pub()
        if s == OPT["gp"]:
            gpoll_check()
            st("gpoll")
        if s < 15: land(s + 1)
        a("s_waitcnt lgkmcnt(0)")
        fp(3, s)
        a("s_barrier")
        if s in (0, 3, 7, 11): st(f"P{s}")
    assert OPT["pk1"] < OPT["fs"] and OPT["pk0"] < OPT["fs"] and OPT["gp"] < OPT["csp"] < OPT["tab"] <= 15 and NCS < OPT["fs"]
    if halo: halo_mfma(15)
    if OPT.get("fp"):
        a(f"""s_lshl_b32 s3, s2, 3
s_add_u32 s3, s3, s46
s_lshl_b32 s3, s3, 8
s_add_u32 s3, s3, {gen1.PROF_OFF + 2 * (256 * 8 * 256)}
v_lshlrev_b32 v58, 2, v0
s_mov_b32 s{S_WS+2}, {gen1.PROF_OFF + (4 << 20)}
buffer_store_dword v{FPV}, v58, {srd(S_WS)}, s3 offen
s_mov_b32 s{S_WS+2}, {WS_USED}""")
    w2(99)
    st("P15")
    if A_:
        a(f"""ds_read_b64 v[60:61], v{VCS} offset:512
ds_read_b64 v[62:63], v{VCS} offset:1024
v_and_b32 v59, 15, v0
v_lshlrev_b32 v59, 3, v59
v_add_u32 v59, {RST + 128*8}, v59
ds_read_b64 v[64:65], v59
v_cmp_gt_u32 vcc, 16, v0
v_bfe_u32 v68, v0, 4, 1
v_mul_u32_u24 v68, 2560, v68
v_bfe_u32 v69, v0, 5, 1
v_bfe_u32 v70, v0, 3, 1
v_and_b32 v71, 7, v0
s_mul_i32 s3, s47, {REG2}
s_waitcnt lgkmcnt(0)
v_cndmask_b32 v66, 0, v64, vcc
v_and_b32 v67, 0xffff, v66
v_mfma_f32_16x16x16_bf16 v[24:27], v[60:61], v[66:67], v[24:27]
v_mfma_f32_16x16x16_bf16 v[28:31], v[62:63], v[66:67], v[28:31]
v_lshlrev_b32 v72, 3, v69
v_mul_u32_u24 v73, 1280, v70
v_lshlrev_b32 v74, 4, v71
v_add_u32 v72, v72, v68
v_add_u32 v73, v73, v74
v_add_u32 v72, v72, v73
v_add_u32 v72, s3, v72
v_mul_u32_u24 v73, 1280, v69
v_mul_u32_u24 v74, 640, v70
v_lshlrev_b32 v75, 3, v71
v_add_u32 v73, v73, v68
v_add_u32 v74, v74, v75
v_add_u32 v73, v73, v74
v_add_u32 v73, s3, v73""")
        for q in range(8): a(f"v_mul_f32 v{24+q}, v{24+q}, v65")
        a(f"""v_cvt_pk_bf16_f32 v60, v24, v25
v_cvt_pk_bf16_f32 v61, v26, v27
v_cvt_pk_bf16_f32 v62, v28, v29
v_cvt_pk_bf16_f32 v63, v30, v31
ds_write_b64 v72, v[60:61] offset:{KOFF}
ds_write_b64 v73, v[62:63] offset:{VOFF}
s_waitcnt lgkmcnt(0)
s_branch attn""")
    else:
        a("s_branch pub")

def cons_setup(a):
    a("""s_lshr_b32 s49, s47, 1
s_and_b32 s47, s47, 1""")
    a("s_cmp_lg_u32 s48, 0\ns_cbranch_scc1 cs_B")
    a(f"""s_lshl_b32 s83, s49, 6
s_mov_b32 s84, 32
s_add_u32 s85, s83, 4096
s_mov_b32 s86, 32
s_add_u32 s87, s83, 8192
s_mov_b32 s88, 32
s_add_u32 s89, s83, {3*4096}
s_mov_b32 s90, {4096+32}
s_add_u32 s91, s83, {3*4096+32}
s_mov_b32 s92, {4096-32}
s_lshl_b32 s66, s51, 2
s_lshl_b32 s3, s49, 1
s_add_u32 s66, s66, s3
s_add_u32 s66, s66, 32
s_add_u32 s67, s66, 1
s_branch cs_D
cs_B:
s_lshr_b32 s60, s72, 4
s_add_u32 s60, s60, 32
s_lshr_b32 s61, s73, 4
s_add_u32 s61, s61, 32
s_cmp_lg_u32 s49, 0
s_cbranch_scc1 cs_B1""")
    def tiles(lst):
        for j, (sa, ca, sb, cb) in enumerate(lst):
            t0 = sa * 4096 + 32 * ca; t1 = sb * 4096 + 32 * cb
            a(f"s_mov_b32 s{83+2*j}, {t0}\ns_mov_b32 s{84+2*j}, {t1 - t0}")
    tiles([(0,0,2,1),(0,1,2,0),(0,2,2,3),(0,3,2,2),(1,0,3,1)])
    a("s_mov_b32 s63, s60\ns_add_u32 s64, s60, 1\ns_add_u32 s65, s60, 2\ns_add_u32 s66, s60, 3\ns_add_u32 s67, s60, 4\ns_branch cs_D\ncs_B1:")
    tiles([(1,1,3,0),(1,2,3,3),(1,3,3,2),(4,0,4,3),(4,1,4,2)])
    a("s_add_u32 s63, s60, 5\ns_add_u32 s64, s60, 6\ns_add_u32 s65, s60, 7\ns_mov_b32 s66, s61\ns_add_u32 s67, s61, 1\ncs_D:")
    a(f"""v_lshrrev_b32 v32, 5, v0
v_bfe_u32 v33, v0, 2, 2
v_lshlrev_b32 v34, 3, v32
v_add_u32 v34, v34, v33
v_lshlrev_b32 v34, 7, v34
v_and_b32 v35, 3, v0
v_lshlrev_b32 v35, 3, v35
v_add_u32 v34, v34, v35
v_and_b32 v35, 2, v33
v_xor_b32 v35, v35, v32
v_lshlrev_b32 v35, 5, v35
v_bfe_u32 v36, v0, 4, 1
v_and_b32 v37, 15, v0
v_lshlrev_b32 v37, 3, v37
v_add_u32 v37, {CST}, v37""")
    for j in range(5):
        a(f"""v_mul_lo_u32 v38, v36, s{84+2*j}
v_add_u32 v38, s{83+2*j}, v38
v_xor_b32 v39, v38, v35
v_add_u32 v{VT[j]}, v39, v34
v_lshrrev_b32 v39, 12, v38
v_lshlrev_b32 v39, 9, v39
v_and_b32 v38, 0x60, v38
v_lshlrev_b32 v38, 2, v38
v_add_u32 v38, v38, v39
v_add_u32 v{VC[j]}, v38, v37""")
    a(f"""v_and_b32 v33, 31, v0
s_lshl_b32 s3, s47, 6
v_add_u32 v33, s3, v33
v_lshlrev_b32 v{VR}, 3, v33
v_add_u32 v{VR}, {RST}, v{VR}
v_bfe_u32 v34, v33, 1, 3
v_xor_b32 v34, v34, v32
v_lshlrev_b32 v34, 4, v34
v_lshlrev_b32 v33, 7, v33
v_add_u32 v33, v33, v34
v_add_u32 v{VX[0]}, {XRING}, v33
v_xor_b32 v{VX[1]}, 32, v{VX[0]}
v_xor_b32 v{VX[2]}, 64, v{VX[0]}
v_xor_b32 v{VX[3]}, 96, v{VX[0]}
v_lshlrev_b32 v{VL16}, 4, v0""")

def stats_code(a):
    for i in range(8): a(f"v_lshlrev_b32 v{32+i}, 16, v{24+i}\nv_and_b32 v{24+i}, 0xffff0000, v{24+i}")
    prs = [32, 34, 36, 38, 24, 26, 28, 30]
    def pk(op, d, x, y, *rest): a(f"v_pk_{op}_f32 v[{d}:{d+1}], v[{x}:{x+1}], v[{y}:{y+1}]" + "".join(rest))
    pk("add", 40, 32, 34); pk("add", 42, 36, 38); pk("add", 44, 24, 26); pk("add", 46, 28, 30)
    pk("add", 40, 40, 42); pk("add", 44, 44, 46); pk("add", 40, 40, 44)
    a("v_add_f32 v40, v40, v41")
    def allred(r, t):
        for m in ("quad_perm:[1,0,3,2]", "quad_perm:[2,3,0,1]", "row_half_mirror", "row_mirror"):
            a(f"v_add_f32_dpp v{r}, v{r}, v{r} {m} {DPPM}")
        a(f"v_mov_b32 v{t}, v{r}\nv_permlane16_swap_b32 v{r}, v{t}\nv_add_f32 v{r}, v{r}, v{t}")
    allred(40, 42)
    a("v_mul_f32 v40, 0x3b000000, v40")
    for pr in prs:
        a(f"v_pk_add_f32 v[{pr}:{pr+1}], v[{pr}:{pr+1}], v[40:41] op_sel:[0,0] op_sel_hi:[1,0] neg_lo:[0,1] neg_hi:[0,1]")
    a("v_pk_mul_f32 v[42:43], v[32:33], v[32:33]\nv_pk_mul_f32 v[44:45], v[34:35], v[34:35]")
    for k in range(2, 8):
        d = 42 + 2 * (k & 1); pr = prs[k]
        a(f"v_pk_fma_f32 v[{d}:{d+1}], v[{pr}:{pr+1}], v[{pr}:{pr+1}], v[{d}:{d+1}]")
    a("v_pk_add_f32 v[42:43], v[42:43], v[44:45]\nv_add_f32 v42, v42, v43")
    allred(42, 44)
    a(f"""v_mul_f32 v89, 0x3b000000, v42
v_cvt_pk_bf16_f32 v88, v40, v40
v_cvt_pk_bf16_f32 v89, v89, v89
v_xor_b32 v88, 0x80008000, v88
v_and_b32 v89, 0xffff0000, v89
v_add_f32 v89, 0x3727c5ac, v89
v_cvt_pk_bf16_f32 v89, v89, v89
v_and_b32 v89, 0xffff0000, v89
v_sqrt_f32 v89, v89
v_lshrrev_b32 v90, 5, v0
v_lshlrev_b32 v90, 7, v90
v_cvt_pk_bf16_f32 v89, v89, v89
v_and_b32 v89, 0xffff0000, v89
v_rcp_f32 v89, v89
s_mov_b32 exec_lo, 1
s_mov_b32 exec_hi, 1
buffer_store_dwordx2 v[88:89], v90, {srd(S_WS)}, s45 offen sc1
s_mov_b64 exec, -1""")

def cons_reads(m):
    st = m & 1; s = m >> 1; half = m & 1; g = m >> 2; xs = m & 3; slot = s % 5
    def fa(j):
        v, o = (VT[j], slot * WST) if slot < 4 else (VT[j], 0)
        pre = []
        if slot == 4 and half == 0: pre = [f"v_add_u32 v{VT[j]}, {4*WST}, v{VT[j]}"]
        if slot == 0 and half == 0 and s > 0: pre = [f"v_subrev_u32 v{VT[j]}, {4*WST}, v{VT[j]}"]
        r = [f"ds_read_b64_tr_b16 v[{FA[st]+4*j+2*i}:{FA[st]+4*j+2*i+1}], v{v} offset:{o + 2048*half + 512*i}" for i in range(2)]
        if pre: r[0] = pre[0] + "\n" + r[0]
        return r
    def fb(rt):
        return [f"ds_read_b128 v[{FB[st]+4*rt}:{FB[st]+4*rt+3}], v{VX[xs]} offset:{(g % 3)*XST + 4096*rt}"]
    return fb(0) + fa(0) + fb(1) + fa(1) + fa(2) + fa(3) + fa(4)

def table_reads():
    r = [f"ds_read_b64 v[{32+2*j}:{33+2*j}], v{VC[j]}" for j in range(5)]
    r += [f"ds_read_b64 v[{42+2*rt}:{43+2*rt}], v{VR} offset:{256*rt}" for rt in range(2)]
    return r

def ffn_tile(rt, j):
    b = ACC(rt, j); L = []
    for q in range(4): L.append(f"v_pk_mul_f32 v[{b+2*q}:{b+2*q+1}], v[{b+2*q}:{b+2*q+1}], v[{b+8+2*q}:{b+9+2*q}]")
    for q in range(4): L.append(f"v_pk_mul_f32 v[{b+2*q}:{b+2*q+1}], v[{b+2*q}:{b+2*q+1}], v[50:51] op_sel:[0,{rt}] op_sel_hi:[1,{rt}]")
    for q in range(4): L.append(f"v_cvt_pk_bf16_f32 v{b+8+q}, v{b+2*q}, v{b+2*q+1}")
    sc = " sc1" if OPT["fuse"] else ""
    L += [f"s_add_u32 s3, s{60+rt}, s{63+j}", "s_lshl_b32 s3, s3, 10", f"s_add_u32 s3, s3, {OH}",
          f"buffer_store_dwordx4 v[{b+8}:{b+11}], v{VL16}, {srd(S_WS)}, s3 offen{sc}"]
    return L

def code_prefetch(a):
    a("""s_getpc_b64 s[60:61]
pf_base:
s_lshl_b32 s3, s46, 14
v_lshlrev_b32 v88, 7, v0
v_add_u32 v88, s3, v88
v_add_u32 v90, 0x2000, v88
v_min_u32 v88, k1_done - pf_base, v88
v_min_u32 v90, k1_done - pf_base, v90
v_mov_b32 v89, s61
v_mov_b32 v91, s61
v_add_co_u32 v88, vcc, s60, v88
v_addc_co_u32 v89, vcc, 0, v89, vcc
v_add_co_u32 v90, vcc, s60, v90
v_addc_co_u32 v91, vcc, 0, v91, vcc
global_load_dword v92, v[88:89], off
global_load_dword v93, v[90:91], off""")

def consumer(a, st):
    if OPT["pf"]: code_prefetch(a)
    a("""s_lshl_b32 s60, s50, 7
s_lshl_b32 s61, s52, 3
s_add_u32 s60, s60, s61
s_lshl_b32 s61, s47, 1
s_add_u32 s60, s60, s61
v_lshrrev_b32 v32, 5, v0
v_lshlrev_b32 v32, 10, v32
v_and_b32 v33, 31, v0
v_lshlrev_b32 v33, 4, v33
v_add_u32 v32, v32, v33
s_lshr_b32 s45, s60, 5
s_lshl_b32 s45, s45, 5
s_and_b32 s61, s60, 31
s_lshr_b32 s61, s61, 1
s_add_u32 s45, s45, s61
s_lshl_b32 s45, s45, 3
s_lshl_b32 s44, s60, 10""")
    karg_wait(a)
    a(f"buffer_load_dwordx4 v[24:27], v32, {srd(S_X)}, s44 offen\nbuffer_load_dwordx4 v[28:31], v32, {srd(S_X)}, s44 offen offset:512")
    nonce_load(a)
    cons_setup(a)
    p2_scalars(a)
    st("setup")
    a("s_waitcnt vmcnt(0)")
    st("rows")
    stats_code(a)
    st("stats")
    a("s_barrier")
    st("Pm1")
    if OPT["prio"]: a(f"s_setprio {OPT['prio']}")
    for x in cons_reads(0): a(x)
    for n in range(32):
        cur = n & 1
        rd = cons_reads(n + 1) if n < 31 else table_reads()
        mf = []
        for j in range(5):
            for rt in range(2):
                b = ACC(rt, j)
                c = f"v[{b}:{b+15}]" if n else "0"
                mf.append(f"v_mfma_f32_32x32x16_bf16 v[{b}:{b+15}], v[{FA[cur]+4*j}:{FA[cur]+4*j+3}], v[{FB[cur]+4*rt}:{FB[cur]+4*rt+3}], {c}")
        a("s_waitcnt lgkmcnt(0)")
        if OPT.get("fp") and n >= 2 and n % 2 == 0:
            a(f"v_writelane_b32 v1, s90, {(n-2)//2}\nv_writelane_b32 v1, s92, {16 + (n-2)//2}")
        k = 0
        if n & 1:
            if n == 2 * OPT["fs"] - 1: a("s_waitcnt vmcnt(0)")
            for _ in range(OPT["nb"]): a(mf[k]); k += 1
            if OPT.get("fp"): a("s_memtime s[90:91]")
            a("s_barrier")
            if OPT.get("fp"): a("s_memtime s[92:93]")
        else:
            a(mf[k]); k += 1
        per = OPT['per']
        i = 0
        while k < 10:
            for x in rd[i:i + per]: a(x)
            i += per
            a(mf[k]); k += 1
        for x in rd[i:]: a(x)
        if n in (1, 7, 15, 23): st(f"s{n}")
    if OPT.get("fp"):
        a(f"""s_waitcnt lgkmcnt(0)
v_writelane_b32 v1, s90, 15
v_writelane_b32 v1, s92, 31
s_lshl_b32 s3, s2, 3
s_add_u32 s3, s3, s46
s_lshl_b32 s3, s3, 8
s_add_u32 s3, s3, {gen1.PROF_OFF + 2 * (256 * 8 * 256)}
v_lshlrev_b32 v88, 2, v0
s_mov_b32 s{S_WS+2}, {gen1.PROF_OFF + (4 << 20)}
buffer_store_dword v1, v88, {srd(S_WS)}, s3 offen
s_mov_b32 s{S_WS+2}, {WS_USED}""")
    st("loop_end")
    if OPT["prio"]: a("s_setprio 0")
    a("""s_waitcnt lgkmcnt(0)
v_cmp_gt_u32 vcc, 32, v0
v_cndmask_b32 v46, 0, v42, vcc
v_cndmask_b32 v48, 0, v44, vcc
v_and_b32 v47, 0xffff, v46
v_and_b32 v49, 0xffff, v48
v_mul_f32 v50, v43, v43
v_mul_f32 v51, v45, v45
s_lshl_b32 s60, s50, 2
s_lshl_b32 s3, s47, 1
s_add_u32 s60, s60, s3
s_mul_i32 s60, s60, 144
s_add_u32 s61, s60, 144""")
    for j in range(5):
        for rt in range(2):
            b = ACC(rt, j)
            a(f"v_mfma_f32_32x32x8_bf16 v[{b}:{b+15}], v[{32+2*j}:{33+2*j}], v[{46+2*rt}:{47+2*rt}], v[{b}:{b+15}]")
    a("s_cmp_lg_u32 s48, 0\ns_cbranch_scc1 ep_B")
    a(f"""v_lshrrev_b32 v24, 5, v0
v_mul_u32_u24 v24, 2560, v24
v_bfe_u32 v25, v0, 4, 1
v_and_b32 v26, 15, v0
s_mul_i32 s3, s49, {2*REG2}
v_mul_u32_u24 v27, 1280, v25
v_lshlrev_b32 v28, 4, v26
v_add_u32 v27, v27, v24
v_add_u32 v27, v27, v28
s_lshl_b32 s62, s47, 9
s_add_u32 s62, s62, s3
s_add_u32 s62, s62, 128
v_add_u32 v27, s62, v27
v_mul_u32_u24 v28, 640, v25
v_lshlrev_b32 v29, 3, v26
v_add_u32 v28, v28, v24
v_add_u32 v28, v28, v29
s_lshl_b32 s62, s47, 8
s_add_u32 s62, s62, s3
s_add_u32 s62, s62, {VOFF + 64}
v_add_u32 v28, s62, v28""")
    w2l = w2_loads(VL16) if OPT["fuse"] else []
    w2i = [0]
    def w2_upto(freed_tiles, n):
        for _ in range(n):
            if w2i[0] < len(w2l) and (w2l[w2i[0]][0] >> 1) < freed_tiles:
                for x in w2l[w2i[0]][1]: a(x)
                w2i[0] += 1
    nt_done = 0
    for j in range(3):
        for rt in range(2):
            b = ACC(rt, j)
            for q in range(8):
                a(f"v_pk_mul_f32 v[{b+2*q}:{b+2*q+1}], v[{b+2*q}:{b+2*q+1}], v[{42+2*rt}:{43+2*rt}] op_sel:[0,1] op_sel_hi:[1,1]")
            for q in range(8): a(f"v_cvt_pk_bf16_f32 v{b+q}, v{b+2*q}, v{b+2*q+1}")
            for hh in range(2):
                if j < 2:
                    a(f"ds_write_b128 v27, v[{b+4*hh}:{b+4*hh+3}] offset:{(QOFF, KOFF)[j] + REG2*hh + 256*rt}")
                else:
                    for mm in range(2):
                        a(f"ds_write_b64 v28, v[{b+4*hh+2*mm}:{b+4*hh+2*mm+1}] offset:{REG2*hh + 1280*mm + 128*rt}")
            nt_done += 1
            w2_upto(nt_done - 1, 2)
    for j in (3, 4):
        for rt in range(2):
            for x in ffn_tile(rt, j): a(x)
            nt_done += 1
            w2_upto(nt_done - 1, 2)
    a("s_waitcnt lgkmcnt(0)")
    st("staged")
    w2_upto(9, OPT.get("w2a", 8))
    return w2l, w2i

def attention(a, st, tail_loads):
    Q = 24; K = 32; V = 56; S = [80, 84, 88]; T = 92; PP = 24
    VA = 20; VB = 21
    tl = list(tail_loads or [])
    cnt = [0]
    def tail(n):
        if not tl: return
        cnt[0] += 1
        a(f"s_cmp_lt_u32 s46, 4\ns_cbranch_scc0 at_tl{cnt[0]}")
        for _ in range(n):
            if tl:
                for x in tl.pop(0)[1]: a(x)
        a(f"at_tl{cnt[0]}:")
    a(f"""attn:
s_barrier
buffer_load_dword v18, off, {srd(S_WS)}, s87 sc1
s_and_b32 s47, s46, 3
s_lshr_b32 s49, s46, 2
v_lshrrev_b32 v1, 5, v0
s_lshl_b32 s3, s49, 1
v_add_u32 v1, s3, v1
v_lshlrev_b32 v{VA}, 4, v1
v_and_b32 v{T}, 15, v0
v_add_u32 v{VA}, v{VA}, v{T}
v_bfe_u32 v{T+1}, v0, 4, 1
v_mul_u32_u24 v{T+2}, 1280, v{T+1}
v_lshlrev_b32 v{VB}, 4, v{VA}
v_add_u32 v{VB}, v{VB}, v{T+2}
s_mul_i32 s3, s47, {REG2}
v_add_u32 v{VB}, s3, v{VB}""")
    a(f"ds_read_b128 v[{Q}:{Q+3}], v{VB} offset:{QOFF + 128}\nds_read_b128 v[{Q+4}:{Q+7}], v{VB} offset:{QOFF + 128 + 2560}")
    for kb in range(3):
        a(f"ds_read_b128 v[{K+8*kb}:{K+8*kb+3}], v{VB} offset:{KOFF + 64*kb}\nds_read_b128 v[{K+8*kb+4}:{K+8*kb+7}], v{VB} offset:{KOFF + 64*kb + 2560}")
    a(f"""v_lshlrev_b32 v1, 4, v1
v_and_b32 v{T}, 3, v0
v_lshlrev_b32 v{T}, 2, v{T}
v_add_u32 v1, v1, v{T}
v_bfe_u32 v{T}, v0, 2, 2
v_add_u32 v1, v1, v{T}
v_lshlrev_b32 v1, 3, v1
v_mul_u32_u24 v{T}, 640, v{T+1}
v_add_u32 v1, v1, v{T}
s_add_u32 s3, s3, {VOFF}
v_add_u32 v1, s3, v1""")
    for kb in range(3):
        for m in range(4):
            d = V + 8 * kb + 2 * m
            a(f"ds_read_b64_tr_b16 v[{d}:{d+1}], v1 offset:{1280*m + 32*kb}")
    a(f"""v_mov_b32 v{T}, 0
v_mov_b32 v{T+1}, 0
s_cmp_lg_u32 s50, 0
s_cbranch_scc1 at_nomask
v_mov_b32 v{T+2}, 0xf149f2ca
v_cmp_gt_u32 vcc, 8, v{VA}
v_cndmask_b32 v{T}, 0, v{T+2}, vcc
v_cmp_gt_u32 vcc, 4, v{VA}
v_cndmask_b32 v{T+1}, 0, v{T+2}, vcc
at_nomask:""")
    for i in range(4): a(f"v_mov_b32 v{S[0]+i}, v{T}\nv_mov_b32 v{S[1]+i}, v{T+1}")
    tail(OPT["tl0"])
    a("s_waitcnt lgkmcnt(12)")
    for ds in range(4):
        for kb in range(3):
            c = f"v[{S[kb]}:{S[kb]+3}]" if not (kb == 2 and ds == 0) else "0"
            a(f"v_mfma_f32_4x4x4_16b_bf16 v[{S[kb]}:{S[kb]+3}], v[{K+8*kb+2*ds}:{K+8*kb+2*ds+1}], v[{Q+2*ds}:{Q+2*ds+1}], {c}")
    a("""s_mov_b32 s62, 0x11111111
s_mov_b32 s63, 0x11111111
s_mov_b32 s64, 0x33333333
s_mov_b32 s65, 0x33333333
s_mov_b32 s66, 0x77777777
s_mov_b32 s67, 0x77777777
s_mov_b32 s61, 0x3eb8aa3b""")
    tail(OPT["tl1"])
    a(f"v_cndmask_b32 v{S[2]+1}, v{S[2]+1}, v{S[0]+1}, s[62:63]")
    a(f"v_cndmask_b32 v{S[2]+2}, v{S[2]+2}, v{S[0]+2}, s[64:65]")
    a(f"v_cndmask_b32 v{S[2]+3}, v{S[2]+3}, v{S[0]+3}, s[66:67]")
    p = [S[2] + i for i in range(4)] + [S[1] + i for i in range(4)]
    t0, t1, t2, t3 = T, T + 1, T + 2, T + 3
    a(f"v_max3_f32 v{t0}, v{p[0]}, v{p[1]}, v{p[2]}\nv_max3_f32 v{t1}, v{p[3]}, v{p[4]}, v{p[5]}")
    a(f"v_max3_f32 v{t0}, v{t0}, v{p[6]}, v{p[7]}\nv_max_f32 v{t0}, v{t0}, v{t1}\nv_mul_f32 v{t0}, s61, v{t0}")
    for x in p: a(f"v_fma_f32 v{x}, s61, v{x}, -v{t0}")
    for x in p: a(f"v_exp_f32 v{x}, v{x}")
    tail(OPT["tl2"])
    a(f"v_add_f32 v{t1}, v{p[0]}, v{p[1]}\nv_add_f32 v{t2}, v{p[2]}, v{p[3]}\nv_add_f32 v{t3}, v{p[4]}, v{p[5]}\nv_add_f32 v{t0}, v{p[6]}, v{p[7]}")
    a(f"v_add_f32 v{t1}, v{t1}, v{t2}\nv_add_f32 v{t0}, v{t0}, v{t3}\nv_add_f32 v{t0}, v{t0}, v{t1}\nv_rcp_f32 v{t0}, v{t0}")
    for x in p: a(f"v_mul_f32 v{x}, v{x}, v{t0}")
    P0, P1, P2, P3, P4, P5 = [PP + i for i in range(6)]
    a(f"""v_cvt_pk_bf16_f32 v{P0}, v{p[0]}, v{p[1]}
v_cvt_pk_bf16_f32 v{P1}, v{p[2]}, v{p[3]}
v_cvt_pk_bf16_f32 v{P2}, v{p[4]}, v{p[5]}
v_cvt_pk_bf16_f32 v{P3}, v{p[6]}, v{p[7]}
v_mov_b32 v{t0}, 0xffff0000
v_cndmask_b32 v{t1}, 0, v{t0}, s[62:63]
v_cndmask_b32 v{t2}, 0, v{t0}, s[66:67]
v_mov_b32 v{t0}, 0xffff
v_cndmask_b32 v{t3}, 0, v{t0}, s[64:65]
v_or_b32 v{t2}, v{t2}, v{t3}
v_and_b32 v{P4}, v{P0}, v{t1}
v_and_b32 v{P5}, v{P1}, v{t2}
v_xor_b32 v{P0}, v{P0}, v{P4}
v_xor_b32 v{P1}, v{P1}, v{P5}
s_waitcnt lgkmcnt(0)""")
    Pk = [P4, P2, P0]
    tail(99)
    O = [K, K + 4, K + 8, K + 12]
    for kb in range(3):
        for m in range(4):
            c = f"v[{O[m]}:{O[m]+3}]" if kb else "0"
            d = V + 8 * kb + 2 * m
            a(f"v_mfma_f32_4x4x4_16b_bf16 v[{O[m]}:{O[m]+3}], v[{d}:{d+1}], v[{Pk[kb]}:{Pk[kb]+1}], {c}")
    Qo = 48
    for m in range(4):
        a(f"v_cvt_pk_bf16_f32 v{Qo+2*m}, v{O[m]}, v{O[m]+1}\nv_cvt_pk_bf16_f32 v{Qo+2*m+1}, v{O[m]+2}, v{O[m]+3}")
    sc = " sc1" if OPT["fuse"] else ""
    a(f"""v_lshrrev_b32 v{t0}, 5, v0
s_mov_b32 s3, {OH_TILE}
v_mul_lo_u32 v{t0}, v{t0}, s3
v_and_b32 v{t1}, 31, v0
v_lshlrev_b32 v{t1}, 4, v{t1}
v_add_u32 v{t0}, v{t0}, v{t1}
s_lshl_b32 s3, s50, 2
s_lshl_b32 s61, s49, 1
s_add_u32 s3, s3, s61
s_mul_i32 s3, s3, 144
s_lshl_b32 s61, s51, 2
s_add_u32 s3, s3, s61
s_add_u32 s3, s3, s47
s_lshl_b32 s3, s3, 10
s_add_u32 s3, s3, {OH}
buffer_store_dwordx4 v[{Qo}:{Qo+3}], v{t0}, {srd(S_WS)}, s3 offen{sc}
buffer_store_dwordx4 v[{Qo+4}:{Qo+7}], v{t0}, {srd(S_WS)}, s3 offen offset:512{sc}""")
    if OPT["fuse"]:
        st("attn_done")
        a("s_waitcnt vmcnt(2)\ns_branch p2_chk")
    else:
        a("s_branch p1_done")

RW = 20480; RT = 5120; RQ = 1280; RH = 640
def phase2(a, st):
    ws = srd(S_WS)
    def publish(tag, sreg):
        a(f"""s_cmp_lg_u32 s46, 4
s_cbranch_scc1 p2_np{tag}
s_mov_b64 exec, 1
v_mov_b32 v20, s{sreg}
s_lshl_b32 s3, s50, 4
s_add_u32 s3, s3, s52
s_lshl_b32 s3, s3, 7
s_add_u32 s3, s3, {FLG2}
buffer_store_dword v20, off, {ws}, s3 sc1
s_mov_b64 exec, -1
p2_np{tag}:""")
    a("pub:\ns_barrier\ns_add_u32 s61, s76, 1")
    publish("B", 61)
    a(f"buffer_load_dword v18, off, {ws}, s87 sc1\ns_waitcnt vmcnt(0)")
    a(f"""p2_chk:
s_add_u32 s76, s76, 1
v_lshlrev_b32 v22, 4, v0
v_add_u32 v21, {OH_TILE}, v22
s_mov_b32 s60, 0""")
    def spin(tag, sreg, vreg):
        a(f"""p2_spin{tag}:
v_cmp_eq_u32 vcc, s76, v{vreg}
s_cbranch_vccnz p2_ok{tag}
s_add_u32 s60, s60, 1
s_cmp_ge_u32 s60, 0x8000
s_cbranch_scc1 p2_ok{tag}
s_sleep 2
buffer_load_dword v{vreg}, off, {ws}, s{sreg} sc1
s_waitcnt vmcnt(0)
s_branch p2_spin{tag}
p2_ok{tag}:""")
    spin("B", 87, 18)
    st("pollB")
    if OPT["p2prio"]: a(f"s_setprio {OPT['p2prio']}")
    vm = VM()
    free = list(OPT.get("ring0", [96, 104, 88, 12, 2]))
    slot = {}
    nxt = [0]
    lastso = [None]
    def issue(limit):
        while nxt[0] < limit and free:
            i = nxt[0]; nxt[0] += 1
            for x in step_off(i, 10, 84, 86, 89): a(x)
            r = free.pop(0); slot[i] = r
            for rt in range(2):
                a(f"buffer_load_dwordx4 v[{r+4*rt}:{r+4*rt+3}], v{22-rt}, {ws}, s89 offen sc1"); vm.issue(("L", i))
    issue(10)
    st("iss0")
    a(f"s_cmp_lg_u32 s48, 0\ns_cbranch_scc1 p2_nopub\ns_waitcnt vmcnt({len(vm.q)})\ns_barrier")
    publish("A", 76)
    a("p2_nopub:")
    st("pub")
    RES = None
    okA = False
    for i in range(18):
        a(vm.wait(("L", i)))
        if OPT.get("x2") and i in (0, 1, 2): st(f"L{i}")
        if i == OPT["chkA"]:
            a("s_mov_b32 s60, 0")
            spin("A", 88, 20)
            st("pollA")
            okA = True
            issue(18)
        w = W2R(i); o = slot[i]
        for rt in range(2):
            for nt in range(2):
                c = ACC2 + 16 * (2 * rt + nt)
                cc = f"v[{c}:{c+15}]" if i else "0"
                a(f"v_mfma_f32_32x32x16_bf16 v[{c}:{c+15}], v[{w+4*nt}:{w+4*nt+3}], v[{o+4*rt}:{o+4*rt+3}], {cc}")
        free += [o, w]
        if i == 0:
            a(f"buffer_load_dword v20, off, {ws}, s88 sc1"); vm.issue("pollA")
        issue(18 if okA else 10)
        if nxt[0] == 18 and RES is None and free:
            RES = free.pop(0)
            a(f"""s_and_b32 s60, s46, 3
s_lshl_b32 s60, s60, 3
v_and_b32 v10, 7, v0
v_add_u32 v10, s60, v10
v_and_b32 v11, 15, v10
v_lshlrev_b32 v11, 1, v11
v_lshrrev_b32 v1, 4, v10
v_add_u32 v11, v11, v1
s_lshr_b32 s61, s46, 2
s_lshl_b32 s61, s61, 5
s_lshl_b32 s62, s78, 6
s_add_u32 s61, s61, s62
v_add_u32 v11, s61, v11
v_lshlrev_b32 v11, 10, v11
v_bfe_u32 v1, v0, 3, 2
v_lshlrev_b32 v1, 5, v1
v_add_u32 v11, v11, v1
v_lshrrev_b32 v1, 5, v0
v_lshlrev_b32 v1, 4, v1
v_add_u32 v11, v11, v1
s_lshl_b32 s62, s77, 7
v_add_u32 v11, s62, v11
buffer_load_dwordx4 v[{RES}:{RES+3}], v11, {srd(S_X)}, 0 offen""")
            vm.issue("res")
            a(f"""v_lshlrev_b32 v10, 4, v10
v_lshrrev_b32 v1, 5, v0
v_mul_u32_u24 v1, {4*RW}, v1
v_add_u32 v10, v10, v1
v_bfe_u32 v1, v0, 4, 1
v_mul_u32_u24 v1, {RQ}, v1
v_add_u32 v10, v10, v1
v_bfe_u32 v1, v0, 3, 1
v_mul_u32_u24 v1, {RH}, v1
v_add_u32 v10, v10, v1
s_lshr_b32 s61, s46, 2
s_mul_i32 s61, s61, {2*RT}
v_add_u32 v10, s61, v10""")
            a(f"""v_and_b32 v20, 31, v0
v_lshlrev_b32 v20, 4, v20
v_lshrrev_b32 v1, 5, v0
v_mul_u32_u24 v1, {RH}, v1
v_add_u32 v20, v20, v1
s_mul_i32 s61, s46, {RW}
v_add_u32 v20, s61, v20""")
        if i in ((0, 4, 9, 13) if not OPT.get("x2") else (0, 4, 9)): st(f"q{i}")
    assert nxt[0] == 18 and RES is not None
    st("p2_loop")
    if OPT["p2prio"]: a("s_setprio 0")
    for rt in range(2):
        for nt in range(2):
            c = ACC2 + 16 * (2 * rt + nt)
            for q in range(4):
                a(f"ds_write_b128 v20, v[{c+4*q}:{c+4*q+3}] offset:{(2*rt+nt)*RT + q*RQ}")
    a(vm.wait("res"))
    a("s_waitcnt lgkmcnt(0)")
    for i in range(4):
        a(f"v_lshlrev_b32 v{24+2*i}, 16, v{RES+i}\nv_and_b32 v{25+2*i}, 0xffff0000, v{RES+i}")
    a("s_barrier")
    st("red_w")
    a(f"v_add_u32 v1, {2*RW}, v10")
    for sidx in range(4):
        for c in range(4):
            nt, hb = c >> 1, c & 1
            base = 10 if sidx < 2 else 1
            off = (sidx & 1) * RW + nt * RT + 2 * hb * RQ
            d = 96 + 16 * sidx + 4 * c
            a(f"ds_read_b128 v[{d}:{d+3}], v{base} offset:{off}")
    a("s_waitcnt lgkmcnt(8)")
    for k in range(8): a(f"v_pk_add_f32 v[{96+2*k}:{97+2*k}], v[{96+2*k}:{97+2*k}], v[{112+2*k}:{113+2*k}]")
    a("s_waitcnt lgkmcnt(0)")
    for k in range(8): a(f"v_pk_add_f32 v[{128+2*k}:{129+2*k}], v[{128+2*k}:{129+2*k}], v[{144+2*k}:{145+2*k}]")
    for k in range(8): a(f"v_pk_add_f32 v[{96+2*k}:{97+2*k}], v[{96+2*k}:{97+2*k}], v[{128+2*k}:{129+2*k}]")
    for c in range(4):
        for r in range(2): a(f"v_permlane32_swap_b32 v{96+4*c+r}, v{96+4*c+r+2}")
    for r in range(2):
        for c in range(4):
            a(f"v_add_f32 v{96+4*c+r}, v{96+4*c+r}, v{96+4*c+r+2}")
    for r in range(2):
        for c in range(4):
            a(f"v_add_f32 v{24+4*r+c}, v{24+4*r+c}, v{96+4*c+r}")
    for k in range(4): a(f"v_cvt_pk_bf16_f32 v{32+k}, v{24+2*k}, v{25+2*k}")
    a(f"buffer_store_dwordx4 v[32:35], v11, {srd(S_OUT)}, 0 offen")
    a(f"""s_or_b32 s3, s2, s46
s_cmp_lg_u32 s3, 0
s_cbranch_scc1 p2_noep
s_mov_b64 exec, 1
v_mov_b32 v20, s76
s_mov_b32 s3, {FLG}
buffer_store_dword v20, off, {ws}, s3
s_mov_b64 exec, -1
p2_noep:""")

DBG_NAMES = ["nstart", "start", "karg", "Pm1", "P3", "P7", "P11", "P15", "attn_done", "pub", "pollB", "pollA", "p2_loop", "red_w", "end", "dma_issued"]
class DStamps:
    def __init__(self, a): self.a = a; self.n = 0; self.names = []
    def __call__(self, name, real=False):
        if name in DBG_NAMES:
            self.a(f"s_memrealtime s[100:101]\ns_waitcnt lgkmcnt(0)\nv_writelane_b32 v{VSTAMP}, s100, {DBG_NAMES.index(name)}")
    def dump(self, w, t): pass

def gen_k1(P, name="k1_kernel"):
    a = A()
    a("s_cmp_ge_u32 s2, 256\ns_cbranch_scc1 k1_done")
    global Stamps
    if OPT.get("dbgp"):
        Stamps = lambda a_, v, k: DStamps(a_)
        a(f"v_mov_b32 v{VSTAMP}, 0")
        a(f"s_memrealtime s[100:101]\ns_waitcnt lgkmcnt(0)\nv_writelane_b32 v{VSTAMP}, s100, 1\ns_not_b32 s100, s100\nv_writelane_b32 v{VSTAMP}, s100, 0")
    stc = Stamps(a, VSTAMP, 1); stp = Stamps(a, VSTAMP, 1)
    if gen1.PROF:
        stc("real0", True); stc("start")
        stp.names = list(stc.names); stp.n = stc.n
    prologue(a)
    a("s_cmp_lt_u32 s46, 4\ns_cbranch_scc1 cons")
    prod_setup_common(a)
    a("s_cmp_lg_u32 s48, 0\ns_cbranch_scc1 prodB")
    n0 = stp.n; nm0 = list(stp.names)
    producer(a, "A", stp)
    a("prodB:")
    stp.n = n0; stp.names = list(nm0)
    producer(a, "B", stp)
    a("cons:")
    w2l, w2i = consumer(a, stc)
    sta = Stamps(a, VSTAMP, 1); sta.n = 16; sta.names = [None] * 16
    attention(a, sta, w2l[w2i[0]:] if OPT["fuse"] else None)
    a("ep_B:\ns_nop 3")
    k = 0; nd = 0; last_store_k = 0
    for j in range(5):
        for rt in range(2):
            for x in ffn_tile(rt, j): a(x)
            last_store_k = k
            nd += 1
            for _ in range(OPT["bw2"]):
                if k < len(w2l) and (w2l[k][0] >> 1) < nd - 1:
                    for x in w2l[k][1]: a(x)
                    k += 1
    if OPT["fuse"]:
        sta.n = 16; sta.names = [None] * 16
        sta("attn_done")
        for _ in range(OPT["bw2b"]):
            if k < len(w2l):
                for x in w2l[k][1]: a(x)
                k += 1
        a(f"s_waitcnt vmcnt({k - last_store_k})")
        sta("drainedB")
        a("s_barrier")
        kp = min(len(w2l), k + OPT["pB"])
        while k < kp:
            for x in w2l[k][1]: a(x)
            k += 1
        a(f"buffer_load_dword v18, off, {srd(S_WS)}, s87 sc1")
        n2 = len(w2l) - k
        while k < len(w2l):
            for x in w2l[k][1]: a(x)
            k += 1
        a(f"s_waitcnt vmcnt({n2})\ns_branch p2_chk")
        st2 = Stamps(a, VSTAMP, 1); st2.n = 18; st2.names = list(sta.names) if gen1.PROF else []
        phase2(a, st2)
        if gen1.PROF:
            for S_ in (stc, stp):
                S_.names = S_.names + ["-"] * (16 - len(S_.names)) + st2.names[16:]
    a("p1_done:")
    if gen1.PROF:
        a(f"s_memtime s[100:101]\ns_waitcnt lgkmcnt(0)\nv_writelane_b32 v{VSTAMP}, s100, 30")
    a("s_waitcnt vmcnt(0)")
    if OPT.get("dbgp"):
        stc("end")
        a(f"""s_cmp_lg_u32 s46, {OPT['dbgp']}
s_cbranch_scc1 k1_done
s_mov_b64 exec, 0xffff
v_lshlrev_b32 v24, 2, v0
buffer_atomic_umax v{VSTAMP}, v24, {srd(S_DBG)}, 0 offen
s_waitcnt vmcnt(0)""")
    if gen1.PROF:
        a(f"s_memtime s[100:101]\ns_waitcnt lgkmcnt(0)\nv_writelane_b32 v{VSTAMP}, s100, 31")
        a(f"s_memrealtime s[100:101]\ns_waitcnt lgkmcnt(0)\nv_writelane_b32 v{VSTAMP}, s100, 32")
        stc.dump(46, 24)
        print("CONS", stc.names, file=sys.stderr); print("PROD", stp.names, file=sys.stderr)
        open("last.names", "w").write(repr({"cons": stc.names, "prod": stp.names}))
    a("k1_done:\ns_endpgm")
    gen1.finish(P, name, a, 256, LDS1)

if __name__ == "__main__":
    if len(sys.argv) > 2 and sys.argv[2] == "prof": gen1.PROF = True
    P = Prog()
    if OPT["fuse"]:
        gen_k1(P, NAME + "_kernel")
        open(sys.argv[1], "w").write(P.render(single=True))
    else:
        gen_k1(P)
        gen1.gen_k2(P)
        open(sys.argv[1], "w").write(P.render())
```
